```python
import torch

def _softmax(x, axis=-1):
    return torch.softmax(x, dim=axis)
def _gelu(x):
    return torch.nn.functional.gelu(x, approximate="tanh")
def _silu(x):
    return torch.nn.functional.silu(x)
def _sigmoid(x):
    return torch.sigmoid(x)
def _layernorm(x, axis=-1, eps=1e-5):
    m = x.mean(dim=axis, keepdim=True)
    v = x.var(dim=axis, keepdim=True, unbiased=False)
    return (x - m) / torch.sqrt(v + eps)
def _scatter_add(tgt, idx, src, axis=0):
    return tgt.clone().index_add_(axis, idx, src)
def _segment_sum(src, seg, n):
    out = torch.zeros((n,) + src.shape[1:], dtype=src.dtype)
    return out.index_add_(0, seg, src)
def _pad(x, pw):
    flat = tuple(v for pair in reversed(pw) for v in pair)
    return torch.nn.functional.pad(x, flat)

kernel_name = 'gated_mix__ssm_conv_h3__mixer_token_mlp__prompt'

def setup_inputs():

    _w = (lambda a: (lambda t: t.to(torch.bfloat16) if t.is_floating_point() else t)(torch.as_tensor(a)))
    def _A_setup():
        B, S, D = 1, 2048, 640
        ks = 4
        return {
            "q": _w((lambda *s: torch.randn(*s, dtype=torch.bfloat16) * 0.05)(B, S, D)),
            "k": _w((lambda *s: torch.randn(*s, dtype=torch.bfloat16) * 0.4)(B, S, D)),
            "v": _w((lambda *s: torch.randn(*s, dtype=torch.bfloat16) * 0.2)(B, S, D)),
            "shift_k": _w((lambda *s: torch.randn(*s, dtype=torch.bfloat16) * 0.4)(D, ks) * 0.5),
            "ssm_k": _w((lambda *s: torch.randn(*s, dtype=torch.bfloat16) * 0.8)(D, S) * (1.0 / S ** 0.5)),
            "ssm_D": _w((lambda *s: torch.randn(*s, dtype=torch.bfloat16) * 0.2)(D)),
        }
    _A_in = _A_setup()

    def _B_setup():
        B, S, D, F = 1, 2048, 640, 1536
        return {
            "x": _w((lambda *s: torch.randn(*s, dtype=torch.bfloat16) * 0.05)(B, S, D)),
            "w1": _w((lambda *s: torch.randn(*s, dtype=torch.bfloat16) * 0.2)(S, F) * (S ** -0.5)),
            "b1": _w((lambda *s: torch.randn(*s, dtype=torch.bfloat16) * 3.2)(F) * 0.02),
            "w2": _w((lambda *s: torch.randn(*s, dtype=torch.bfloat16) * 0.05)(F, S) * (F ** -0.5)),
            "b2": _w((lambda *s: torch.randn(*s, dtype=torch.bfloat16) * 0.1)(S) * 0.02),
        }
    _B_in = _B_setup()

    return {
        "A_q": _A_in["q"],
        "A_k": _A_in["k"],
        "A_v": _A_in["v"],
        "A_shift_k": _A_in["shift_k"],
        "A_ssm_k": _A_in["ssm_k"],
        "A_ssm_D": _A_in["ssm_D"],
        "B_x": _B_in["x"],
        "B_w1": _B_in["w1"],
        "B_b1": _B_in["b1"],
        "B_w2": _B_in["w2"],
        "B_b2": _B_in["b2"],
        "gate_w": _w((lambda *s: torch.randn(*s, dtype=torch.bfloat16) * 0.05)(640) * 16.0),
    }

def reference(A_q, A_k, A_v, A_shift_k, A_ssm_k, A_ssm_D, B_x, B_w1, B_b1, B_w2, B_b2, gate_w):
    def _A_ref(q, k, v, shift_k, ssm_k, ssm_D):
        B, S, D = q.shape
        ks = shift_k.shape[-1]
        k_pad = _pad(k, ((0, 0), (ks - 1, 0), (0, 0)))
        k_shift = torch.zeros_like(k)
        for t in range(ks):
            k_shift = k_shift + k_pad[:, t:t + S, :] * shift_k[:, ks - 1 - t][None, None, :]
        kv = k_shift * v
        L = 2 * S
        kv_pad = _pad(kv, ((0, 0), (0, S), (0, 0)))
        kf_pad = _pad(ssm_k, ((0, 0), (0, S)))
        kv_f = (lambda x, axes=(-2,-1): torch.fft.rfft2(x.float(), dim=axes))(kv_pad[:, None, :, :], axes=(1, 2))
        kf_f = (lambda x, axes=(-2,-1): torch.fft.rfft2(x.float(), dim=axes))(kf_pad[:, None, :], axes=(1, 2))
        kf_f = (lambda x, *d: x.permute(*d))(kf_f, 1, 2, 0)
        y_f = kv_f * kf_f[None, :, :, :]
        y = (lambda x, s, axes=(-2,-1): torch.fft.irfft2(x, s=s, dim=axes).to(torch.bfloat16))(y_f, (1, L), axes=(1, 2))[:, 0, :S, :]
        y = y + kv * ssm_D[None, None, :]
        return q * y

    def _B_ref(x, w1, b1, w2, b2):
        B, S, D = x.shape
        h = _layernorm(x, axis=-1)
        u = torch.einsum("bsd,sf->bdf", h, w1) + b1
        u = _gelu(u)
        y = torch.einsum("bdf,fs->bds", u, w2) + b2
        return (lambda x, *d: x.permute(*d))(y, 0, 2, 1)

    x = A_q
    g = _sigmoid((x * gate_w).sum(-1, keepdims=True))
    a = _A_ref(x, A_k, A_v, A_shift_k, A_ssm_k, A_ssm_D)
    b = _B_ref(x, B_w1, B_b1, B_w2, B_b2)
    return g * a + (1 - g) * b
```

```python
import re

TRANS = ('v_exp_f32', 'v_log_f32', 'v_rcp_f32', 'v_rsq_f32', 'v_sqrt_f32', 'v_sin_f32', 'v_cos_f32')


def regs_of(tok):
    tok = tok.strip()
    if tok.startswith('-'):
        tok = tok[1:]
    m = re.fullmatch(r'abs\((.*)\)|\|(.*)\|', tok)
    if m:
        tok = m.group(1) or m.group(2)
    m = re.fullmatch(r'([vas])(\d+)', tok)
    if m:
        return {(m.group(1), int(m.group(2)))}
    m = re.fullmatch(r'([vas])\[(\d+):(\d+)\]', tok)
    if m:
        return {(m.group(1), i) for i in range(int(m.group(2)), int(m.group(3)) + 1)}
    if tok in ('vcc', 'vcc_lo', 'vcc_hi'):
        return {('s', 'vcc')}
    if tok in ('exec', 'exec_lo', 'exec_hi'):
        return {('s', 'exec')}
    if tok == 'm0':
        return {('s', 'm0')}
    return set()


class Ins:
    def __init__(self, text):
        self.text = text
        parts = text.split(None, 1)
        self.op = op = parts[0]
        rest = parts[1] if len(parts) > 1 else ''
        ops, depth, cur = [], 0, ''
        for ch in rest:
            if ch in '[(':
                depth += 1
            if ch in '])':
                depth -= 1
            if ch == ',' and depth == 0:
                ops.append(cur.strip())
                cur = ''
            else:
                cur += ch
        mods = ''
        if cur.strip():
            t = cur.strip().split(None, 1)
            ops.append(t[0])
            mods = t[1] if len(t) > 1 else ''
        self.ops, self.mods = ops, mods
        R = [regs_of(o) for o in ops]
        U = lambda l: set().union(*l) if l else set()
        self.states = 1
        self.kind = 'other'
        self.w, self.r = set(), set()
        self.A = self.B = self.C = set()
        self.sdata = set()
        if op.startswith('v_mfma'):
            self.kind = 'mfma'
            self.w, self.A, self.B, self.C = R[0], R[1], R[2], R[3]
            self.r = self.A | self.B | self.C
            self.passes = 8 if '32x32' in op else 4
        elif op.startswith('v_'):
            self.kind = 'valu'
            self.w, self.r = set(R[0]) if R else set(), U(R[1:])
            if 'permlane' in op and 'swap' in op:
                self.w = R[0] | R[1]
                self.r = R[0] | R[1]
            if op.startswith(('v_fmac', 'v_dot2c', 'v_pk_fmac')) or 'row_' in mods or 'quad_perm' in mods:
                self.r |= R[0]
            if re.match(r'v_(add|sub|subrev|addc|subb)_co', op):
                self.w |= R[1]
                self.r = U(R[2:])
            self.dpp = ('row_' in mods or 'quad_perm' in mods or 'wave_' in mods)
            self.trans = op.replace('_e32', '').replace('_e64', '') in TRANS
            self.dot = op.startswith('v_dot')
        elif op.startswith('ds_'):
            self.kind = 'ds'
            if op.startswith(('ds_read', 'ds_bpermute', 'ds_swizzle', 'ds_permute')):
                self.w, self.r = R[0], U(R[1:])
            else:
                self.r = U(R)
        elif op.startswith(('buffer_', 'global_')):
            self.kind = 'vmem'
            self.lds = bool(re.search(r'\blds\b', mods)) or '_lds_' in op
            if '_load' in op and not self.lds:
                self.w, self.r = R[0], U(R[1:])
            else:
                self.r = U(R)
                if self.lds:
                    self.r |= {('s', 'm0')}
                if '_store' in op and ('x3' in op or 'x4' in op):
                    self.sdata = R[0] if op.startswith('buffer_') else R[1]
        elif op == 's_nop':
            self.states = int(ops[0], 0) + 1
        elif op.startswith('s_'):
            self.kind = 'salu'
            if not op.startswith(('s_cmp', 's_waitcnt', 's_barrier', 's_branch', 's_cbranch', 's_endpgm', 's_sleep',
                                  's_setprio', 's_bitcmp', 's_setpc')):
                self.w, self.r = set(R[0]) if R else set(), U(R[1:])
                if 'saveexec' in op:
                    self.w |= {('s', 'exec')}
            else:
                self.r = U(R)


def isv(s):
    return {x for x in s if x[0] in 'va'}


def iss(s):
    return {x for x in s if x[0] == 's'}


def need(p, c):
    n = 0
    if p.kind == 'valu':
        wv, ws = isv(p.w), iss(p.w)
        if c.kind == 'mfma' and wv & c.r:
            n = max(n, 3 if p.dot else 2)
        if c.kind == 'valu':
            if wv & c.r:
                if p.trans and not c.trans:
                    n = max(n, 1)
                if c.dpp or 'permlane' in c.op:
                    n = max(n, 2)
                if c.op.startswith(('v_readlane', 'v_readfirstlane')):
                    n = max(n, 1)
            if p.dot and (wv & (c.r | c.w)):
                same_c = (c.op == p.op and not (wv & (regs_of(c.ops[1]) | regs_of(c.ops[2]))))
                if not same_c:
                    n = max(n, 3)
            if ws & c.r:
                n = max(n, 4 if c.op.startswith(('v_readlane', 'v_writelane')) else 2)
            if ('s', 'vcc') in ws and c.op.startswith(('v_cndmask', 'v_addc', 'v_subb')):
                n = max(n, 2)
        if p.dot and c.kind in ('vmem', 'ds') and wv & c.r:
            n = max(n, 3)
        if c.kind == 'vmem' and ws & c.r:
            n = max(n, 5)
    if p.kind == 'mfma':
        big = {4: 8, 8: 12}[p.passes]
        if c.kind == 'mfma':
            if p.w & (c.A | c.B):
                n = max(n, big)
            if p.w & c.C and not (p.w == c.C and p.passes == c.passes):
                n = max(n, big - 2)
            if p.w & c.w and not (p.w & c.C):
                n = max(n, big - 2)
        elif c.kind in ('valu', 'vmem', 'ds'):
            if p.w & (c.r | c.w):
                n = max(n, big)
            if c.kind == 'valu' and p.C & c.w:
                n = max(n, {4: 3, 8: 7}[p.passes])
    if p.kind == 'salu' and ('s', 'm0') in p.w and c.kind == 'vmem' and c.lds:
        n = max(n, 1)
    if p.kind == 'vmem' and p.sdata and p.sdata & c.w:
        n = max(n, 2)
    return n


class Asm:
    def __init__(self):
        self.out = []
        self.hist = []
        self.vm = []
        self.nops = 0
        self.cond = False

    def raw(self, s):
        self.out.append(s)

    def comment(self, s):
        self.out.append('    ; ' + s)

    def label(self, name):
        self.out.append(name + ':')

    def I(self, text, tag=None):
        c = Ins(text)
        dist, pad = 0, 0
        for p in reversed(self.hist):
            if dist >= 20:
                break
            pad = max(pad, need(p, c) - dist)
            dist += p.states
        while pad > 0:
            k = min(pad, 16)
            nop = Ins('s_nop %d' % (k - 1))
            self.out.append('    ' + nop.text)
            self.hist.append(nop)
            self.nops += 1
            pad -= k
        self.out.append('    ' + text)
        self.hist.append(c)
        if len(self.hist) > 64:
            self.hist = self.hist[-32:]
        if c.kind == 'vmem':
            self.vm.append((tag, 0 if self.cond else 1))
        if c.op == 's_waitcnt':
            m = re.search(r'vmcnt\((\d+)\)', text)
            if m:
                self._retire(int(m.group(1)))
        return c

    def __call__(self, text, tag=None):
        for line in text.strip().split('\n'):
            line = line.split(';')[0].strip()
            if line:
                self.I(line, tag)

    def _retire(self, n):
        keep, acc = [], 0
        for t in reversed(self.vm):
            if acc >= n:
                break
            keep.append(t)
            acc += t[1]
        self.vm = list(reversed(keep))

    def vm_n(self, tag):
        idx = [i for i, t in enumerate(self.vm) if t[0] == tag]
        if not idx:
            return None
        return sum(t[1] for t in self.vm[idx[-1] + 1:])

    def wait_vm(self, tag, extra=''):
        n = self.vm_n(tag)
        if n is None:
            if extra:
                self.I('s_waitcnt ' + extra)
            return
        n = min(n, 63)
        self.I(('s_waitcnt vmcnt(%d) %s' % (n, extra)).strip())

    def drain(self, n=12):
        self.I('s_nop %d' % (n - 1))

    def text(self):
        return '\n'.join(self.out) + '\n'


def vr(base, n=1, k='v'):
    return '%s%d' % (k, base) if n == 1 else '%s[%d:%d]' % (k, base, base + n - 1)


def ar(base, n=1):
    return vr(base, n, 'a')


def sr(base, n=1):
    return vr(base, n, 's')
```

```python
import sys
from asmlib import Asm, vr, ar, sr

NAME = 'gated_mix__ssm_conv_h3__mixer_token_mlp__prompt'
STAMPS = '--stamps' in sys.argv
OUT = [x for x in sys.argv[1:] if not x.startswith('--')][0]

WS_EPOCH = 0
WS_FH = 0x1000
WS_FKV = 0x9000
WS_FU = 0xB000
WS_FY = 0x13000
WS_G = 0x18000
WS_ST = 0x20000
WS_HT8 = 0x40000
WS_KV = 0x2C0000
WS_UF = 0x540000
WS_YT = 0x720000
WS_END = 0x9A0000
OOB = 0x7ff00000
RINGW = 24576
L_T4 = 98304
T4SZ = 16512
L_X = 147840
XSZ = 4608
L_LN = L_X
LNROW = 1344
LDS_BYTES = 163840
SPIN_MAX = 200000

sQ, sK, sV, sSK, sHK, sD, sW1, sB1, sW2, sB2, sGW, sOUT, sWS = 4, 6, 8, 10, 12, 14, 18, 20, 22, 24, 26, 28, 30
rWS, rW, rK, rH = 32, 36, 40, 44
sN = 48
sWave, sR, sDT, sFT, sDT2, sST2, sP0, sNCH, sCH, sRing = 50, 51, 52, 53, 54, 55, 56, 57, 58, 59
sKS = 60
sT0, sT1, sSpin = 16, 17, 3
sWoff = 76
sAct = 77
sStamp = 78
sOOB = 94

a = Asm()
nstamp = [0]


def stamp():
    if STAMPS:
        i = nstamp[0]
        nstamp[0] += 1
        assert i < 16
        a('s_memrealtime s[100:101]')
        a('s_waitcnt lgkmcnt(0)')
        a('s_mov_b32 %s, s100' % sr(sStamp + i))


vLane, vG, vU, vN = 1, 2, 3, 4
vT = 6
vWo = 16
vTr = 20
vHo = 24
vB1 = 28
vPoll = 36
vPo = 38
vD = 39
vXa = 40
vMisc = 44


def poll(name, voff):
    a('s_mov_b32 %s, 0' % sr(sSpin))
    a.label(name)
    a('buffer_load_dwordx2 %s, %s, %s, 0 offen sc1' % (vr(vPoll, 2), vr(voff), sr(rWS, 4)))
    a('s_waitcnt vmcnt(0)')
    a('v_cmp_ne_u64 vcc, %s, %s' % (sr(sN, 2), vr(vPoll, 2)))
    a('s_add_u32 %s, %s, 1' % (sr(sSpin), sr(sSpin)))
    a('s_cbranch_vccz %s_ok' % name)
    a('s_cmp_lt_u32 %s, %d' % (sr(sSpin), SPIN_MAX))
    a('s_cbranch_scc1 %s' % name)
    a.label(name + '_ok')


def flag(soff):
    a('s_mov_b64 exec, 1')
    a('buffer_store_dwordx2 %s, off, %s, %s sc1' % (vr(vN, 2), sr(rWS, 4), sr(soff)), tag='flag')
    a('s_mov_b64 exec, -1')


def dma_step(ks, slot, stride, tag):
    a('s_add_u32 m0, %s, %d' % (sr(sRing), slot * 4096))
    a('s_mov_b32 %s, %d' % (sr(sWoff), ks * stride))
    for jj in range(4):
        a('buffer_load_dwordx4 %s, %s, %s offen offset:%d lds' % (vr(vWo + jj), sr(rW, 4), sr(sWoff), 1024 * jj),
          tag=(tag, ks))


def tr_step(ks, slot, hstride):
    for n in range(4):
        for hh in range(2):
            a('ds_read_b64_tr_b16 %s, %s offset:%d' % (
                ar(16 * ks + 4 * n + 2 * hh, 2), vr(vTr + n), slot * 4096 + hh * hstride))


def reduce32(v, tmp):
    for r in (8, 4, 2, 1):
        a('v_add_f32 %s, %s, %s row_ror:%d' % (vr(v), vr(v), vr(v), r))
    a('v_mov_b32 %s, %s' % (vr(tmp), vr(v)))
    a('v_permlane16_swap_b32 %s, %s' % (vr(v), vr(tmp)))
    a('v_add_f32 %s, %s, %s' % (vr(v), vr(v), vr(tmp)))


a('s_cmp_ge_u32 s2, 256')
a('s_cbranch_scc1 L_end')
a('s_load_dwordx16 s[4:19], s[0:1], 0')
a('s_load_dwordx8 s[20:27], s[0:1], 64')
a('s_load_dwordx2 s[28:29], s[0:1], 96')
a('s_load_dwordx2 s[30:31], s[0:1], 112')
a('v_lshrrev_b32 %s, 6, v0' % vr(vT))
a('v_and_b32 %s, 63, v0' % vr(vLane))
a('v_readfirstlane_b32 %s, %s' % (sr(sWave), vr(vT)))
a('v_lshrrev_b32 %s, 4, %s' % (vr(vG), vr(vLane)))
a('v_and_b32 %s, 15, %s' % (vr(vU), vr(vLane)))
sx, sj, t2, t3 = 96, 97, 98, 99
a(f'''
s_and_b32 s{sx}, s2, 7
s_lshr_b32 s{sj}, s2, 3
s_lshl_b32 s{sR}, s{sx}, 5
s_add_u32 s{sR}, s{sR}, s{sj}
s_mul_i32 s{t2}, s{sj}, 52
s_lshr_b32 s{t2}, s{t2}, 8
s_mul_i32 s{t3}, s{t2}, 5
s_sub_u32 s{sDT}, s{sj}, s{t3}
s_and_b32 s{t3}, s{sx}, 1
s_mul_i32 s{sDT2}, s{t3}, 4
s_mul_i32 s{t3}, s{t3}, 5
s_add_u32 s{sDT}, s{sDT}, s{t3}
s_lshr_b32 s{t3}, s{sx}, 1
s_mul_i32 s{sFT}, s{t3}, 6
s_add_u32 s{sFT}, s{sFT}, s{t2}
s_lshl_b32 s{sST2}, s{t3}, 3
s_lshr_b32 s{t3}, s{sj}, 2
s_add_u32 s{sST2}, s{sST2}, s{t3}
s_and_b32 s{t3}, s{sj}, 3
s_add_u32 s{sDT2}, s{sDT2}, s{t3}
s_cmp_lt_u32 s{sj}, 30
s_cselect_b32 s{sAct}, 1, 0
s_mul_i32 s{sP0}, s{sx}, 80
s_lshr_b32 s{t3}, s{sj}, 1
s_mul_i32 s{t3}, s{t3}, 5
s_add_u32 s{sP0}, s{sP0}, s{t3}
s_and_b32 s{t3}, s{sj}, 1
s_sub_u32 s{sNCH}, 3, s{t3}
s_mul_i32 s{t3}, s{t3}, 3
s_add_u32 s{sP0}, s{sP0}, s{t3}
s_mul_i32 s{sRing}, s{sWave}, {RINGW}
''')
a(f'''
s_cmp_lt_u32 s{sWave}, s{sNCH}
s_cselect_b32 s{t2}, s{sWave}, 0
s_add_u32 s{t2}, s{t2}, s{sP0}
s_lshl_b32 s{sCH}, s{t2}, 1
s_cmp_ge_u32 s{t2}, 320
s_cselect_b32 s{t3}, 639, 0
s_sub_u32 s{sCH}, s{sCH}, s{t3}
''')
for ks in range(16):
    a('s_mov_b32 %s, %d' % (sr(sKS + ks), 40960 * ks))
a('s_mov_b32 %s, %d' % (sr(sOOB), OOB))
if STAMPS:
    for i in range(16):
        a('s_mov_b32 %s, 0' % sr(sStamp + i))
vQo, vQo2, vL5, vRow = vT, vT + 1, vT + 2, vT + 3
a(f'''
v_and_b32 v{vL5}, 31, v0
v_lshrrev_b32 v{vRow}, 5, v0
s_lshl_b32 s{t2}, s{sR}, 3
v_add_u32 v{vQo2}, s{t2}, v{vRow}
v_mul_u32_u24 v{vQo2}, 1280, v{vQo2}
v_lshl_add_u32 v{vQo}, v{vL5}, 4, v{vQo2}
v_lshl_add_u32 v{vQo2}, v{vL5}, 3, v{vQo2}
''')
vQ = 52
vX = 64
vGWp = 84
a('s_waitcnt lgkmcnt(0)')
stamp()
a('global_load_dwordx4 %s, %s, %s' % (vr(vQ, 4), vr(vQo), sr(sQ, 2)), tag='q')
a('global_load_dwordx4 %s, %s, %s offset:512' % (vr(vQ + 4, 4), vr(vQo), sr(sQ, 2)), tag='q')
a('global_load_dwordx2 %s, %s, %s offset:1024' % (vr(vQ + 8, 2), vr(vQo2), sr(sQ, 2)), tag='q')
a('s_load_dwordx2 %s, %s, %d' % (sr(sN, 2), sr(sWS, 2), WS_EPOCH))
a(f'''
s_mov_b32 s{rWS}, s{sWS}
s_and_b32 s{rWS+1}, s{sWS+1}, 0xffff
s_mov_b32 s{rWS+2}, {WS_END}
s_mov_b32 s{rWS+3}, 0x20000
s_mov_b32 s{rW}, s{sW1}
s_and_b32 s{rW+1}, s{sW1+1}, 0xffff
s_mul_i32 s{rW+2}, s{sAct}, {2048*3072}
s_mov_b32 s{rW+3}, 0x20000
s_mov_b32 s{rK}, s{sK}
s_and_b32 s{rK+1}, s{sK+1}, 0xffff
s_mov_b32 s{rK+2}, {2048*1280}
s_mov_b32 s{rK+3}, 0x20000
s_lshl_b32 s{t2}, s{sCH}, 12
s_add_u32 s{rH}, s{sHK}, s{t2}
s_addc_u32 s{rH+1}, s{sHK+1}, 0
s_and_b32 s{rH+1}, s{rH+1}, 0xffff
s_cmp_lt_u32 s{sWave}, s{sNCH}
s_cselect_b32 s{rH+2}, 4096, 0
s_mov_b32 s{rH+3}, 0x20000
''')
t0, t1, t4 = vT + 4, vT + 5, vT + 6
a(f'''
v_lshrrev_b32 v{t0}, 3, v{vLane}
v_mul_u32_u24 v{t0}, 3072, v{t0}
s_mul_i32 s{t2}, s{sWave}, {512*3072}
s_lshl_b32 s{t3}, s{sFT}, 7
s_add_u32 s{t2}, s{t2}, s{t3}
v_add_u32 v{t0}, s{t2}, v{t0}
v_and_b32 v{t1}, 7, v{vLane}
v_and_b32 v{t4}, 1, v{vG}
v_lshlrev_b32 v{t4}, 1, v{t4}
v_xor_b32 v{t1}, v{t1}, v{t4}
v_xor_b32 v{t4}, 4, v{t1}
v_lshl_add_u32 v{vWo}, v{t1}, 4, v{t0}
v_lshl_add_u32 v{vWo+1}, v{t4}, 4, v{t0}
v_add_u32 v{vWo+2}, {2*(24576-1024)}, v{vWo}
v_add_u32 v{vWo+3}, {3*(24576-1024)}, v{vWo+1}
v_add_u32 v{vWo+1}, {24576-1024}, v{vWo+1}
''')
W1S = 32 * 3072
for ks in range(6):
    dma_step(ks, ks, W1S, 'w1')
a(f'''
v_lshrrev_b32 v{t0}, 2, v{vU}
v_lshl_add_u32 v{t0}, v{vG}, 3, v{t0}
v_lshlrev_b32 v{t0}, 7, v{t0}
v_and_b32 v{t1}, 3, v{vU}
v_lshl_add_u32 v{t0}, v{t1}, 3, v{t0}
v_add_u32 v{t0}, s{sRing}, v{t0}
v_lshrrev_b32 v{t1}, 3, v{vU}
v_and_b32 v{t4}, 1, v{vG}
v_lshl_add_u32 v{t1}, v{t4}, 1, v{t1}
''')
for n in range(4):
    a(f'''
    v_xor_b32 v{t4}, {n}, v{t1}
    v_lshl_add_u32 v{vTr+n}, v{t4}, 5, v{t0}
    ''')
vLw, vLw2, vLr, vHs, vHs1, vHs2 = vMisc, vMisc + 1, vMisc + 2, vMisc + 3, vMisc + 4, vMisc + 5
a(f'''
v_mul_u32_u24 v{vLw2}, {LNROW}, v{vRow}
v_add_u32 v{vLw2}, {L_LN}, v{vLw2}
v_lshl_add_u32 v{vLw}, v{vL5}, 4, v{vLw2}
v_lshl_add_u32 v{vLw2}, v{vL5}, 3, v{vLw2}
v_lshrrev_b32 v{t0}, 2, v{vU}
v_mul_u32_u24 v{t0}, {LNROW}, v{t0}
v_and_b32 v{t1}, 3, v{vU}
v_lshl_add_u32 v{t0}, v{t1}, 3, v{t0}
v_lshl_add_u32 v{t0}, v{vG}, 5, v{t0}
s_lshl_b32 s{t2}, s{sWave}, 7
s_add_u32 s{t2}, s{t2}, {L_LN}
v_add_u32 v{vLr}, s{t2}, v{t0}
s_mul_i32 s{t2}, s{sR}, 10240
s_add_u32 s{t2}, s{t2}, {WS_HT8}
v_lshl_add_u32 v{vHs}, v0, 4, s{t2}
v_add_u32 v{vHs1}, 4096, v{vHs}
s_cmp_lt_u32 s{sWave}, 2
s_cselect_b32 s{t2}, 8192, s{sOOB}
v_add_u32 v{vHs2}, s{t2}, v{vHs}
''')
a.wait_vm('q')
stamp()
for i in range(10):
    a('v_lshlrev_b32 %s, 16, %s' % (vr(vX + 2 * i), vr(vQ + i)))
    a('v_and_b32 %s, 0xffff0000, %s' % (vr(vX + 2 * i + 1), vr(vQ + i)))
vS = vT + 4
a('v_pk_add_f32 %s, %s, %s' % (vr(vS, 2), vr(vX, 2), vr(vX + 2, 2)))
a('v_pk_add_f32 %s, %s, %s' % (vr(vS + 2, 2), vr(vX + 4, 2), vr(vX + 6, 2)))
for i in range(4, 10):
    d = vS + 2 * (i & 1)
    a('v_pk_add_f32 %s, %s, %s' % (vr(d, 2), vr(d, 2), vr(vX + 2 * i, 2)))
a('v_pk_add_f32 %s, %s, %s' % (vr(vS, 2), vr(vS, 2), vr(vS + 2, 2)))
a('v_add_f32 %s, %s, %s' % (vr(vS), vr(vS), vr(vS + 1)))
reduce32(vS, vS + 1)
a('v_mul_f32 %s, 0x%08x, %s' % (vr(vS), 0xbacccccd, vr(vS)))
for i in range(10):
    a('v_pk_add_f32 %s, %s, %s op_sel_hi:[1,0]' % (vr(vX + 2 * i, 2), vr(vX + 2 * i, 2), vr(vS, 2)))
a('v_pk_mul_f32 %s, %s, %s' % (vr(vS, 2), vr(vX, 2), vr(vX, 2)))
a('v_pk_mul_f32 %s, %s, %s' % (vr(vS + 2, 2), vr(vX + 2, 2), vr(vX + 2, 2)))
for i in range(2, 10):
    d = vS + 2 * (i & 1)
    a('v_pk_fma_f32 %s, %s, %s, %s' % (vr(d, 2), vr(vX + 2 * i, 2), vr(vX + 2 * i, 2), vr(d, 2)))
a('v_pk_add_f32 %s, %s, %s' % (vr(vS, 2), vr(vS, 2), vr(vS + 2, 2)))
a('v_add_f32 %s, %s, %s' % (vr(vS), vr(vS), vr(vS + 1)))
reduce32(vS, vS + 1)
a('v_mov_b32 %s, 0x3727c5ac' % vr(vS + 1))
a('v_fmac_f32 %s, 0x3acccccd, %s' % (vr(vS + 1), vr(vS)))
a('v_rsq_f32 %s, %s' % (vr(vS), vr(vS + 1)))
for i in range(10):
    a('v_pk_mul_f32 %s, %s, %s op_sel_hi:[1,0]' % (vr(vX + 2 * i, 2), vr(vX + 2 * i, 2), vr(vS, 2)))
vHp = 96
for i in range(10):
    a('v_cvt_pk_bf16_f32 %s, %s, %s' % (vr(vHp + i), vr(vX + 2 * i), vr(vX + 2 * i + 1)))
a('ds_write_b128 %s, %s' % (vr(vLw), vr(vHp, 4)))
a('ds_write_b128 %s, %s offset:512' % (vr(vLw), vr(vHp + 4, 4)))
a('ds_write_b64 %s, %s offset:1024' % (vr(vLw2), vr(vHp + 8, 2)))
a('s_waitcnt lgkmcnt(0)')
a('s_barrier')
vHt = 108
for m in range(3):
    for hh in range(2):
        a('ds_read_b64_tr_b16 %s, %s offset:%d' % (vr(vHt + 4 * m + 2 * hh, 2), vr(vLr), 512 * m + 4 * LNROW * hh))
a(f'''
s_add_u32 s{sN}, s{sN}, 0x9e3779b1
s_add_u32 s{sN+1}, s{sN+1}, 0x85ebca77
v_mov_b32 v{vN}, s{sN}
v_mov_b32 v{vN+1}, s{sN+1}
''')
for m, vo in enumerate((vHs, vHs1, vHs2)):
    a('s_waitcnt lgkmcnt(%d)' % (4 - 2 * m))
    a('buffer_store_dwordx4 %s, %s, %s, 0 offen sc1' % (vr(vHt + 4 * m, 4), vr(vo), sr(rWS, 4)), tag='hst')
stamp()
vKo, vKo4, vKoh, vTo = vMisc, vMisc + 1, vMisc + 2, vMisc + 6
a(f'''
v_lshlrev_b32 v{t0}, 4, v{vL5}
v_lshlrev_b32 v{t1}, 3, v{vL5}
''')
a('global_load_dwordx4 %s, %s, %s' % (vr(vGWp, 4), vr(t0), sr(sGW, 2)), tag='gw')
a('global_load_dwordx4 %s, %s, %s offset:512' % (vr(vGWp + 4, 4), vr(t0), sr(sGW, 2)), tag='gw')
a('global_load_dwordx2 %s, %s, %s offset:1024' % (vr(vGWp + 8, 2), vr(t1), sr(sGW, 2)), tag='gw')
a(f'''
s_mul_i32 s{t2}, s{sR}, 10240
v_lshl_add_u32 v{vKo}, v0, 2, s{t2}
v_add_u32 v{vKo4}, 5120, v{vKo}
v_subrev_u32 v{vKoh}, 3840, v{vKo}
v_lshlrev_b32 v{vTo}, 4, v0
''')
vKV1, vKV2 = 120, 144


def kv_loads(b, tag):
    a('global_load_dwordx4 %s, %s, %s' % (vr(b, 4), vr(vTo), sr(sSK, 2)), tag=tag)
    for r in range(11):
        vo, off = ((vKoh, 1280 * r) if r < 3 else (vKo, 1280 * (r - 3)) if r < 7 else (vKo4, 1280 * (r - 7)))
        a('buffer_load_dword %s, %s, %s, 0 offen offset:%d' % (vr(b + 4 + r), vr(vo), sr(rK, 4), off), tag=tag)
    for r in range(8):
        vo, off = ((vKo, 1280 * r) if r < 4 else (vKo4, 1280 * (r - 4)))
        a('global_load_dword %s, %s, %s offset:%d' % (vr(b + 15 + r), vr(vo), sr(sV, 2), off), tag=tag)


kv_loads(vKV1, 'kv1')
vH4 = 168
a('s_cmp_eq_u32 %s, 3' % sr(sWave))
a('s_cbranch_scc1 L_ld_w3')
save = list(a.vm)
a(f'''
v_lshlrev_b32 v{t0}, 2, v{vLane}
v_mov_b32 v{t1}, s{sCH}
v_lshlrev_b32 v{t1}, 1, v{t1}
''')
for n in range(16):
    a('buffer_load_dwordx3 %s, %s, %s, 0 offen offset:%d' % (vr(vH4 + 4 * n, 3), vr(t0), sr(rH, 4), 256 * n), tag='x20')
for jj in range(3):
    a('v_subrev_u32 %s, %d, %s' % (vr(t4), 32 - 4 * jj, vr(t0)))
    a('buffer_load_dword %s, %s, %s, 0 offen' % (vr(vH4 + 64 + jj), vr(t4), sr(rH, 4)), tag='x20')
a('global_load_ushort %s, %s, %s' % (vr(vD), vr(t1), sr(sD, 2)), tag='x20')
n1 = len(a.vm)
a('s_branch L_ld_done')
a.label('L_ld_w3')
a.vm = list(save)
a(f'''
v_add_u32 v{vKo}, 256, v{vKo}
v_add_u32 v{vKo4}, 256, v{vKo4}
v_add_u32 v{vKoh}, 256, v{vKoh}
v_add_u32 v{vTo}, 1024, v{vTo}
''')
kv_loads(vKV2, 'x20')
assert len(a.vm) == n1
a.label('L_ld_done')
a.wait_vm(('w1', 5))
for ks in range(6):
    tr_step(ks, ks, 512)
a.wait_vm('hst')
a(f'''
s_lshl_b32 s{t2}, s{sWave}, 8
s_add_u32 s{t2}, s{t2}, s{sR}
s_lshl_b32 s{t2}, s{t2}, 5
s_add_u32 s{t2}, s{t2}, {WS_FH}
''')
flag(t2)
stamp()
a('s_waitcnt lgkmcnt(0)')
a.wait_vm('gw')
vZ = vT + 4
a('v_mov_b32 %s, 0' % vr(vZ))
for i in range(10):
    a('v_dot2_f32_bf16 %s, %s, %s, %s' % (vr(vZ), vr(vQ + i), vr(vGWp + i), vr(vZ)))
reduce32(vZ, vZ + 1)
a(f'''
v_mul_f32 v{vZ}, 0xbfb8aa3b, v{vZ}
v_exp_f32 v{vZ}, v{vZ}
v_add_f32 v{vZ}, 1.0, v{vZ}
v_rcp_f32 v{vZ}, v{vZ}
s_lshl_b32 s{t2}, s{sR}, 5
s_add_u32 s{t2}, s{t2}, {WS_G}
v_lshl_add_u32 v{vZ+1}, v{vRow}, 2, s{t2}
s_mov_b32 exec_lo, 1
s_mov_b32 exec_hi, 1
''')
a('buffer_store_dword %s, %s, %s, 0 offen sc1' % (vr(vZ), vr(vZ + 1), sr(rWS, 4)), tag='gst')
a('s_mov_b64 exec, -1')
vP, vKu, vAcc, vKs = 52, 60, 84, vMisc + 3


def kv_compute(b):
    for c in range(2):
        for h in range(2):
            a('v_lshlrev_b32 %s, 16, %s' % (vr(vP + 4 * h + c), vr(b + 2 * c + h)))
            a('v_and_b32 %s, 0xffff0000, %s' % (vr(vP + 4 * h + 2 + c), vr(b + 2 * c + h)))
    for r in range(11):
        a('v_lshlrev_b32 %s, 16, %s' % (vr(vKu + 2 * r), vr(b + 4 + r)))
        a('v_and_b32 %s, 0xffff0000, %s' % (vr(vKu + 2 * r + 1), vr(b + 4 + r)))
    for r in range(8):
        d = vr(vAcc + 2 * r, 2)
        a('v_pk_mul_f32 %s, %s, %s' % (d, vr(vP + 6, 2), vr(vKu + 2 * r, 2)))
        a('v_lshlrev_b32 v100, 16, %s' % vr(b + 15 + r))
        for j in (2, 1, 0):
            a('v_pk_fma_f32 %s, %s, %s, %s' % (d, vr(vP + 2 * j, 2), vr(vKu + 2 * (r + 3 - j), 2), d))
        a('v_and_b32 v101, 0xffff0000, %s' % vr(b + 15 + r))
        a('v_pk_mul_f32 %s, %s, v[100:101]' % (d, d))
    for c in range(2):
        for j in range(4):
            a('v_cvt_pk_bf16_f32 %s, %s, %s' % (
                vr(104 + 4 * c + j), vr(vAcc + 2 * (7 - 2 * j) + c), vr(vAcc + 2 * (6 - 2 * j) + c)))
    a('buffer_store_dwordx4 v[104:107], %s, %s, 0 offen sc1' % (vr(vKs), sr(rWS, 4)), tag='kvst')
    a('buffer_store_dwordx4 v[108:111], %s, %s, 0 offen sc1' % (vr(vKs + 1), sr(rWS, 4)), tag='kvst')


a(f'''
s_mul_i32 s{t2}, s{sR}, 10240
s_add_u32 s{t2}, s{t2}, {WS_KV}
v_lshl_add_u32 v{vKs}, v0, 4, s{t2}
v_add_u32 v{vKs+1}, 5120, v{vKs}
''')
a.wait_vm('kv1')
for ks in range(6, 12):
    dma_step(ks, ks - 6, W1S, 'w1')
kv_compute(vKV1)
a.wait_vm('x20')
a('s_cmp_eq_u32 %s, 3' % sr(sWave))
a('s_cbranch_scc1 L_cp_w3')
a(f'''
s_mul_i32 s{t2}, s{sWave}, {T4SZ}
s_add_u32 s{t2}, s{t2}, {L_T4}
v_lshl_add_u32 v{t0}, v{vLane}, 4, s{t2}
''')
for n in [16] + list(range(16)):
    q = vH4 + 4 * n
    a('v_alignbit_b32 %s, %s, %s, 16' % (vr(q + 3), vr(q + 2), vr(q + 1)))
    a('v_alignbit_b32 %s, %s, %s, 16' % (vr(q + 2), vr(q + 1), vr(q)))
    a('ds_write_b128 %s, %s offset:%d' % (vr(t0), vr(q, 4), 0 if n == 16 else 128 + 1024 * n))
a('s_branch L_cp_done')
a.label('L_cp_w3')
a.cond = True
a(f'''
v_add_u32 v{vKs}, 1024, v{vKs}
v_add_u32 v{vKs+1}, 1024, v{vKs+1}
''')
kv_compute(vKV2)
a.cond = False
a.label('L_cp_done')
a.wait_vm(('w1', 11))
for ks in range(6, 12):
    tr_step(ks, ks - 6, 512)
a('s_waitcnt vmcnt(0) lgkmcnt(0)')
for ks in range(12, 16):
    dma_step(ks, ks - 12, W1S, 'w1')
a('s_barrier')
a('s_cmp_eq_u32 %s, 0' % sr(sWave))
a('s_cbranch_scc0 L_nokvflag')
a.cond = True
a(f'''
s_lshl_b32 s{t2}, s{sR}, 5
s_add_u32 s{t2}, s{t2}, {WS_FKV}
''')
flag(t2)
a.cond = False
a.label('L_nokvflag')
a('s_cmp_eq_u32 %s, 0' % sr(sAct))
a('s_cbranch_scc1 L_conv')
a(f'''
s_lshl_b32 s{t2}, s{sFT}, 7
v_lshl_add_u32 v{t0}, v{vG}, 3, s{t2}
''')
for n in range(4):
    a('global_load_dwordx2 %s, %s, %s offset:%d' % (vr(vB1 + 2 * n, 2), vr(t0), sr(sB1, 2), 32 * n), tag='b1')
a(f'''
v_mul_u32_u24 v{t0}, 10240, v{vG}
v_lshl_add_u32 v{t0}, v{vU}, 4, v{t0}
s_mul_i32 s{t2}, s{sWave}, {64*10240}
s_lshl_b32 s{t3}, s{sDT}, 10
s_add_u32 s{t2}, s{t2}, s{t3}
s_add_u32 s{t2}, s{t2}, {WS_HT8}
''')
for st in range(4):
    a(f'''
    s_add_u32 s{t3}, s{sWave}, {st+1}
    s_and_b32 s{t3}, s{t3}, 3
    s_lshl_b32 s{t3}, s{t3}, 8
    s_add_u32 s{t3}, s{t3}, s{t2}
    v_add_u32 v{vHo+st}, s{t3}, v{t0}
    ''')
a(f'''
s_add_u32 s{t2}, s{sRing}, {3*4096}
v_lshl_add_u32 v{vXa+3}, v{vLane}, 4, s{t2}
''')
for st in range(3):
    a(f'''
    s_add_u32 s{t3}, s{sWave}, {3-st}
    s_and_b32 s{t3}, s{t3}, 3
    s_mul_i32 s{t3}, s{t3}, {RINGW}
    s_add_u32 s{t3}, s{t3}, {(3+st)*4096}
    v_lshl_add_u32 v{vXa+st}, v{vLane}, 4, s{t3}
    ''')
a(f'''
s_and_b32 s{t2}, s{sDT}, 3
s_lshl_b32 s{t2}, s{t2}, 13
s_add_u32 s{t2}, s{t2}, {WS_FH}
v_lshl_add_u32 v{vPo}, v0, 5, s{t2}
''')
a.wait_vm(('w1', 15))
for ks in range(12, 16):
    tr_step(ks, ks - 12, 512)
stamp()
poll('L_pollh', vPo)
stamp()
WIN = 40
vWin = 96
vAc = 64


def hload(F):
    st, ks = divmod(F, 16)
    a('buffer_load_dwordx4 %s, %s, %s, %s offen sc1' % (
        vr(vWin + 4 * (F % WIN), 4), vr(vHo + st), sr(rWS, 4), sr(sKS + ks)), tag=('h', F))


for F in range(WIN):
    hload(F)
a('s_waitcnt lgkmcnt(0)')
vPt = vWin + 4 * 24
vBf = vWin + 4 * 36
side = []
for F in range(64):
    st, ks = divmod(F, 16)
    a.wait_vm(('h', F))
    acc = vAc + 16 * (st & 1)
    for n in range(4):
        d = vr(acc + 4 * n, 4)
        a('v_mfma_f32_16x16x32_bf16 %s, %s, %s, %s' % (
            d, ar(16 * ks + 4 * n, 4), vr(vWin + 4 * (F % WIN), 4), '0' if ks == 0 else d))
        for _ in range(2):
            if side:
                a(side.pop(0))
    if F + WIN < 64:
        hload(F + WIN)
    if st > 0 and ks == 1:
        pa = vAc + 16 * ((st - 1) & 1)
        for n in range(4):
            a('ds_write_b128 %s, %s offset:%d' % (vr(vXa + 3), vr(pa + 4 * n, 4), 4096 * (st - 1) + 1024 * n))
    if st == 3 and ks == 3:
        a('s_waitcnt lgkmcnt(0)')
        a('s_barrier')
        for s2 in range(3):
            for n in range(4):
                a('ds_read_b128 %s, %s offset:%d' % (vr(vPt + 16 * s2 + 4 * n, 4), vr(vXa + s2), 1024 * n))
        for i in range(8):
            side.append('v_lshlrev_b32 %s, 16, %s' % (vr(vBf + 2 * i), vr(vB1 + i)))
            side.append('v_and_b32 %s, 0xffff0000, %s' % (vr(vBf + 2 * i + 1), vr(vB1 + i)))
    if st == 3 and ks == 6:
        assert not side
        a('s_waitcnt lgkmcnt(0)')
        for s2 in range(3):
            for i in range(16):
                side.append('v_add_f32 %s, %s, %s' % (vr(vBf + i), vr(vBf + i), vr(vPt + 16 * s2 + i)))
assert not side
stamp()
acc = vAc + 16
C0 = -2.0 * 0.7978845608028654 * 1.4426950408889634
C1 = C0 * 0.044715
import struct
f2u = lambda x: struct.unpack('<I', struct.pack('<f', x))[0]
a(f'''
s_mul_i32 s{t2}, s{sFT}, 80
s_lshl_b32 s{t3}, s{sDT}, 2
s_add_u32 s{t2}, s{t2}, s{t3}
s_add_u32 s{t2}, s{t2}, s{sWave}
s_lshl_b32 s{t2}, s{t2}, 10
s_add_u32 s{t2}, s{t2}, {WS_UF}
v_lshl_add_u32 v{t0}, v{vLane}, 4, s{t2}
s_mov_b32 s{sT0}, 0x{f2u(C1):08x}
s_mov_b32 s{sT1}, 0x{f2u(C1):08x}
v_mov_b32 v{vPoll}, 0x{f2u(C0):08x}
v_mov_b32 v{vPoll+1}, 0x{f2u(C0):08x}
''')
vE = vPt
for p in range(2):
    rng = range(4 * p, 4 * p + 4)
    for i in rng:
        a('v_pk_add_f32 %s, %s, %s' % (vr(vBf + 2 * i, 2), vr(vBf + 2 * i, 2), vr(acc + 2 * i, 2)))
    for i in rng:
        a('v_pk_mul_f32 %s, %s, %s' % (vr(vE + 2 * i, 2), vr(vBf + 2 * i, 2), vr(vBf + 2 * i, 2)))
    for i in rng:
        a('v_pk_fma_f32 %s, %s, %s, %s' % (vr(vE + 2 * i, 2), vr(vE + 2 * i, 2), sr(sT0, 2), vr(vPoll, 2)))
    for i in rng:
        a('v_pk_mul_f32 %s, %s, %s' % (vr(vE + 2 * i, 2), vr(vE + 2 * i, 2), vr(vBf + 2 * i, 2)))
    for i in range(8 * p, 8 * p + 8):
        a('v_exp_f32 %s, %s' % (vr(vE + i), vr(vE + i)))
    for i in rng:
        a('v_pk_add_f32 %s, %s, 1.0 op_sel_hi:[1,0]' % (vr(vE + 2 * i, 2), vr(vE + 2 * i, 2)))
    for i in range(8 * p, 8 * p + 8):
        a('v_rcp_f32 %s, %s' % (vr(vE + i), vr(vE + i)))
    for i in rng:
        a('v_pk_mul_f32 %s, %s, %s' % (vr(vE + 2 * i, 2), vr(vE + 2 * i, 2), vr(vBf + 2 * i, 2)))
    for i in rng:
        a('v_cvt_pk_bf16_f32 %s, %s, %s' % (vr(vE + 16 + i), vr(vE + 2 * i), vr(vE + 2 * i + 1)))
    a('buffer_store_dwordx4 %s, %s, %s, %s offen sc1' % (vr(vE + 16 + 4 * p, 4), vr(t0), sr(rWS, 4), sr(sKS + p)),
      tag='ust')
a(f'''
s_lshl_b32 s{t2}, s{sDT}, 2
s_add_u32 s{t2}, s{t2}, s{sWave}
s_mul_i32 s{t2}, s{t2}, 24
s_add_u32 s{t2}, s{t2}, s{sFT}
s_lshl_b32 s{t2}, s{t2}, 5
s_add_u32 s{t2}, s{t2}, {WS_FU}
s_waitcnt vmcnt(0)
''')
flag(t2)
a.label('L_conv')
a.vm = []
stamp()
a(f'''
v_lshlrev_b32 v{vPo}, 5, v0
v_add_u32 v{vPo}, {WS_FKV}, v{vPo}
''')
poll('L_pollkv', vPo)
vXl = 96
a(f'''
v_lshrrev_b32 v{t0}, 2, v{vLane}
v_and_b32 v{t1}, 3, v{vLane}
v_mul_u32_u24 v{t4}, 10240, v{t0}
v_lshl_add_u32 v{t4}, v{t1}, 4, v{t4}
s_mul_i32 s{t2}, s{sWave}, {64*10240}
s_lshl_b32 s{t3}, s{sP0}, 4
s_add_u32 s{t2}, s{t2}, s{t3}
s_add_u32 s{t2}, s{t2}, {WS_KV}
v_add_u32 v{t4}, s{t2}, v{t4}
v_cmp_gt_u32 vcc, s{sNCH}, v{t1}
v_mov_b32 v{vPo}, {OOB}
v_cndmask_b32 v{t4}, v{vPo}, v{t4}, vcc
''')
for m in range(4):
    a('buffer_load_dwordx4 %s, %s, %s, %s offen sc1' % (vr(vXl + 4 * m, 4), vr(t4), sr(rWS, 4), sr(sKS + 4 * m)),
      tag='xl')
a(f'''
v_mul_u32_u24 v{t1}, {XSZ}, v{t1}
v_lshl_add_u32 v{t1}, v{t0}, 4, v{t1}
s_lshl_b32 s{t2}, s{sWave}, 10
s_add_u32 s{t2}, s{t2}, {L_X+512}
v_add_u32 v{vMisc}, s{t2}, v{t1}
s_mov_b32 s{rW}, s{sW2}
s_and_b32 s{rW+1}, s{sW2+1}, 0xffff
s_mov_b32 s{rW+2}, {1536*4096}
v_lshrrev_b32 v{t0}, 3, v{vLane}
v_lshlrev_b32 v{t0}, 12, v{t0}
s_mul_i32 s{t2}, s{sWave}, {384*4096}
s_lshl_b32 s{t3}, s{sST2}, 7
s_add_u32 s{t2}, s{t2}, s{t3}
v_add_u32 v{t0}, s{t2}, v{t0}
v_and_b32 v{t1}, 7, v{vLane}
v_lshlrev_b32 v{t4}, 1, v{vG}
v_xor_b32 v{t1}, v{t1}, v{t4}
v_lshl_add_u32 v{vWo}, v{t1}, 4, v{t0}
v_add_u32 v{vWo+1}, {32768-1024}, v{vWo}
v_add_u32 v{vWo+2}, {2*(32768-1024)}, v{vWo}
v_add_u32 v{vWo+3}, {3*(32768-1024)}, v{vWo}
''')
W2S = 32 * 4096
for ks in range(3):
    dma_step(ks, ks, W2S, 'w2')
a(f'''
v_lshrrev_b32 v{t0}, 2, v{vLane}
v_lshlrev_b32 v{t0}, 7, v{t0}
v_and_b32 v{t1}, 3, v{vU}
v_lshl_add_u32 v{t0}, v{t1}, 3, v{t0}
v_bfe_u32 v{t1}, v{vLane}, 3, 2
''')
for n in range(4):
    a(f'''
    s_add_u32 s{t2}, s{sWave}, {n}
    s_and_b32 s{t2}, s{t2}, 3
    v_xor_b32 v{t4}, s{t2}, v{t1}
    v_lshl_add_u32 v{t4}, v{t4}, 5, v{t0}
    v_add_u32 v{vTr+n}, s{sRing}, v{t4}
    ''')
vA, vBa, vAD = vMisc + 1, vMisc + 2, 52
a(f'''
s_mul_i32 s{t2}, s{sWave}, {XSZ}
s_add_u32 s{t2}, s{t2}, {L_X}
v_lshl_add_u32 v{t0}, v{vLane}, 3, s{t2}
v_mov_b32 v{vPoll}, 0
v_mov_b32 v{vPoll+1}, 0
ds_write_b64 v{t0}, v[{vPoll}:{vPoll+1}]
s_add_u32 s{t2}, s{t2}, {480-128}
v_lshl_add_u32 v{t0}, v{vU}, 5, s{t2}
v_lshl_add_u32 v{vBa}, v{vG}, 4, v{t0}
s_mul_i32 s{t2}, s{sWave}, {T4SZ}
s_add_u32 s{t2}, s{t2}, {L_T4+200}
v_lshl_add_u32 v{t0}, v{vU}, 3, s{t2}
v_lshlrev_b32 v{t1}, 6, v{vG}
v_sub_u32 v{vA}, v{t0}, v{t1}
v_lshlrev_b32 v{t0}, 3, v{vG}
v_sub_u32 v{t0}, v{t0}, v{vU}
v_subrev_u32 v{t0}, 9, v{t0}
v_and_b32 v{t1}, 1, v{t0}
v_lshlrev_b32 v{t1}, 4, v{t1}
v_lshlrev_b32 v{t1}, v{t1}, v{vD}
v_ashrrev_i32 v{t0}, 1, v{t0}
''')
for jj in range(4):
    a(f'''
    v_cmp_eq_u32 vcc, {jj}, v{t0}
    v_cndmask_b32 v{vAD+jj}, 0, v{t1}, vcc
    ''')
a.wait_vm('xl')
a('s_mov_b32 exec_lo, 0x77777777')
a('s_mov_b32 exec_hi, 0x77777777')
for m in range(4):
    a('ds_write_b128 %s, %s offset:%d' % (vr(vMisc), vr(vXl + 4 * m, 4), 256 * m))
a('s_mov_b64 exec, -1')
a('s_waitcnt lgkmcnt(0)')
a('s_barrier')
for ks in range(3, 6):
    dma_step(ks, ks, W2S, 'w2')
a('s_cmp_lt_u32 %s, %s' % (sr(sWave), sr(sNCH)))
a('s_cbranch_scc0 L_conv_done')
a.cond = True
vBuf = [96, 160]
vY = 224


def conv_loads(buf, e):
    L = []
    for r in range(8):
        L.append('ds_read_b128 %s, %s offset:%d' % (vr(vBuf[buf] + 32 + 4 * r, 4), vr(vBa), 128 - 64 * e + 512 * r))
        L.append('ds_read_b64 %s, %s offset:%d' % (vr(vBuf[buf] + 4 * r, 2), vr(vA), 256 * e + 2048 * r))
        L.append('ds_read_b64 %s, %s offset:%d' % (vr(vBuf[buf] + 4 * r + 2, 2), vr(vA), 256 * e + 2048 * r + 32))
    return L


def conv_mfmas(buf, loads):
    for r in range(8):
        for q in range(r, 8):
            d = vr(vY + 4 * q, 4)
            a('v_mfma_f32_16x16x32_bf16 %s, %s, %s, %s' % (
                d, vr(vBuf[buf] + 4 * r, 4), vr(vBuf[buf] + 32 + 4 * (q - r), 4), d))
            if loads:
                a(loads.pop(0))
    assert not loads


for l in conv_loads(0, 0):
    a(l)
a('s_mov_b32 %s, 0' % sr(sSpin))
a('s_waitcnt lgkmcnt(0)')
for q in range(8):
    a('v_mfma_f32_16x16x32_bf16 %s, %s, %s, 0' % (vr(vY + 4 * q, 4), vr(vAD, 4), vr(vBuf[0] + 32 + 4 * q, 4)))
a.label('L_convloop')
conv_mfmas(0, conv_loads(1, 1))
a('s_waitcnt lgkmcnt(0)')
conv_mfmas(1, conv_loads(0, 2))
a(f'''
v_add_u32 v{vA}, 512, v{vA}
v_subrev_u32 v{vBa}, 128, v{vBa}
s_add_u32 s{sSpin}, s{sSpin}, 1
s_cmp_lt_u32 s{sSpin}, 4
s_waitcnt lgkmcnt(0)
s_cbranch_scc1 L_convloop
''')
a(f'''
s_lshl_b32 s{t2}, s{sCH}, 12
s_add_u32 s{t2}, s{t2}, {WS_YT}
v_lshl_add_u32 v{t0}, v{vU}, 5, s{t2}
v_and_b32 v{t1}, 1, v{vG}
v_lshl_add_u32 v{t0}, v{t1}, 9, v{t0}
v_lshrrev_b32 v{t1}, 1, v{vG}
v_lshl_add_u32 v{t0}, v{t1}, 4, v{t0}
''')
for qq in range(4):
    o = 96 + 4 * qq
    for h in range(4):
        a('v_cvt_pk_bf16_f32 %s, %s, %s' % (vr(o + h), vr(vY + 8 * qq + 2 * h), vr(vY + 8 * qq + 2 * h + 1)))
    a('v_permlane16_swap_b32 %s, %s' % (vr(o), vr(o + 2)))
    a('v_permlane16_swap_b32 %s, %s' % (vr(o + 1), vr(o + 3)))
    a('buffer_store_dwordx4 %s, %s, %s, 0 offen offset:%d sc1' % (vr(o, 4), vr(t0), sr(rWS, 4), 1024 * qq), tag='yst')
a.cond = False
a.label('L_conv_done')
stamp()
a.wait_vm(('w2', 5))
for ks in range(6):
    tr_step(ks, ks, 2048)
a('s_waitcnt vmcnt(0) lgkmcnt(0)')
a('s_cmp_lt_u32 %s, %s' % (sr(sWave), sr(sNCH)))
a('s_cbranch_scc0 L_noyflag')
a.cond = True
a(f'''
s_lshl_b32 s{t2}, s{sCH}, 5
s_add_u32 s{t2}, s{t2}, {WS_FY}
''')
flag(t2)
a.cond = False
a.label('L_noyflag')
for ks in range(6, 12):
    dma_step(ks, ks - 6, W2S, 'w2')
vOo, vB2, vGt = vMisc, vMisc + 1, vMisc + 2
vQe = 26
a(f'''
s_lshl_b32 s{t2}, s{sST2}, 2
s_add_u32 s{t2}, s{t2}, s{sWave}
s_lshl_b32 s{t2}, s{t2}, 4
v_add_u32 v{t0}, s{t2}, v{vU}
v_mul_u32_u24 v{vOo}, 1280, v{t0}
s_mul_i32 s{t3}, s{sDT2}, 160
v_lshl_add_u32 v{t1}, v{vG}, 3, s{t3}
v_add_u32 v{vOo}, v{vOo}, v{t1}
v_lshlrev_b32 v{t1}, 1, v{t0}
v_lshlrev_b32 v{vGt}, 2, v{t0}
v_add_u32 v{vGt}, {WS_G}, v{vGt}
''')
for i in range(5):
    a('global_load_dwordx2 %s, %s, %s offset:%d' % (vr(vQe + 2 * i, 2), vr(vOo), sr(sQ, 2), 32 * i), tag='qe')
a('global_load_ushort %s, %s, %s' % (vr(vB2), vr(t1), sr(sB2, 2)), tag='qe')
a(f'''
s_mul_i32 s{t2}, s{sWave}, {12*40960}
s_mul_i32 s{t3}, s{sDT2}, 5120
s_add_u32 s{t2}, s{t2}, s{t3}
s_add_u32 s{t2}, s{t2}, {WS_UF}
v_lshl_add_u32 v{vHo}, v{vLane}, 4, s{t2}
v_add_u32 v{vHo+1}, 4096, v{vHo}
v_min_u32 v{t0}, 29, v{vLane}
v_mul_u32_u24 v{t1}, 43, v{t0}
v_lshrrev_b32 v{t1}, 8, v{t1}
v_mul_u32_u24 v{t1}, 18, v{t1}
v_add_u32 v{t0}, v{t0}, v{t1}
s_mul_i32 s{t2}, s{sDT2}, 120
s_mul_i32 s{t3}, s{sWave}, 6
s_add_u32 s{t2}, s{t2}, s{t3}
s_lshl_b32 s{t2}, s{t2}, 5
s_add_u32 s{t2}, s{t2}, {WS_FU}
v_lshl_add_u32 v{vPo}, v{t0}, 5, s{t2}
v_lshl_add_u32 v{vXa}, v{vLane}, 4, s{sRing}
''')
for n in range(1, 4):
    a(f'''
    s_add_u32 s{t3}, s{sWave}, {4-n}
    s_and_b32 s{t3}, s{t3}, 3
    s_mul_i32 s{t3}, s{t3}, {RINGW}
    s_add_u32 s{t3}, s{t3}, {(n-1)*1024}
    v_lshl_add_u32 v{vXa+n}, v{vLane}, 4, s{t3}
    ''')
a.wait_vm(('w2', 11))
for ks in range(6, 12):
    tr_step(ks, ks - 6, 2048)
poll('L_pollu', vPo)
stamp()
vOwn, vOth = 52, 72


def uload(F):
    st, ks = divmod(F, 12)
    a('buffer_load_dwordx4 %s, %s, %s, %s offen offset:%d sc1' % (
        vr(vWin + 4 * (F % WIN), 4), vr(vHo + st // 4), sr(rWS, 4), sr(sKS + ks), 1024 * (st % 4)), tag=('u', F))


def xwrite(st):
    for n in range(1, 4):
        a('ds_write_b128 %s, %s offset:%d' % (
            vr(vXa), vr(vOth + 12 * (st & 1) + 4 * (n - 1), 4), 3072 * st + 1024 * (n - 1)))


for F in range(WIN):
    uload(F)
a('s_waitcnt lgkmcnt(0)')
for F in range(60):
    st, ks = divmod(F, 12)
    a.wait_vm(('u', F))
    for n in range(4):
        d = vr(vOwn + 4 * st, 4) if n == 0 else vr(vOth + 12 * (st & 1) + 4 * (n - 1), 4)
        a('v_mfma_f32_16x16x32_bf16 %s, %s, %s, %s' % (
            d, vr(vWin + 4 * (F % WIN), 4), ar(16 * ks + 4 * n, 4), '0' if ks == 0 else d))
    if F + WIN < 60:
        uload(F + WIN)
    if st > 0 and ks == 1:
        xwrite(st - 1)
stamp()
vYl = 96
a(f'''
v_lshrrev_b32 v{t0}, 3, v0
s_mul_i32 s{t2}, s{sDT2}, 80
v_and_b32 v{t1}, 7, v{vLane}
v_lshrrev_b32 v{t4}, 3, v{vLane}
v_min_u32 v{t4}, 2, v{t4}
v_lshl_add_u32 v{t4}, v{t4}, 5, v{t1}
s_lshl_b32 s{t3}, s{sWave}, 3
v_add_u32 v{t4}, s{t3}, v{t4}
v_min_u32 v{t4}, 79, v{t4}
v_add_u32 v{t4}, s{t2}, v{t4}
v_lshlrev_b32 v{t4}, 5, v{t4}
v_add_u32 v{vPo}, {WS_FY}, v{t4}
''')
xwrite(4)
poll('L_polly', vPo)
a(f'''
v_add_u32 v{t0}, s{t2}, v{t0}
v_lshlrev_b32 v{t0}, 12, v{t0}
v_lshlrev_b32 v{t4}, 1, v{vG}
v_xor_b32 v{t1}, v{t1}, v{t4}
v_lshl_add_u32 v{t0}, v{t1}, 4, v{t0}
s_lshl_b32 s{t3}, s{sST2}, 7
s_add_u32 s{t3}, s{t3}, {WS_YT}
v_add_u32 v{t0}, s{t3}, v{t0}
v_add_u32 v{t1}, {32*4096}, v{t0}
s_cmp_lt_u32 s{sWave}, 2
s_cselect_b32 s{t3}, {64*4096}, s{sOOB}
v_add_u32 v{t4}, s{t3}, v{t0}
''')
for m, vo in enumerate((t0, t1, t4)):
    a('buffer_load_dwordx4 %s, %s, %s, 0 offen sc1' % (vr(vYl + 4 * m, 4), vr(vo), sr(rWS, 4)), tag='yl')
a('buffer_load_dword %s, %s, %s, 0 offen sc1' % (vr(vGt), vr(vGt), sr(rWS, 4)), tag='yl')
vYr = vMisc + 3
a(f'''
v_bfe_u32 v{t0}, v{vLane}, 2, 3
v_lshlrev_b32 v{t0}, 7, v{t0}
v_and_b32 v{t1}, 3, v{vU}
v_lshl_add_u32 v{t0}, v{t1}, 3, v{t0}
v_bfe_u32 v{t1}, v{vLane}, 3, 2
v_xor_b32 v{t1}, s{sWave}, v{t1}
v_lshl_add_u32 v{t0}, v{t1}, 5, v{t0}
v_lshrrev_b32 v{t1}, 1, v{vG}
v_mul_u32_u24 v{t1}, {RINGW}, v{t1}
v_add_u32 v{t0}, v{t0}, v{t1}
v_add_u32 v{vYr}, 16384, v{t0}
''')
a('s_waitcnt vmcnt(0)')
for m in range(3):
    a('ds_write_b128 %s, %s offset:%d' % (vr(vXa), vr(vYl + 4 * m, 4), 16384 + 1024 * m))
a('s_waitcnt lgkmcnt(0)')
a('s_barrier')
vPp = 112
vYt = 176
vTm = 192
vOg, vT0 = vMisc + 4, vMisc + 6
a(f'''
v_sub_f32 v{vOg}, 1.0, v{vGt}
v_lshlrev_b32 v{vB2}, 16, v{vB2}
v_mul_f32 v{vT0}, v{vOg}, v{vB2}
''')
for i in range(5):
    a('ds_read_b64_tr_b16 %s, %s offset:%d' % (vr(vYt + 2 * i, 2), vr(vYr), RINGW * ((2 * i) % 4) + 1024 * (i // 2)))
    for n in range(1, 4):
        a('ds_read_b128 %s, %s offset:%d' % (vr(vPp + 12 * i + 4 * (n - 1), 4), vr(vXa + n), 3072 * i))
for i in range(5):
    a('s_waitcnt lgkmcnt(%d)' % min(4 * (4 - i), 12))
    tq, ty = vTm + 8 * i, vTm + 8 * i + 4
    for h in range(2):
        a('v_lshlrev_b32 %s, 16, %s' % (vr(tq + 2 * h), vr(vQe + 2 * i + h)))
        a('v_and_b32 %s, 0xffff0000, %s' % (vr(tq + 2 * h + 1), vr(vQe + 2 * i + h)))
        a('v_lshlrev_b32 %s, 16, %s' % (vr(ty + 2 * h), vr(vYt + 2 * i + h)))
        a('v_and_b32 %s, 0xffff0000, %s' % (vr(ty + 2 * h + 1), vr(vYt + 2 * i + h)))
    for h in range(2):
        o = vOwn + 4 * i + 2 * h
        for n in range(3):
            a('v_pk_add_f32 %s, %s, %s' % (vr(o, 2), vr(o, 2), vr(vPp + 12 * i + 4 * n + 2 * h, 2)))
        a('v_pk_mul_f32 %s, %s, %s' % (vr(tq + 2 * h, 2), vr(tq + 2 * h, 2), vr(ty + 2 * h, 2)))
        a('v_pk_fma_f32 %s, %s, %s, %s op_sel_hi:[1,0,0]' % (
            vr(tq + 2 * h, 2), vr(tq + 2 * h, 2), vr(vGt, 2), vr(vT0, 2)))
        a('v_pk_fma_f32 %s, %s, %s, %s op_sel_hi:[1,0,1]' % (vr(o, 2), vr(o, 2), vr(vOg, 2), vr(tq + 2 * h, 2)))
        a('v_cvt_pk_bf16_f32 %s, %s, %s' % (vr(ty + h), vr(o), vr(o + 1)))
    a('global_store_dwordx2 %s, %s, %s offset:%d' % (vr(vOo), vr(ty, 2), sr(sOUT, 2), 32 * i))
a('s_add_u32 %s, s2, %s' % (sr(t2), sr(sWave)))
a('s_cmp_eq_u32 %s, 0' % sr(t2))
a('s_cbranch_scc0 L_noepoch')
flag(t2)
a.label('L_noepoch')
if STAMPS:
    a('s_waitcnt vmcnt(0)')
    stamp()
    a(f'''
    s_lshl_b32 s{sT0}, s2, 2
    s_add_u32 s{sT0}, s{sT0}, s{sWave}
    s_lshl_b32 s{sT0}, s{sT0}, 7
    s_add_u32 s{sT0}, s{sT0}, {WS_ST}
    s_mov_b64 exec, 1
    ''')
    for i in range(nstamp[0]):
        a('v_mov_b32 v10, %s' % sr(sStamp + i))
        a('buffer_store_dword v10, off, %s, %s offset:%d' % (sr(rWS, 4), sr(sT0), 4 * i))
a.label('L_end')
a('s_endpgm')

hdr = open('cdna_kernels/%s.s.ref' % NAME).read().split('; Override launch')[0]
txt = hdr + f'''; @launch grid=(256,1,1) block=(256,1,1) lds={LDS_BYTES}
.amdgcn_target "amdgcn-amd-amdhsa--gfx950"
.text
.globl {NAME}_kernel
.p2align 8
.type {NAME}_kernel,@function
{NAME}_kernel:
''' + a.text() + f'''.section .rodata,"a"
.p2align 6
.amdhsa_kernel {NAME}_kernel
  .amdhsa_next_free_vgpr 512
  .amdhsa_next_free_sgpr 102
  .amdhsa_accum_offset 256
  .amdhsa_group_segment_fixed_size 0
  .amdhsa_kernarg_size 120
  .amdhsa_user_sgpr_count 2
  .amdhsa_user_sgpr_kernarg_segment_ptr 1
  .amdhsa_system_sgpr_workgroup_id_x 1
.end_amdhsa_kernel
'''
open(OUT, 'w').write(txt)
print('wrote', OUT, 'lines', len(a.out), 'nops', a.nops, 'stamps', nstamp[0])
```

```python
import sys
from asmlib import Asm, vr, ar, sr

NAME = 'gated_mix__ssm_conv_h3__mixer_token_mlp__prompt'
STAMPS = '--stamps' in sys.argv
OUT = [x for x in sys.argv[1:] if not x.startswith('--')][0]
PROBE = [int(x[8:]) for x in sys.argv if x.startswith('--probe=')]
if PROBE:
    STAMPS = True

WS_EPOCH = 0
WS_FH = 0x1000
WS_FKV = 0x9000
WS_FU = 0xB000
WS_FY = 0x13000
WS_G = 0x18000
WS_ST = 0x20000
WS_HT8 = 0x40000
WS_KV = 0x2C0000
WS_UF = 0x540000
WS_YT = 0x720000
WS_END = 0x9A0000
OOB = 0x7ff00000
RINGW = 24576
L_T4 = 98304
T4SZ = 16512
L_X = 147840
XSZ = 4608
L_LN = L_X
LNROW = 1344
LDS_BYTES = 163840
SPIN_MAX = 200000

sQ, sK, sV, sSK, sHK, sD, sW1, sB1, sW2, sB2, sGW, sOUT, sWS = 4, 6, 8, 10, 12, 14, 18, 20, 22, 24, 26, 28, 30
rWS, rW, rK, rH = 32, 36, 40, 44
sN = 48
sWave, sR, sDT, sFT, sDT2, sST2, sP0, sNCH, sCH, sRing = 50, 51, 52, 53, 54, 55, 56, 57, 58, 59
sKS = 60
sT0, sT1, sSpin = 16, 17, 3
sWoff = 76
sAct = 77
sStamp = 78
sOOB = 94

a = Asm()
nstamp = [0]


def stamp():
    if STAMPS:
        i = nstamp[0]
        nstamp[0] += 1
        assert i < 16
        a('s_memrealtime s[100:101]')
        a('s_waitcnt lgkmcnt(0)')
        a('s_mov_b32 %s, s100' % sr(sStamp + i))


vLane, vG, vU, vN = 1, 2, 3, 4
vT = 6
vWo = 16
vTr = 20
vHo = 24
vB1 = 28
vPoll = 36
vPo = 38
vD = 39
vXa = 40
vMisc = 44


def poll(name, voff):
    a('s_mov_b32 %s, 0' % sr(sSpin))
    a.label(name)
    a('buffer_load_dwordx2 %s, %s, %s, 0 offen sc1' % (vr(vPoll, 2), vr(voff), sr(rWS, 4)))
    a('s_waitcnt vmcnt(0)')
    a('v_cmp_ne_u64 vcc, %s, %s' % (sr(sN, 2), vr(vPoll, 2)))
    a('s_add_u32 %s, %s, 1' % (sr(sSpin), sr(sSpin)))
    a('s_cbranch_vccz %s_ok' % name)
    a('s_cmp_lt_u32 %s, %d' % (sr(sSpin), SPIN_MAX))
    a('s_cbranch_scc1 %s' % name)
    a.label(name + '_ok')


def flag(soff):
    a('s_mov_b64 exec, 1')
    a('buffer_store_dwordx2 %s, off, %s, %s sc1' % (vr(vN, 2), sr(rWS, 4), sr(soff)), tag='flag')
    a('s_mov_b64 exec, -1')


def dma_step(ks, slot, stride, tag):
    a('s_add_u32 m0, %s, %d' % (sr(sRing), slot * 4096))
    a('s_mov_b32 %s, %d' % (sr(sWoff), ks * stride))
    for jj in range(4):
        a('buffer_load_dwordx4 %s, %s, %s offen offset:%d lds' % (vr(vWo + jj), sr(rW, 4), sr(sWoff), 1024 * jj),
          tag=(tag, ks))


def tr_step(ks, slot, hstride):
    for n in range(4):
        for hh in range(2):
            a('ds_read_b64_tr_b16 %s, %s offset:%d' % (
                ar(16 * ks + 4 * n + 2 * hh, 2), vr(vTr + n), slot * 4096 + hh * hstride))


def reduce32(v, tmp):
    for r in (8, 4, 2, 1):
        a('v_add_f32 %s, %s, %s row_ror:%d' % (vr(v), vr(v), vr(v), r))
    a('v_mov_b32 %s, %s' % (vr(tmp), vr(v)))
    a('v_permlane16_swap_b32 %s, %s' % (vr(v), vr(tmp)))
    a('v_add_f32 %s, %s, %s' % (vr(v), vr(v), vr(tmp)))


a('s_cmp_ge_u32 s2, 256')
a('s_cbranch_scc1 L_end')
a('s_load_dwordx16 s[4:19], s[0:1], 0')
a('s_load_dwordx8 s[20:27], s[0:1], 64')
a('s_load_dwordx2 s[28:29], s[0:1], 96')
a('s_load_dwordx2 s[30:31], s[0:1], 112')
a('v_lshrrev_b32 %s, 6, v0' % vr(vT))
a('v_and_b32 %s, 63, v0' % vr(vLane))
a('v_readfirstlane_b32 %s, %s' % (sr(sWave), vr(vT)))
a('v_lshrrev_b32 %s, 4, %s' % (vr(vG), vr(vLane)))
a('v_and_b32 %s, 15, %s' % (vr(vU), vr(vLane)))
sx, sj, t2, t3 = 96, 97, 98, 99
a(f'''
s_and_b32 s{sx}, s2, 7
s_lshr_b32 s{sj}, s2, 3
s_lshl_b32 s{sR}, s{sx}, 5
s_add_u32 s{sR}, s{sR}, s{sj}
s_mul_i32 s{t2}, s{sj}, 52
s_lshr_b32 s{t2}, s{t2}, 8
s_mul_i32 s{t3}, s{t2}, 5
s_sub_u32 s{sDT}, s{sj}, s{t3}
s_and_b32 s{t3}, s{sx}, 1
s_mul_i32 s{sDT2}, s{t3}, 4
s_mul_i32 s{t3}, s{t3}, 5
s_add_u32 s{sDT}, s{sDT}, s{t3}
s_lshr_b32 s{t3}, s{sx}, 1
s_mul_i32 s{sFT}, s{t3}, 6
s_add_u32 s{sFT}, s{sFT}, s{t2}
s_lshl_b32 s{sST2}, s{t3}, 3
s_lshr_b32 s{t3}, s{sj}, 2
s_add_u32 s{sST2}, s{sST2}, s{t3}
s_and_b32 s{t3}, s{sj}, 3
s_add_u32 s{sDT2}, s{sDT2}, s{t3}
s_cmp_lt_u32 s{sj}, 30
s_cselect_b32 s{sAct}, 1, 0
s_mul_i32 s{sP0}, s{sx}, 80
s_lshr_b32 s{t3}, s{sj}, 1
s_mul_i32 s{t3}, s{t3}, 5
s_add_u32 s{sP0}, s{sP0}, s{t3}
s_and_b32 s{t3}, s{sj}, 1
s_sub_u32 s{sNCH}, 3, s{t3}
s_mul_i32 s{t3}, s{t3}, 3
s_add_u32 s{sP0}, s{sP0}, s{t3}
s_mul_i32 s{sRing}, s{sWave}, {RINGW}
''')
a(f'''
s_cmp_lt_u32 s{sWave}, s{sNCH}
s_cselect_b32 s{t2}, s{sWave}, 0
s_add_u32 s{t2}, s{t2}, s{sP0}
s_lshl_b32 s{sCH}, s{t2}, 1
s_cmp_ge_u32 s{t2}, 320
s_cselect_b32 s{t3}, 639, 0
s_sub_u32 s{sCH}, s{sCH}, s{t3}
''')
for ks in range(16):
    a('s_mov_b32 %s, %d' % (sr(sKS + ks), 40960 * ks))
a('s_mov_b32 %s, %d' % (sr(sOOB), OOB))
if STAMPS:
    for i in range(16):
        a('s_mov_b32 %s, 0' % sr(sStamp + i))
vQo, vQo2, vL5, vRow = vT, vT + 1, vT + 2, vT + 3
a(f'''
v_and_b32 v{vL5}, 31, v0
v_lshrrev_b32 v{vRow}, 5, v0
s_lshl_b32 s{t2}, s{sR}, 3
v_add_u32 v{vQo2}, s{t2}, v{vRow}
v_mul_u32_u24 v{vQo2}, 1280, v{vQo2}
v_lshl_add_u32 v{vQo}, v{vL5}, 4, v{vQo2}
v_lshl_add_u32 v{vQo2}, v{vL5}, 3, v{vQo2}
''')
vQ = 52
vX = 64
vGWp = 84
a('s_waitcnt lgkmcnt(0)')
stamp()
a('global_load_dwordx4 %s, %s, %s' % (vr(vQ, 4), vr(vQo), sr(sQ, 2)), tag='q')
a('global_load_dwordx4 %s, %s, %s offset:512' % (vr(vQ + 4, 4), vr(vQo), sr(sQ, 2)), tag='q')
a('global_load_dwordx2 %s, %s, %s offset:1024' % (vr(vQ + 8, 2), vr(vQo2), sr(sQ, 2)), tag='q')
a('s_load_dwordx2 %s, %s, %d' % (sr(sN, 2), sr(sWS, 2), WS_EPOCH))
a(f'''
s_mov_b32 s{rWS}, s{sWS}
s_and_b32 s{rWS+1}, s{sWS+1}, 0xffff
s_mov_b32 s{rWS+2}, {WS_END}
s_mov_b32 s{rWS+3}, 0x20000
s_mov_b32 s{rW}, s{sW1}
s_and_b32 s{rW+1}, s{sW1+1}, 0xffff
s_mul_i32 s{rW+2}, s{sAct}, {2048*3072}
s_mov_b32 s{rW+3}, 0x20000
s_mov_b32 s{rK}, s{sK}
s_and_b32 s{rK+1}, s{sK+1}, 0xffff
s_mov_b32 s{rK+2}, {2048*1280}
s_mov_b32 s{rK+3}, 0x20000
s_lshl_b32 s{t2}, s{sCH}, 12
s_add_u32 s{rH}, s{sHK}, s{t2}
s_addc_u32 s{rH+1}, s{sHK+1}, 0
s_and_b32 s{rH+1}, s{rH+1}, 0xffff
s_cmp_lt_u32 s{sWave}, s{sNCH}
s_cselect_b32 s{rH+2}, 4096, 0
s_mov_b32 s{rH+3}, 0x20000
''')
t0, t1, t4 = vT + 4, vT + 5, vT + 6
a(f'''
v_lshrrev_b32 v{t0}, 3, v{vLane}
v_mul_u32_u24 v{t0}, 3072, v{t0}
s_mul_i32 s{t2}, s{sWave}, {512*3072}
s_lshl_b32 s{t3}, s{sFT}, 7
s_add_u32 s{t2}, s{t2}, s{t3}
v_add_u32 v{t0}, s{t2}, v{t0}
v_and_b32 v{t1}, 7, v{vLane}
v_and_b32 v{t4}, 1, v{vG}
v_lshlrev_b32 v{t4}, 1, v{t4}
v_xor_b32 v{t1}, v{t1}, v{t4}
v_xor_b32 v{t4}, 4, v{t1}
v_lshl_add_u32 v{vWo}, v{t1}, 4, v{t0}
v_lshl_add_u32 v{vWo+1}, v{t4}, 4, v{t0}
v_add_u32 v{vWo+2}, {2*(24576-1024)}, v{vWo}
v_add_u32 v{vWo+3}, {3*(24576-1024)}, v{vWo+1}
v_add_u32 v{vWo+1}, {24576-1024}, v{vWo+1}
''')
W1S = 32 * 3072
for ks in range(6):
    dma_step(ks, ks, W1S, 'w1')
a(f'''
v_lshrrev_b32 v{t0}, 2, v{vU}
v_lshl_add_u32 v{t0}, v{vG}, 3, v{t0}
v_lshlrev_b32 v{t0}, 7, v{t0}
v_and_b32 v{t1}, 3, v{vU}
v_lshl_add_u32 v{t0}, v{t1}, 3, v{t0}
v_add_u32 v{t0}, s{sRing}, v{t0}
v_lshrrev_b32 v{t1}, 3, v{vU}
v_and_b32 v{t4}, 1, v{vG}
v_lshl_add_u32 v{t1}, v{t4}, 1, v{t1}
''')
for n in range(4):
    a(f'''
    v_xor_b32 v{t4}, {n}, v{t1}
    v_lshl_add_u32 v{vTr+n}, v{t4}, 5, v{t0}
    ''')
vLw, vLw2, vLr, vHs, vHs1, vHs2 = vMisc, vMisc + 1, vMisc + 2, vMisc + 3, vMisc + 4, vMisc + 5
a(f'''
v_mul_u32_u24 v{vLw2}, {LNROW}, v{vRow}
v_add_u32 v{vLw2}, {L_LN}, v{vLw2}
v_lshl_add_u32 v{vLw}, v{vL5}, 4, v{vLw2}
v_lshl_add_u32 v{vLw2}, v{vL5}, 3, v{vLw2}
v_lshrrev_b32 v{t0}, 2, v{vU}
v_mul_u32_u24 v{t0}, {LNROW}, v{t0}
v_and_b32 v{t1}, 3, v{vU}
v_lshl_add_u32 v{t0}, v{t1}, 3, v{t0}
v_lshl_add_u32 v{t0}, v{vG}, 5, v{t0}
s_lshl_b32 s{t2}, s{sWave}, 7
s_add_u32 s{t2}, s{t2}, {L_LN}
v_add_u32 v{vLr}, s{t2}, v{t0}
s_mul_i32 s{t2}, s{sR}, 10240
s_add_u32 s{t2}, s{t2}, {WS_HT8}
v_lshl_add_u32 v{vHs}, v0, 4, s{t2}
v_add_u32 v{vHs1}, 4096, v{vHs}
s_cmp_lt_u32 s{sWave}, 2
s_cselect_b32 s{t2}, 8192, s{sOOB}
v_add_u32 v{vHs2}, s{t2}, v{vHs}
''')
a.wait_vm('q')
stamp()
for i in range(10):
    a('v_lshlrev_b32 %s, 16, %s' % (vr(vX + 2 * i), vr(vQ + i)))
    a('v_and_b32 %s, 0xffff0000, %s' % (vr(vX + 2 * i + 1), vr(vQ + i)))
vS = vT + 4
a('v_pk_add_f32 %s, %s, %s' % (vr(vS, 2), vr(vX, 2), vr(vX + 2, 2)))
a('v_pk_add_f32 %s, %s, %s' % (vr(vS + 2, 2), vr(vX + 4, 2), vr(vX + 6, 2)))
for i in range(4, 10):
    d = vS + 2 * (i & 1)
    a('v_pk_add_f32 %s, %s, %s' % (vr(d, 2), vr(d, 2), vr(vX + 2 * i, 2)))
a('v_pk_add_f32 %s, %s, %s' % (vr(vS, 2), vr(vS, 2), vr(vS + 2, 2)))
a('v_add_f32 %s, %s, %s' % (vr(vS), vr(vS), vr(vS + 1)))
reduce32(vS, vS + 1)
a('v_mul_f32 %s, 0x%08x, %s' % (vr(vS), 0xbacccccd, vr(vS)))
for i in range(10):
    a('v_pk_add_f32 %s, %s, %s op_sel_hi:[1,0]' % (vr(vX + 2 * i, 2), vr(vX + 2 * i, 2), vr(vS, 2)))
a('v_pk_mul_f32 %s, %s, %s' % (vr(vS, 2), vr(vX, 2), vr(vX, 2)))
a('v_pk_mul_f32 %s, %s, %s' % (vr(vS + 2, 2), vr(vX + 2, 2), vr(vX + 2, 2)))
for i in range(2, 10):
    d = vS + 2 * (i & 1)
    a('v_pk_fma_f32 %s, %s, %s, %s' % (vr(d, 2), vr(vX + 2 * i, 2), vr(vX + 2 * i, 2), vr(d, 2)))
a('v_pk_add_f32 %s, %s, %s' % (vr(vS, 2), vr(vS, 2), vr(vS + 2, 2)))
a('v_add_f32 %s, %s, %s' % (vr(vS), vr(vS), vr(vS + 1)))
reduce32(vS, vS + 1)
a('v_mov_b32 %s, 0x3727c5ac' % vr(vS + 1))
a('v_fmac_f32 %s, 0x3acccccd, %s' % (vr(vS + 1), vr(vS)))
a('v_rsq_f32 %s, %s' % (vr(vS), vr(vS + 1)))
for i in range(10):
    a('v_pk_mul_f32 %s, %s, %s op_sel_hi:[1,0]' % (vr(vX + 2 * i, 2), vr(vX + 2 * i, 2), vr(vS, 2)))
vHp = 96
for i in range(10):
    a('v_cvt_pk_bf16_f32 %s, %s, %s' % (vr(vHp + i), vr(vX + 2 * i), vr(vX + 2 * i + 1)))
a('ds_write_b128 %s, %s' % (vr(vLw), vr(vHp, 4)))
a('ds_write_b128 %s, %s offset:512' % (vr(vLw), vr(vHp + 4, 4)))
a('ds_write_b64 %s, %s offset:1024' % (vr(vLw2), vr(vHp + 8, 2)))
a('s_waitcnt lgkmcnt(0)')
a('s_barrier')
vHt = 108
for m in range(3):
    for hh in range(2):
        a('ds_read_b64_tr_b16 %s, %s offset:%d' % (vr(vHt + 4 * m + 2 * hh, 2), vr(vLr), 512 * m + 4 * LNROW * hh))
a(f'''
s_add_u32 s{sN}, s{sN}, 0x9e3779b1
s_add_u32 s{sN+1}, s{sN+1}, 0x85ebca77
v_mov_b32 v{vN}, s{sN}
v_mov_b32 v{vN+1}, s{sN+1}
''')
for m, vo in enumerate((vHs, vHs1, vHs2)):
    a('s_waitcnt lgkmcnt(%d)' % (4 - 2 * m))
    a('buffer_store_dwordx4 %s, %s, %s, 0 offen sc1' % (vr(vHt + 4 * m, 4), vr(vo), sr(rWS, 4)), tag='hst')
stamp()
vKo, vKo4, vKoh, vTo = vMisc, vMisc + 1, vMisc + 2, vMisc + 6
a(f'''
v_lshlrev_b32 v{t0}, 4, v{vL5}
v_lshlrev_b32 v{t1}, 3, v{vL5}
''')
a('global_load_dwordx4 %s, %s, %s' % (vr(vGWp, 4), vr(t0), sr(sGW, 2)), tag='gw')
a('global_load_dwordx4 %s, %s, %s offset:512' % (vr(vGWp + 4, 4), vr(t0), sr(sGW, 2)), tag='gw')
a('global_load_dwordx2 %s, %s, %s offset:1024' % (vr(vGWp + 8, 2), vr(t1), sr(sGW, 2)), tag='gw')
a(f'''
s_mul_i32 s{t2}, s{sR}, 10240
v_lshl_add_u32 v{vKo}, v0, 2, s{t2}
v_add_u32 v{vKo4}, 5120, v{vKo}
v_subrev_u32 v{vKoh}, 3840, v{vKo}
v_lshlrev_b32 v{vTo}, 4, v0
''')
vKV1, vKV2 = 120, 144


def kv_loads(b, tag):
    a('global_load_dwordx4 %s, %s, %s' % (vr(b, 4), vr(vTo), sr(sSK, 2)), tag=tag)
    for r in range(11):
        vo, off = ((vKoh, 1280 * r) if r < 3 else (vKo, 1280 * (r - 3)) if r < 7 else (vKo4, 1280 * (r - 7)))
        a('buffer_load_dword %s, %s, %s, 0 offen offset:%d' % (vr(b + 4 + r), vr(vo), sr(rK, 4), off), tag=tag)
    for r in range(8):
        vo, off = ((vKo, 1280 * r) if r < 4 else (vKo4, 1280 * (r - 4)))
        a('global_load_dword %s, %s, %s offset:%d' % (vr(b + 15 + r), vr(vo), sr(sV, 2), off), tag=tag)


kv_loads(vKV1, 'kv1')
vH4 = 168
a('s_cmp_eq_u32 %s, 3' % sr(sWave))
a('s_cbranch_scc1 L_ld_w3')
save = list(a.vm)
a(f'''
v_lshlrev_b32 v{t0}, 2, v{vLane}
v_mov_b32 v{t1}, s{sCH}
v_lshlrev_b32 v{t1}, 1, v{t1}
''')
for n in range(16):
    a('buffer_load_dwordx3 %s, %s, %s, 0 offen offset:%d' % (vr(vH4 + 4 * n, 3), vr(t0), sr(rH, 4), 256 * n), tag='x20')
for jj in range(3):
    a('v_subrev_u32 %s, %d, %s' % (vr(t4), 32 - 4 * jj, vr(t0)))
    a('buffer_load_dword %s, %s, %s, 0 offen' % (vr(vH4 + 64 + jj), vr(t4), sr(rH, 4)), tag='x20')
a('global_load_ushort %s, %s, %s' % (vr(vD), vr(t1), sr(sD, 2)), tag='x20')
n1 = len(a.vm)
a('s_branch L_ld_done')
a.label('L_ld_w3')
a.vm = list(save)
a(f'''
v_add_u32 v{vKo}, 256, v{vKo}
v_add_u32 v{vKo4}, 256, v{vKo4}
v_add_u32 v{vKoh}, 256, v{vKoh}
v_add_u32 v{vTo}, 1024, v{vTo}
''')
kv_loads(vKV2, 'x20')
assert len(a.vm) == n1
a.label('L_ld_done')
a.wait_vm(('w1', 5))
for ks in range(6):
    tr_step(ks, ks, 512)
a.wait_vm('hst')
a(f'''
s_lshl_b32 s{t2}, s{sWave}, 8
s_add_u32 s{t2}, s{t2}, s{sR}
s_lshl_b32 s{t2}, s{t2}, 5
s_add_u32 s{t2}, s{t2}, {WS_FH}
''')
flag(t2)
stamp()
a('s_waitcnt lgkmcnt(0)')
a.wait_vm('gw')
vZ = vT + 4
a('v_mov_b32 %s, 0' % vr(vZ))
for i in range(10):
    a('v_dot2_f32_bf16 %s, %s, %s, %s' % (vr(vZ), vr(vQ + i), vr(vGWp + i), vr(vZ)))
reduce32(vZ, vZ + 1)
a(f'''
v_mul_f32 v{vZ}, 0xbfb8aa3b, v{vZ}
v_exp_f32 v{vZ}, v{vZ}
v_add_f32 v{vZ}, 1.0, v{vZ}
v_rcp_f32 v{vZ}, v{vZ}
s_lshl_b32 s{t2}, s{sR}, 5
s_add_u32 s{t2}, s{t2}, {WS_G}
v_lshl_add_u32 v{vZ+1}, v{vRow}, 2, s{t2}
s_mov_b32 exec_lo, 1
s_mov_b32 exec_hi, 1
''')
a('buffer_store_dword %s, %s, %s, 0 offen sc1' % (vr(vZ), vr(vZ + 1), sr(rWS, 4)), tag='gst')
a('s_mov_b64 exec, -1')
vP, vKu, vAcc, vKs = 52, 60, 84, vMisc + 3


def kv_compute(b):
    for c in range(2):
        for h in range(2):
            a('v_lshlrev_b32 %s, 16, %s' % (vr(vP + 4 * h + c), vr(b + 2 * c + h)))
            a('v_and_b32 %s, 0xffff0000, %s' % (vr(vP + 4 * h + 2 + c), vr(b + 2 * c + h)))
    for r in range(11):
        a('v_lshlrev_b32 %s, 16, %s' % (vr(vKu + 2 * r), vr(b + 4 + r)))
        a('v_and_b32 %s, 0xffff0000, %s' % (vr(vKu + 2 * r + 1), vr(b + 4 + r)))
    for r in range(8):
        d = vr(vAcc + 2 * r, 2)
        a('v_pk_mul_f32 %s, %s, %s' % (d, vr(vP + 6, 2), vr(vKu + 2 * r, 2)))
        a('v_lshlrev_b32 v100, 16, %s' % vr(b + 15 + r))
        for j in (2, 1, 0):
            a('v_pk_fma_f32 %s, %s, %s, %s' % (d, vr(vP + 2 * j, 2), vr(vKu + 2 * (r + 3 - j), 2), d))
        a('v_and_b32 v101, 0xffff0000, %s' % vr(b + 15 + r))
        a('v_pk_mul_f32 %s, %s, v[100:101]' % (d, d))
    for c in range(2):
        for j in range(4):
            a('v_cvt_pk_bf16_f32 %s, %s, %s' % (
                vr(104 + 4 * c + j), vr(vAcc + 2 * (7 - 2 * j) + c), vr(vAcc + 2 * (6 - 2 * j) + c)))
    a('buffer_store_dwordx4 v[104:107], %s, %s, 0 offen sc1' % (vr(vKs), sr(rWS, 4)), tag='kvst')
    a('buffer_store_dwordx4 v[108:111], %s, %s, 0 offen sc1' % (vr(vKs + 1), sr(rWS, 4)), tag='kvst')


a(f'''
s_mul_i32 s{t2}, s{sR}, 10240
s_add_u32 s{t2}, s{t2}, {WS_KV}
v_lshl_add_u32 v{vKs}, v0, 4, s{t2}
v_add_u32 v{vKs+1}, 5120, v{vKs}
''')
a.wait_vm('kv1')
for ks in range(6, 12):
    dma_step(ks, ks - 6, W1S, 'w1')
kv_compute(vKV1)
a.wait_vm('x20')
a('s_cmp_eq_u32 %s, 3' % sr(sWave))
a('s_cbranch_scc1 L_cp_w3')
a(f'''
s_mul_i32 s{t2}, s{sWave}, {T4SZ}
s_add_u32 s{t2}, s{t2}, {L_T4}
v_lshl_add_u32 v{t0}, v{vLane}, 4, s{t2}
''')
for n in [16] + list(range(16)):
    q = vH4 + 4 * n
    a('v_alignbit_b32 %s, %s, %s, 16' % (vr(q + 3), vr(q + 2), vr(q + 1)))
    a('v_alignbit_b32 %s, %s, %s, 16' % (vr(q + 2), vr(q + 1), vr(q)))
    a('ds_write_b128 %s, %s offset:%d' % (vr(t0), vr(q, 4), 0 if n == 16 else 128 + 1024 * n))
a('s_branch L_cp_done')
a.label('L_cp_w3')
a.cond = True
a(f'''
v_add_u32 v{vKs}, 1024, v{vKs}
v_add_u32 v{vKs+1}, 1024, v{vKs+1}
''')
kv_compute(vKV2)
a.cond = False
a.label('L_cp_done')
a.wait_vm(('w1', 11))
for ks in range(6, 12):
    tr_step(ks, ks - 6, 512)
a('s_waitcnt vmcnt(0) lgkmcnt(0)')
for ks in range(12, 16):
    dma_step(ks, ks - 12, W1S, 'w1')
a('s_barrier')
a('s_cmp_eq_u32 %s, 0' % sr(sWave))
a('s_cbranch_scc0 L_nokvflag')
a.cond = True
a(f'''
s_lshl_b32 s{t2}, s{sR}, 5
s_add_u32 s{t2}, s{t2}, {WS_FKV}
''')
flag(t2)
a.cond = False
a.label('L_nokvflag')
a('s_cmp_eq_u32 %s, 0' % sr(sAct))
a('s_cbranch_scc1 L_conv')
a(f'''
s_lshl_b32 s{t2}, s{sFT}, 7
v_lshl_add_u32 v{t0}, v{vG}, 3, s{t2}
''')
for n in range(4):
    a('global_load_dwordx2 %s, %s, %s offset:%d' % (vr(vB1 + 2 * n, 2), vr(t0), sr(sB1, 2), 32 * n), tag='b1')
a(f'''
v_mul_u32_u24 v{t0}, 10240, v{vG}
v_lshl_add_u32 v{t0}, v{vU}, 4, v{t0}
s_mul_i32 s{t2}, s{sWave}, {64*10240}
s_lshl_b32 s{t3}, s{sDT}, 10
s_add_u32 s{t2}, s{t2}, s{t3}
s_add_u32 s{t2}, s{t2}, {WS_HT8}
''')
for st in range(4):
    a(f'''
    s_add_u32 s{t3}, s{sWave}, {st+1}
    s_and_b32 s{t3}, s{t3}, 3
    s_lshl_b32 s{t3}, s{t3}, 8
    s_add_u32 s{t3}, s{t3}, s{t2}
    v_add_u32 v{vHo+st}, s{t3}, v{t0}
    ''')
a(f'''
s_add_u32 s{t2}, s{sRing}, {3*4096}
v_lshl_add_u32 v{vXa+3}, v{vLane}, 4, s{t2}
''')
for st in range(3):
    a(f'''
    s_add_u32 s{t3}, s{sWave}, {3-st}
    s_and_b32 s{t3}, s{t3}, 3
    s_mul_i32 s{t3}, s{t3}, {RINGW}
    s_add_u32 s{t3}, s{t3}, {(3+st)*4096}
    v_lshl_add_u32 v{vXa+st}, v{vLane}, 4, s{t3}
    ''')
a(f'''
s_and_b32 s{t2}, s{sDT}, 3
s_lshl_b32 s{t2}, s{t2}, 13
s_add_u32 s{t2}, s{t2}, {WS_FH}
v_lshl_add_u32 v{vPo}, v0, 5, s{t2}
''')
a.wait_vm(('w1', 15))
for ks in range(12, 16):
    tr_step(ks, ks - 12, 512)
stamp()
poll('L_pollh', vPo)
stamp()
WIN = 40
vWin = 96
vAc = 64


def hload(F):
    st, ks = divmod(F, 16)
    a('buffer_load_dwordx4 %s, %s, %s, %s offen sc1' % (
        vr(vWin + 4 * (F % WIN), 4), vr(vHo + st), sr(rWS, 4), sr(sKS + ks)), tag=('h', F))


for F in range(WIN):
    hload(F)
a('s_waitcnt lgkmcnt(0)')
vPt = vWin + 4 * 24
vBf = vWin + 4 * 36
side = []
for F in range(64):
    st, ks = divmod(F, 16)
    a.wait_vm(('h', F))
    acc = vAc + 16 * (st & 1)
    for n in range(4):
        d = vr(acc + 4 * n, 4)
        a('v_mfma_f32_16x16x32_bf16 %s, %s, %s, %s' % (
            d, ar(16 * ks + 4 * n, 4), vr(vWin + 4 * (F % WIN), 4), '0' if ks == 0 else d))
        for _ in range(2):
            if side:
                a(side.pop(0))
    if F + WIN < 64:
        hload(F + WIN)
    if st > 0 and ks == 1:
        pa = vAc + 16 * ((st - 1) & 1)
        for n in range(4):
            a('ds_write_b128 %s, %s offset:%d' % (vr(vXa + 3), vr(pa + 4 * n, 4), 4096 * (st - 1) + 1024 * n))
    if st == 3 and ks == 3:
        a('s_waitcnt lgkmcnt(0)')
        a('s_barrier')
        for s2 in range(3):
            for n in range(4):
                a('ds_read_b128 %s, %s offset:%d' % (vr(vPt + 16 * s2 + 4 * n, 4), vr(vXa + s2), 1024 * n))
        for i in range(8):
            side.append('v_lshlrev_b32 %s, 16, %s' % (vr(vBf + 2 * i), vr(vB1 + i)))
            side.append('v_and_b32 %s, 0xffff0000, %s' % (vr(vBf + 2 * i + 1), vr(vB1 + i)))
    if st == 3 and ks == 6:
        assert not side
        a('s_waitcnt lgkmcnt(0)')
        for s2 in range(3):
            for i in range(16):
                side.append('v_add_f32 %s, %s, %s' % (vr(vBf + i), vr(vBf + i), vr(vPt + 16 * s2 + i)))
assert not side
stamp()
acc = vAc + 16
C0 = -2.0 * 0.7978845608028654 * 1.4426950408889634
C1 = C0 * 0.044715
import struct
f2u = lambda x: struct.unpack('<I', struct.pack('<f', x))[0]
a(f'''
s_mul_i32 s{t2}, s{sFT}, 80
s_lshl_b32 s{t3}, s{sDT}, 2
s_add_u32 s{t2}, s{t2}, s{t3}
s_add_u32 s{t2}, s{t2}, s{sWave}
s_lshl_b32 s{t2}, s{t2}, 10
s_add_u32 s{t2}, s{t2}, {WS_UF}
v_lshl_add_u32 v{t0}, v{vLane}, 4, s{t2}
s_mov_b32 s{sT0}, 0x{f2u(C1):08x}
s_mov_b32 s{sT1}, 0x{f2u(C1):08x}
v_mov_b32 v{vPoll}, 0x{f2u(C0):08x}
v_mov_b32 v{vPoll+1}, 0x{f2u(C0):08x}
''')
vE = vPt
for p in range(2):
    rng = range(4 * p, 4 * p + 4)
    for i in rng:
        a('v_pk_add_f32 %s, %s, %s' % (vr(vBf + 2 * i, 2), vr(vBf + 2 * i, 2), vr(acc + 2 * i, 2)))
    for i in rng:
        a('v_pk_mul_f32 %s, %s, %s' % (vr(vE + 2 * i, 2), vr(vBf + 2 * i, 2), vr(vBf + 2 * i, 2)))
    for i in rng:
        a('v_pk_fma_f32 %s, %s, %s, %s' % (vr(vE + 2 * i, 2), vr(vE + 2 * i, 2), sr(sT0, 2), vr(vPoll, 2)))
    for i in rng:
        a('v_pk_mul_f32 %s, %s, %s' % (vr(vE + 2 * i, 2), vr(vE + 2 * i, 2), vr(vBf + 2 * i, 2)))
    for i in range(8 * p, 8 * p + 8):
        a('v_exp_f32 %s, %s' % (vr(vE + i), vr(vE + i)))
    for i in rng:
        a('v_pk_add_f32 %s, %s, 1.0 op_sel_hi:[1,0]' % (vr(vE + 2 * i, 2), vr(vE + 2 * i, 2)))
    for i in range(8 * p, 8 * p + 8):
        a('v_rcp_f32 %s, %s' % (vr(vE + i), vr(vE + i)))
    for i in rng:
        a('v_pk_mul_f32 %s, %s, %s' % (vr(vE + 2 * i, 2), vr(vE + 2 * i, 2), vr(vBf + 2 * i, 2)))
    for i in rng:
        a('v_cvt_pk_bf16_f32 %s, %s, %s' % (vr(vE + 16 + i), vr(vE + 2 * i), vr(vE + 2 * i + 1)))
    a('buffer_store_dwordx4 %s, %s, %s, %s offen sc1' % (vr(vE + 16 + 4 * p, 4), vr(t0), sr(rWS, 4), sr(sKS + p)),
      tag='ust')
a(f'''
s_lshl_b32 s{t2}, s{sDT}, 2
s_add_u32 s{t2}, s{t2}, s{sWave}
s_mul_i32 s{t2}, s{t2}, 24
s_add_u32 s{t2}, s{t2}, s{sFT}
s_lshl_b32 s{t2}, s{t2}, 5
s_add_u32 s{t2}, s{t2}, {WS_FU}
s_waitcnt vmcnt(0)
''')
flag(t2)
a.label('L_conv')
a.vm = []
stamp()
a(f'''
v_lshlrev_b32 v{vPo}, 5, v0
v_add_u32 v{vPo}, {WS_FKV}, v{vPo}
''')
poll('L_pollkv', vPo)
vXl = 96
a(f'''
v_lshrrev_b32 v{t0}, 2, v{vLane}
v_and_b32 v{t1}, 3, v{vLane}
v_mul_u32_u24 v{t4}, 10240, v{t0}
v_lshl_add_u32 v{t4}, v{t1}, 4, v{t4}
s_mul_i32 s{t2}, s{sWave}, {64*10240}
s_lshl_b32 s{t3}, s{sP0}, 4
s_add_u32 s{t2}, s{t2}, s{t3}
s_add_u32 s{t2}, s{t2}, {WS_KV}
v_add_u32 v{t4}, s{t2}, v{t4}
v_cmp_gt_u32 vcc, s{sNCH}, v{t1}
v_mov_b32 v{vPo}, {OOB}
v_cndmask_b32 v{t4}, v{vPo}, v{t4}, vcc
''')
for m in range(4):
    a('buffer_load_dwordx4 %s, %s, %s, %s offen sc1' % (vr(vXl + 4 * m, 4), vr(t4), sr(rWS, 4), sr(sKS + 4 * m)),
      tag='xl')
a(f'''
v_mul_u32_u24 v{t1}, {XSZ}, v{t1}
v_lshl_add_u32 v{t1}, v{t0}, 4, v{t1}
s_lshl_b32 s{t2}, s{sWave}, 10
s_add_u32 s{t2}, s{t2}, {L_X+512}
v_add_u32 v{vMisc}, s{t2}, v{t1}
s_mov_b32 s{rW}, s{sW2}
s_and_b32 s{rW+1}, s{sW2+1}, 0xffff
s_mov_b32 s{rW+2}, {1536*4096}
v_lshrrev_b32 v{t0}, 3, v{vLane}
v_lshlrev_b32 v{t0}, 12, v{t0}
s_mul_i32 s{t2}, s{sWave}, {384*4096}
s_lshl_b32 s{t3}, s{sST2}, 7
s_add_u32 s{t2}, s{t2}, s{t3}
v_add_u32 v{t0}, s{t2}, v{t0}
v_and_b32 v{t1}, 7, v{vLane}
v_lshlrev_b32 v{t4}, 1, v{vG}
v_xor_b32 v{t1}, v{t1}, v{t4}
v_lshl_add_u32 v{vWo}, v{t1}, 4, v{t0}
v_add_u32 v{vWo+1}, {32768-1024}, v{vWo}
v_add_u32 v{vWo+2}, {2*(32768-1024)}, v{vWo}
v_add_u32 v{vWo+3}, {3*(32768-1024)}, v{vWo}
''')
W2S = 32 * 4096
for ks in range(3):
    dma_step(ks, ks, W2S, 'w2')
a(f'''
v_lshrrev_b32 v{t0}, 2, v{vLane}
v_lshlrev_b32 v{t0}, 7, v{t0}
v_and_b32 v{t1}, 3, v{vU}
v_lshl_add_u32 v{t0}, v{t1}, 3, v{t0}
v_bfe_u32 v{t1}, v{vLane}, 3, 2
''')
for n in range(4):
    a(f'''
    s_add_u32 s{t2}, s{sWave}, {n}
    s_and_b32 s{t2}, s{t2}, 3
    v_xor_b32 v{t4}, s{t2}, v{t1}
    v_lshl_add_u32 v{t4}, v{t4}, 5, v{t0}
    v_add_u32 v{vTr+n}, s{sRing}, v{t4}
    ''')
vA, vBa, vAD = vMisc + 1, vMisc + 2, 52
a(f'''
s_mul_i32 s{t2}, s{sWave}, {XSZ}
s_add_u32 s{t2}, s{t2}, {L_X}
v_lshl_add_u32 v{t0}, v{vLane}, 3, s{t2}
v_mov_b32 v{vPoll}, 0
v_mov_b32 v{vPoll+1}, 0
ds_write_b64 v{t0}, v[{vPoll}:{vPoll+1}]
s_add_u32 s{t2}, s{t2}, {480-128}
v_lshl_add_u32 v{t0}, v{vU}, 5, s{t2}
v_lshl_add_u32 v{vBa}, v{vG}, 4, v{t0}
s_mul_i32 s{t2}, s{sWave}, {T4SZ}
s_add_u32 s{t2}, s{t2}, {L_T4+200}
v_lshl_add_u32 v{t0}, v{vU}, 3, s{t2}
v_lshlrev_b32 v{t1}, 6, v{vG}
v_sub_u32 v{vA}, v{t0}, v{t1}
v_lshlrev_b32 v{t0}, 3, v{vG}
v_sub_u32 v{t0}, v{t0}, v{vU}
v_subrev_u32 v{t0}, 9, v{t0}
v_and_b32 v{t1}, 1, v{t0}
v_lshlrev_b32 v{t1}, 4, v{t1}
v_lshlrev_b32 v{t1}, v{t1}, v{vD}
v_ashrrev_i32 v{t0}, 1, v{t0}
''')
for jj in range(4):
    a(f'''
    v_cmp_eq_u32 vcc, {jj}, v{t0}
    v_cndmask_b32 v{vAD+jj}, 0, v{t1}, vcc
    ''')
a.wait_vm('xl')
a('s_mov_b32 exec_lo, 0x77777777')
a('s_mov_b32 exec_hi, 0x77777777')
for m in range(4):
    a('ds_write_b128 %s, %s offset:%d' % (vr(vMisc), vr(vXl + 4 * m, 4), 256 * m))
a('s_mov_b64 exec, -1')
a('s_waitcnt lgkmcnt(0)')
a('s_barrier')
for ks in range(3, 6):
    dma_step(ks, ks, W2S, 'w2')
a('s_cmp_lt_u32 %s, %s' % (sr(sWave), sr(sNCH)))
a('s_cbranch_scc0 L_conv_done')
a.cond = True
vBuf = [96, 160]
vY = 224


def conv_loads(buf, e):
    L = []
    for r in range(8):
        L.append('ds_read_b128 %s, %s offset:%d' % (vr(vBuf[buf] + 32 + 4 * r, 4), vr(vBa), 128 - 64 * e + 512 * r))
        L.append('ds_read_b64 %s, %s offset:%d' % (vr(vBuf[buf] + 4 * r, 2), vr(vA), 256 * e + 2048 * r))
        L.append('ds_read_b64 %s, %s offset:%d' % (vr(vBuf[buf] + 4 * r + 2, 2), vr(vA), 256 * e + 2048 * r + 32))
    return L


def conv_mfmas(buf, loads):
    for r in range(8):
        for q in range(r, 8):
            d = vr(vY + 4 * q, 4)
            a('v_mfma_f32_16x16x32_bf16 %s, %s, %s, %s' % (
                d, vr(vBuf[buf] + 4 * r, 4), vr(vBuf[buf] + 32 + 4 * (q - r), 4), d))
            if loads:
                a(loads.pop(0))
    assert not loads


for l in conv_loads(0, 0):
    a(l)
a('s_mov_b32 %s, 0' % sr(sSpin))
a('s_waitcnt lgkmcnt(0)')
for q in range(8):
    a('v_mfma_f32_16x16x32_bf16 %s, %s, %s, 0' % (vr(vY + 4 * q, 4), vr(vAD, 4), vr(vBuf[0] + 32 + 4 * q, 4)))
a.label('L_convloop')
conv_mfmas(0, conv_loads(1, 1))
a('s_waitcnt lgkmcnt(0)')
conv_mfmas(1, conv_loads(0, 2))
a(f'''
v_add_u32 v{vA}, 512, v{vA}
v_subrev_u32 v{vBa}, 128, v{vBa}
s_add_u32 s{sSpin}, s{sSpin}, 1
s_cmp_lt_u32 s{sSpin}, 4
s_waitcnt lgkmcnt(0)
s_cbranch_scc1 L_convloop
''')
a(f'''
s_lshl_b32 s{t2}, s{sCH}, 12
s_add_u32 s{t2}, s{t2}, {WS_YT}
v_lshl_add_u32 v{t0}, v{vU}, 5, s{t2}
v_and_b32 v{t1}, 1, v{vG}
v_lshl_add_u32 v{t0}, v{t1}, 9, v{t0}
v_lshrrev_b32 v{t1}, 1, v{vG}
v_lshl_add_u32 v{t0}, v{t1}, 4, v{t0}
''')
for qq in range(4):
    o = 96 + 4 * qq
    for h in range(4):
        a('v_cvt_pk_bf16_f32 %s, %s, %s' % (vr(o + h), vr(vY + 8 * qq + 2 * h), vr(vY + 8 * qq + 2 * h + 1)))
    a('v_permlane16_swap_b32 %s, %s' % (vr(o), vr(o + 2)))
    a('v_permlane16_swap_b32 %s, %s' % (vr(o + 1), vr(o + 3)))
    a('buffer_store_dwordx4 %s, %s, %s, 0 offen offset:%d sc1' % (vr(o, 4), vr(t0), sr(rWS, 4), 1024 * qq), tag='yst')
a.cond = False
a.label('L_conv_done')
stamp()
a.wait_vm(('w2', 5))
for ks in range(6):
    tr_step(ks, ks, 2048)
a('s_waitcnt vmcnt(0) lgkmcnt(0)')
a('s_cmp_lt_u32 %s, %s' % (sr(sWave), sr(sNCH)))
a('s_cbranch_scc0 L_noyflag')
a.cond = True
a(f'''
s_lshl_b32 s{t2}, s{sCH}, 5
s_add_u32 s{t2}, s{t2}, {WS_FY}
''')
flag(t2)
a.cond = False
a.label('L_noyflag')
for ks in range(6, 12):
    dma_step(ks, ks - 6, W2S, 'w2')
vOo, vB2, vGt = vMisc, vMisc + 1, vMisc + 2
vQe = 26
a(f'''
s_lshl_b32 s{t2}, s{sST2}, 2
s_add_u32 s{t2}, s{t2}, s{sWave}
s_lshl_b32 s{t2}, s{t2}, 4
v_add_u32 v{t0}, s{t2}, v{vU}
v_mul_u32_u24 v{vOo}, 1280, v{t0}
s_mul_i32 s{t3}, s{sDT2}, 160
v_lshl_add_u32 v{t1}, v{vG}, 3, s{t3}
v_add_u32 v{vOo}, v{vOo}, v{t1}
v_lshlrev_b32 v{t1}, 1, v{t0}
v_lshlrev_b32 v{vGt}, 2, v{t0}
v_add_u32 v{vGt}, {WS_G}, v{vGt}
''')
for i in range(5):
    a('global_load_dwordx2 %s, %s, %s offset:%d' % (vr(vQe + 2 * i, 2), vr(vOo), sr(sQ, 2), 32 * i), tag='qe')
a('global_load_ushort %s, %s, %s' % (vr(vB2), vr(t1), sr(sB2, 2)), tag='qe')
a(f'''
s_mul_i32 s{t2}, s{sWave}, {12*40960}
s_mul_i32 s{t3}, s{sDT2}, 5120
s_add_u32 s{t2}, s{t2}, s{t3}
s_add_u32 s{t2}, s{t2}, {WS_UF}
v_lshl_add_u32 v{vHo}, v{vLane}, 4, s{t2}
v_add_u32 v{vHo+1}, 4096, v{vHo}
v_min_u32 v{t0}, 29, v{vLane}
v_mul_u32_u24 v{t1}, 43, v{t0}
v_lshrrev_b32 v{t1}, 8, v{t1}
v_mul_u32_u24 v{t1}, 18, v{t1}
v_add_u32 v{t0}, v{t0}, v{t1}
s_mul_i32 s{t2}, s{sDT2}, 120
s_mul_i32 s{t3}, s{sWave}, 6
s_add_u32 s{t2}, s{t2}, s{t3}
s_lshl_b32 s{t2}, s{t2}, 5
s_add_u32 s{t2}, s{t2}, {WS_FU}
v_lshl_add_u32 v{vPo}, v{t0}, 5, s{t2}
v_lshl_add_u32 v{vXa}, v{vLane}, 4, s{sRing}
''')
for n in range(1, 4):
    a(f'''
    s_add_u32 s{t3}, s{sWave}, {4-n}
    s_and_b32 s{t3}, s{t3}, 3
    s_mul_i32 s{t3}, s{t3}, {RINGW}
    s_add_u32 s{t3}, s{t3}, {(n-1)*1024}
    v_lshl_add_u32 v{vXa+n}, v{vLane}, 4, s{t3}
    ''')
a.wait_vm(('w2', 11))
for ks in range(6, 12):
    tr_step(ks, ks - 6, 2048)
poll('L_pollu', vPo)
stamp()
vOwn, vOth = 52, 72


def uload(F):
    st, ks = divmod(F, 12)
    a('buffer_load_dwordx4 %s, %s, %s, %s offen offset:%d sc1' % (
        vr(vWin + 4 * (F % WIN), 4), vr(vHo + st // 4), sr(rWS, 4), sr(sKS + ks), 1024 * (st % 4)), tag=('u', F))


def xwrite(st):
    for n in range(1, 4):
        a('ds_write_b128 %s, %s offset:%d' % (
            vr(vXa), vr(vOth + 12 * (st & 1) + 4 * (n - 1), 4), 3072 * st + 1024 * (n - 1)))


for F in range(WIN):
    uload(F)
a('s_waitcnt lgkmcnt(0)')
for F in range(60):
    st, ks = divmod(F, 12)
    a.wait_vm(('u', F))
    for n in range(4):
        d = vr(vOwn + 4 * st, 4) if n == 0 else vr(vOth + 12 * (st & 1) + 4 * (n - 1), 4)
        a('v_mfma_f32_16x16x32_bf16 %s, %s, %s, %s' % (
            d, vr(vWin + 4 * (F % WIN), 4), ar(16 * ks + 4 * n, 4), '0' if ks == 0 else d))
    if F + WIN < 60:
        uload(F + WIN)
    if st > 0 and ks == 1:
        xwrite(st - 1)
stamp()
vYl = 96
a(f'''
v_lshrrev_b32 v{t0}, 3, v0
s_mul_i32 s{t2}, s{sDT2}, 80
v_and_b32 v{t1}, 7, v{vLane}
v_lshrrev_b32 v{t4}, 3, v{vLane}
v_min_u32 v{t4}, 2, v{t4}
v_lshl_add_u32 v{t4}, v{t4}, 5, v{t1}
s_lshl_b32 s{t3}, s{sWave}, 3
v_add_u32 v{t4}, s{t3}, v{t4}
v_min_u32 v{t4}, 79, v{t4}
v_add_u32 v{t4}, s{t2}, v{t4}
v_lshlrev_b32 v{t4}, 5, v{t4}
v_add_u32 v{vPo}, {WS_FY}, v{t4}
''')
xwrite(4)
poll('L_polly', vPo)
a(f'''
v_add_u32 v{t0}, s{t2}, v{t0}
v_lshlrev_b32 v{t0}, 12, v{t0}
v_lshlrev_b32 v{t4}, 1, v{vG}
v_xor_b32 v{t1}, v{t1}, v{t4}
v_lshl_add_u32 v{t0}, v{t1}, 4, v{t0}
s_lshl_b32 s{t3}, s{sST2}, 7
s_add_u32 s{t3}, s{t3}, {WS_YT}
v_add_u32 v{t0}, s{t3}, v{t0}
v_add_u32 v{t1}, {32*4096}, v{t0}
s_cmp_lt_u32 s{sWave}, 2
s_cselect_b32 s{t3}, {64*4096}, s{sOOB}
v_add_u32 v{t4}, s{t3}, v{t0}
''')
for m, vo in enumerate((t0, t1, t4)):
    a('buffer_load_dwordx4 %s, %s, %s, 0 offen sc1' % (vr(vYl + 4 * m, 4), vr(vo), sr(rWS, 4)), tag='yl')
a('buffer_load_dword %s, %s, %s, 0 offen sc1' % (vr(vGt), vr(vGt), sr(rWS, 4)), tag='yl')
vYr = vMisc + 3
a(f'''
v_bfe_u32 v{t0}, v{vLane}, 2, 3
v_lshlrev_b32 v{t0}, 7, v{t0}
v_and_b32 v{t1}, 3, v{vU}
v_lshl_add_u32 v{t0}, v{t1}, 3, v{t0}
v_bfe_u32 v{t1}, v{vLane}, 3, 2
v_xor_b32 v{t1}, s{sWave}, v{t1}
v_lshl_add_u32 v{t0}, v{t1}, 5, v{t0}
v_lshrrev_b32 v{t1}, 1, v{vG}
v_mul_u32_u24 v{t1}, {RINGW}, v{t1}
v_add_u32 v{t0}, v{t0}, v{t1}
v_add_u32 v{vYr}, 16384, v{t0}
''')
a('s_waitcnt vmcnt(0)')
for m in range(3):
    a('ds_write_b128 %s, %s offset:%d' % (vr(vXa), vr(vYl + 4 * m, 4), 16384 + 1024 * m))
a('s_waitcnt lgkmcnt(0)')
a('s_barrier')
vPp = 112
vYt = 176
vTm = 192
vOg, vT0 = vMisc + 4, vMisc + 6
a(f'''
v_sub_f32 v{vOg}, 1.0, v{vGt}
v_lshlrev_b32 v{vB2}, 16, v{vB2}
v_mul_f32 v{vT0}, v{vOg}, v{vB2}
''')
for i in range(5):
    a('ds_read_b64_tr_b16 %s, %s offset:%d' % (vr(vYt + 2 * i, 2), vr(vYr), RINGW * ((2 * i) % 4) + 1024 * (i // 2)))
    for n in range(1, 4):
        a('ds_read_b128 %s, %s offset:%d' % (vr(vPp + 12 * i + 4 * (n - 1), 4), vr(vXa + n), 3072 * i))
for i in range(5):
    a('s_waitcnt lgkmcnt(%d)' % min(4 * (4 - i), 12))
    tq, ty = vTm + 8 * i, vTm + 8 * i + 4
    for h in range(2):
        a('v_lshlrev_b32 %s, 16, %s' % (vr(tq + 2 * h), vr(vQe + 2 * i + h)))
        a('v_and_b32 %s, 0xffff0000, %s' % (vr(tq + 2 * h + 1), vr(vQe + 2 * i + h)))
        a('v_lshlrev_b32 %s, 16, %s' % (vr(ty + 2 * h), vr(vYt + 2 * i + h)))
        a('v_and_b32 %s, 0xffff0000, %s' % (vr(ty + 2 * h + 1), vr(vYt + 2 * i + h)))
    for h in range(2):
        o = vOwn + 4 * i + 2 * h
        for n in range(3):
            a('v_pk_add_f32 %s, %s, %s' % (vr(o, 2), vr(o, 2), vr(vPp + 12 * i + 4 * n + 2 * h, 2)))
        a('v_pk_mul_f32 %s, %s, %s' % (vr(tq + 2 * h, 2), vr(tq + 2 * h, 2), vr(ty + 2 * h, 2)))
        a('v_pk_fma_f32 %s, %s, %s, %s op_sel_hi:[1,0,0]' % (
            vr(tq + 2 * h, 2), vr(tq + 2 * h, 2), vr(vGt, 2), vr(vT0, 2)))
        a('v_pk_fma_f32 %s, %s, %s, %s op_sel_hi:[1,0,1]' % (vr(o, 2), vr(o, 2), vr(vOg, 2), vr(tq + 2 * h, 2)))
        a('v_cvt_pk_bf16_f32 %s, %s, %s' % (vr(ty + h), vr(o), vr(o + 1)))
    a('global_store_dwordx2 %s, %s, %s offset:%d' % (vr(vOo), vr(ty, 2), sr(sOUT, 2), 32 * i))
a('s_add_u32 %s, s2, %s' % (sr(t2), sr(sWave)))
a('s_cmp_eq_u32 %s, 0' % sr(t2))
a('s_cbranch_scc0 L_noepoch')
flag(t2)
a.label('L_noepoch')
if STAMPS:
    a('s_waitcnt vmcnt(0)')
    stamp()
    a(f'''
    s_lshl_b32 s{sT0}, s2, 2
    s_add_u32 s{sT0}, s{sT0}, s{sWave}
    s_lshl_b32 s{sT0}, s{sT0}, 7
    s_add_u32 s{sT0}, s{sT0}, {WS_ST}
    s_mov_b64 exec, 1
    ''')
    for i in range(nstamp[0]):
        a('v_mov_b32 v10, %s' % sr(sStamp + i))
        a('buffer_store_dword v10, off, %s, %s offset:%d' % (sr(rWS, 4), sr(sT0), 4 * i))
if PROBE:
    a(f'''
    s_cmp_eq_u32 s{sStamp+PROBE[0]}, 0
    s_cselect_b32 s{sT0}, s{sStamp}, s{sStamp+PROBE[0]}
    s_add_u32 s{sT0}, s{sT0}, 6000
    ''')
    a.label('L_probe')
    a(f'''
    s_memrealtime s[100:101]
    s_waitcnt lgkmcnt(0)
    s_sub_u32 s{sT1}, s100, s{sT0}
    s_cmp_lt_i32 s{sT1}, 0
    s_cbranch_scc1 L_probe
    ''')
a.label('L_end')
a('s_endpgm')

hdr = open('cdna_kernels/%s.s.ref' % NAME).read().split('; Override launch')[0]
txt = hdr + f'''; @launch grid=(256,1,1) block=(256,1,1) lds={LDS_BYTES}
.amdgcn_target "amdgcn-amd-amdhsa--gfx950"
.text
.globl {NAME}_kernel
.p2align 8
.type {NAME}_kernel,@function
{NAME}_kernel:
''' + a.text() + f'''.section .rodata,"a"
.p2align 6
.amdhsa_kernel {NAME}_kernel
  .amdhsa_next_free_vgpr 512
  .amdhsa_next_free_sgpr 102
  .amdhsa_accum_offset 256
  .amdhsa_group_segment_fixed_size 0
  .amdhsa_kernarg_size 120
  .amdhsa_user_sgpr_count 2
  .amdhsa_user_sgpr_kernarg_segment_ptr 1
  .amdhsa_system_sgpr_workgroup_id_x 1
.end_amdhsa_kernel
'''
open(OUT, 'w').write(txt)
print('wrote', OUT, 'lines', len(a.out), 'nops', a.nops, 'stamps', nstamp[0])
```

```python
import re

TRANS = ('v_exp_f32', 'v_log_f32', 'v_rcp_f32', 'v_rsq_f32', 'v_sqrt_f32', 'v_sin_f32', 'v_cos_f32')


def regs_of(tok):
    tok = tok.strip()
    if tok.startswith('-'):
        tok = tok[1:]
    m = re.fullmatch(r'abs\((.*)\)|\|(.*)\|', tok)
    if m:
        tok = m.group(1) or m.group(2)
    m = re.fullmatch(r'([vas])(\d+)', tok)
    if m:
        return {(m.group(1), int(m.group(2)))}
    m = re.fullmatch(r'([vas])\[(\d+):(\d+)\]', tok)
    if m:
        return {(m.group(1), i) for i in range(int(m.group(2)), int(m.group(3)) + 1)}
    if tok in ('vcc', 'vcc_lo', 'vcc_hi'):
        return {('s', 'vcc')}
    if tok in ('exec', 'exec_lo', 'exec_hi'):
        return {('s', 'exec')}
    if tok == 'm0':
        return {('s', 'm0')}
    return set()


class Ins:
    def __init__(self, text):
        self.text = text
        parts = text.split(None, 1)
        self.op = op = parts[0]
        rest = parts[1] if len(parts) > 1 else ''
        ops, depth, cur = [], 0, ''
        for ch in rest:
            if ch in '[(':
                depth += 1
            if ch in '])':
                depth -= 1
            if ch == ',' and depth == 0:
                ops.append(cur.strip())
                cur = ''
            else:
                cur += ch
        mods = ''
        if cur.strip():
            t = cur.strip().split(None, 1)
            ops.append(t[0])
            mods = t[1] if len(t) > 1 else ''
        self.ops, self.mods = ops, mods
        R = [regs_of(o) for o in ops]
        U = lambda l: set().union(*l) if l else set()
        self.states = 1
        self.kind = 'other'
        self.w, self.r = set(), set()
        self.A = self.B = self.C = set()
        self.sdata = set()
        if op.startswith('v_mfma'):
            self.kind = 'mfma'
            self.w, self.A, self.B, self.C = R[0], R[1], R[2], R[3]
            self.r = self.A | self.B | self.C
            self.passes = 8 if '32x32' in op else 4
        elif op.startswith('v_'):
            self.kind = 'valu'
            self.w, self.r = set(R[0]) if R else set(), U(R[1:])
            if 'permlane' in op and 'swap' in op:
                self.w = R[0] | R[1]
                self.r = R[0] | R[1]
            if op.startswith(('v_fmac', 'v_dot2c', 'v_pk_fmac')) or 'row_' in mods or 'quad_perm' in mods:
                self.r |= R[0]
            if re.match(r'v_(add|sub|subrev|addc|subb)_co', op):
                self.w |= R[1]
                self.r = U(R[2:])
            self.dpp = ('row_' in mods or 'quad_perm' in mods or 'wave_' in mods)
            self.trans = op.replace('_e32', '').replace('_e64', '') in TRANS
            self.dot = op.startswith('v_dot')
        elif op.startswith('ds_'):
            self.kind = 'ds'
            if op.startswith(('ds_read', 'ds_bpermute', 'ds_swizzle', 'ds_permute')):
                self.w, self.r = R[0], U(R[1:])
            else:
                self.r = U(R)
        elif op.startswith(('buffer_', 'global_')):
            self.kind = 'vmem'
            self.lds = bool(re.search(r'\blds\b', mods)) or '_lds_' in op
            if '_load' in op and not self.lds:
                self.w, self.r = R[0], U(R[1:])
            else:
                self.r = U(R)
                if self.lds:
                    self.r |= {('s', 'm0')}
                if '_store' in op and ('x3' in op or 'x4' in op):
                    self.sdata = R[0] if op.startswith('buffer_') else R[1]
        elif op == 's_nop':
            self.states = int(ops[0], 0) + 1
        elif op.startswith('s_'):
            self.kind = 'salu'
            if not op.startswith(('s_cmp', 's_waitcnt', 's_barrier', 's_branch', 's_cbranch', 's_endpgm', 's_sleep',
                                  's_setprio', 's_bitcmp', 's_setpc')):
                self.w, self.r = set(R[0]) if R else set(), U(R[1:])
                if 'saveexec' in op:
                    self.w |= {('s', 'exec')}
            else:
                self.r = U(R)


def isv(s):
    return {x for x in s if x[0] in 'va'}


def iss(s):
    return {x for x in s if x[0] == 's'}


def need(p, c):
    n = 0
    if p.kind == 'valu':
        wv, ws = isv(p.w), iss(p.w)
        if c.kind == 'mfma' and wv & c.r:
            n = max(n, 3 if p.dot else 2)
        if c.kind == 'valu':
            if wv & c.r:
                if p.trans and not c.trans:
                    n = max(n, 1)
                if c.dpp or 'permlane' in c.op:
                    n = max(n, 2)
                if c.op.startswith(('v_readlane', 'v_readfirstlane')):
                    n = max(n, 1)
            if p.dot and (wv & (c.r | c.w)):
                same_c = (c.op == p.op and not (wv & (regs_of(c.ops[1]) | regs_of(c.ops[2]))))
                if not same_c:
                    n = max(n, 3)
            if ws & c.r:
                n = max(n, 4 if c.op.startswith(('v_readlane', 'v_writelane')) else 2)
            if ('s', 'vcc') in ws and c.op.startswith(('v_cndmask', 'v_addc', 'v_subb')):
                n = max(n, 2)
        if p.dot and c.kind in ('vmem', 'ds') and wv & c.r:
            n = max(n, 3)
        if c.kind == 'vmem' and ws & c.r:
            n = max(n, 5)
    if p.kind == 'mfma':
        big = {4: 8, 8: 12}[p.passes]
        if c.kind == 'mfma':
            if p.w & (c.A | c.B):
                n = max(n, big)
            if p.w & c.C and not (p.w == c.C and p.passes == c.passes):
                n = max(n, big - 2)
            if p.w & c.w and not (p.w & c.C):
                n = max(n, big - 2)
        elif c.kind in ('valu', 'vmem', 'ds'):
            if p.w & (c.r | c.w):
                n = max(n, big)
            if c.kind == 'valu' and p.C & c.w:
                n = max(n, {4: 3, 8: 7}[p.passes])
    if p.kind == 'salu' and ('s', 'm0') in p.w and c.kind == 'vmem' and c.lds:
        n = max(n, 1)
    if p.kind == 'vmem' and p.sdata and p.sdata & c.w:
        n = max(n, 2)
    return n


class Asm:
    def __init__(self):
        self.out = []
        self.hist = []
        self.vm = []
        self.lg = []
        self.nops = 0
        self.cond = False
        self.hook = None
        self.scc_live = False
        self.exec_full = True
        self.in_hook = False
        self.atomic = False

    def raw(self, s):
        self.out.append(s)

    def comment(self, s):
        self.out.append('    ; ' + s)

    def label(self, name):
        self.out.append(name + ':')

    def I(self, text, tag=None):
        c = Ins(text)
        dist, pad = 0, 0
        for p in reversed(self.hist):
            if dist >= 20:
                break
            pad = max(pad, need(p, c) - dist)
            dist += p.states
        while pad > 0:
            k = min(pad, 16)
            nop = Ins('s_nop %d' % (k - 1))
            self.out.append('    ' + nop.text)
            self.hist.append(nop)
            self.nops += 1
            pad -= k
        self.out.append('    ' + text)
        self.hist.append(c)
        if len(self.hist) > 64:
            self.hist = self.hist[-32:]
        if c.kind == 'vmem':
            self.vm.append((tag, 0 if self.cond else 1))
        if c.kind == 'ds':
            self.lg.append(tag)
        if c.op == 's_waitcnt':
            m = re.search(r'vmcnt\((\d+)\)', text)
            if m:
                self._retire(int(m.group(1)))
            m = re.search(r'lgkmcnt\((\d+)\)', text)
            if m:
                n = int(m.group(1))
                self.lg = self.lg[len(self.lg) - n:] if n and n < len(self.lg) else ([] if n == 0 else self.lg)
        if c.op.startswith(('s_cmp', 's_bitcmp')):
            self.scc_live = True
        elif not c.op.startswith(('s_cselect', 's_cbranch')):
            self.scc_live = False
        if ('s', 'exec') in c.w:
            self.exec_full = (text.replace(' ', '') == 's_mov_b64exec,-1')
        if self.hook and not (self.in_hook or self.scc_live or self.cond or self.atomic) and self.exec_full:
            self.in_hook = True
            self.hook()
            self.in_hook = False
        return c

    def __call__(self, text, tag=None):
        for line in text.strip().split('\n'):
            line = line.split(';')[0].strip()
            if line:
                self.I(line, tag)

    def _retire(self, n):
        keep, acc = [], 0
        for t in reversed(self.vm):
            if acc >= n:
                break
            keep.append(t)
            acc += t[1]
        self.vm = list(reversed(keep))

    def vm_n(self, tag):
        idx = [i for i, t in enumerate(self.vm) if t[0] == tag]
        if not idx:
            return None
        return sum(t[1] for t in self.vm[idx[-1] + 1:])

    def wait_vm(self, tag, extra=''):
        n = self.vm_n(tag)
        if n is None:
            if extra:
                self.I('s_waitcnt ' + extra)
            return
        n = min(n, 62)
        self.I(('s_waitcnt vmcnt(%d) %s' % (n, extra)).strip())

    def wait_lg(self, *tags):
        idx = [i for i, t in enumerate(self.lg) if t in tags]
        if idx:
            self.I('s_waitcnt lgkmcnt(%d)' % min(len(self.lg) - 1 - idx[-1], 14))

    def drain(self, n=12):
        self.I('s_nop %d' % (n - 1))

    def text(self):
        return '\n'.join(self.out) + '\n'


def vr(base, n=1, k='v'):
    return '%s%d' % (k, base) if n == 1 else '%s[%d:%d]' % (k, base, base + n - 1)


def ar(base, n=1):
    return vr(base, n, 'a')


def sr(base, n=1):
    return vr(base, n, 's')
```

```python
import sys, struct
from asmlib import Asm, vr, ar, sr

NAME = 'gated_mix__ssm_conv_h3__mixer_token_mlp__prompt'
STAMPS = '--stamps' in sys.argv
OUT = [x for x in sys.argv[1:] if not x.startswith('--')][0]
PROBE = [int(x[8:]) for x in sys.argv if x.startswith('--probe=')]
if PROBE:
    STAMPS = True
P = dict(hrot=0, urot=0, outmod='', pollu=130, ypoll=32, arr1=1, arr2=1, kvchk=54, win=10, tail0=0, lead=5, dbg='', ndef=4, ntail=12, dsp=3, usp=4, qeat=44, gfill=1, xrot=0, xrot2=0, nost='', t0=10, tstep=17, uflag=50, ulag=45, fill=2, yflag=15, ychk=46,
         wscript='KL K2L VL GW D0 D1 SSL D2 D3 D4 T0 D5 T1 D6 ML', t4rate=10,
         script='Q CP SA W:GW R:16 LN GATE KC K2C W:SSL R:24 SB SL KF R:4 T4 ST AD BU D13 HP D15 T12')
for x in sys.argv:
    if x.startswith('--p:'):
        k, v = x[4:].split('=')
        assert k in P, k
        P[k] = type(P[k])(v)
f2u = lambda x: struct.unpack('<I', struct.pack('<f', x))[0]

WS_EPOCH = 0
WS_DUMMY = 0x800
WS_FH = 0x1000
WS_FKV = 0x9000
WS_FU = 0xB000
WS_FY = 0x13000
WS_G = 0x18000
WS_ST = 0x20000
WS_HT8 = 0x40000
WS_KV = 0x2C0000
WS_UF = 0x540000
WS_YT = 0x720000
WS_END = 0x9A0000
OOB = 0x7ff00000
RINGW = 24576
L_T4 = 98304
T4SZ = 16512
L_X = 147840
XSZ = 4608
L_LN = L_X
LNROW = 1344
LDS_BYTES = 163840
SPIN_MAX = 200000

sQ, sK, sV, sSK, sHK, sD, sW1, sB1, sW2, sB2, sGW, sOUT, sWS = 4, 6, 8, 10, 12, 14, 18, 20, 22, 24, 26, 28, 30
rWS, rW, rK, rH = 32, 36, 40, 44
sN = 48
sWave, sR, sDT, sFT, sDT2, sST2, sP0, sNCH, sRot, sRing = 50, 51, 52, 53, 54, 55, 56, 57, 58, 59
sKS = 60
sT0, sT1, sSpin = 16, 17, 3
sWoff = 76
sAct = 77
sStamp = 78
sOOB = 94
sRot2 = 95
sx, sj, t2, t3 = 96, 97, 98, 99
sFU, sC40, sChE, sChM = 6, 7, 12, 13
sW2o = [8, 9, 10, 11, 14, 15, 18, 19, 20, 21, 26, 27]
sUo = [40, 41, 42, 43, 44, 45, 46, 47, 0, 1, 30, 31]

a = Asm()
nstamp = [0]
stamp_names = []


def stamp(name):
    if STAMPS and name not in P['nost'].split(','):
        i = nstamp[0]
        nstamp[0] += 1
        stamp_names.append(name)
        assert i < 16
        a.atomic = True
        a('s_memtime s[100:101]' if '--cyc' in sys.argv else 's_memrealtime s[100:101]')
        a('s_waitcnt lgkmcnt(0)')
        a.atomic = False
        a('s_mov_b32 %s, s100' % sr(sStamp + i))


vLane, vG, vU, vN = 1, 2, 3, 4
vT = 6
vWo = 16
vTr = 20
vHo = 24
vB1 = 28
vPoll = 36
vPo = 38
vXa = 40
vMisc = 44
vAe, vBe, vAm, vBm = 52, 53, 54, 55
vADe, vADm = 56, 60
t0, t1, t4 = vT + 4, vT + 5, vT + 6
vTr2, vWo2 = 248, 252


def poll_issue(voff):
    a('buffer_load_dwordx2 %s, %s, %s, 0 offen sc1' % (vr(vPoll, 2), vr(voff), sr(rWS, 4)), tag='poll')


def poll_check(name, voff):
    a.wait_vm('poll')
    a('v_cmp_ne_u64 vcc, %s, %s' % (sr(sN, 2), vr(vPoll, 2)))
    a('s_cbranch_vccz %s_ok' % name)
    save = list(a.vm)
    a('s_mov_b32 %s, 0' % sr(sSpin))
    a.label(name)
    a('buffer_load_dwordx2 %s, %s, %s, 0 offen sc1' % (vr(vPoll, 2), vr(voff), sr(rWS, 4)))
    a('s_waitcnt vmcnt(0)')
    a('v_cmp_ne_u64 vcc, %s, %s' % (sr(sN, 2), vr(vPoll, 2)))
    a('s_add_u32 %s, %s, 1' % (sr(sSpin), sr(sSpin)))
    a('s_cbranch_vccz %s_ok' % name)
    a('s_cmp_lt_u32 %s, %d' % (sr(sSpin), SPIN_MAX))
    a('s_cbranch_scc1 %s' % name)
    a.label(name + '_ok')
    a.vm = save
    a.hist = a.hist[:-8]


def flag(soff):
    a('s_mov_b64 exec, 1')
    a('buffer_store_dwordx2 %s, off, %s, %s sc1' % (vr(vN, 2), sr(rWS, 4), sr(soff)), tag='flag')
    a('s_mov_b64 exec, -1')


def dma_list(which, ks, slot):
    L = []
    if which == 'w1':
        L += [f's_add_u32 s{sWoff}, s{sRot}, {ks}', f's_and_b32 s{sWoff}, s{sWoff}, 15',
              f's_mul_i32 s{sWoff}, s{sWoff}, {32*3072}']
    L.append('s_add_u32 m0, %s, %d' % (sr(sRing), slot * 4096))
    L = [(x, None) for x in L]
    for jj in range(4):
        L.append(('buffer_load_dwordx4 %s, %s, %s offen offset:%d lds' % (
            vr((vWo if which == 'w1' else vWo2) + jj), sr(rW, 4), sr(sWoff if which == 'w1' else sW2o[ks]), 1024 * jj), (which, ks)))
    return L


def D(which, ks, slot):
    for x, t in dma_list(which, ks, slot):
        a(x, tag=t)


def tr_list(which, ks, slot):
    hs = 512 if which == 'w1' else 2048
    return [('ds_read_b64_tr_b16 %s, %s offset:%d' % (
        ar(16 * ks + 4 * n + 2 * hh, 2), vr((vTr if which == 'w1' else vTr2) + n), slot * 4096 + hh * hs), ('tr', which, ks))
        for n in range(4) for hh in range(2)]


def T(which, ks, slot):
    a.wait_vm((which, ks))
    for x, t in tr_list(which, ks, slot):
        a(x, tag=t)


def reduce32(v, tmp):
    for r in (8, 4, 2, 1):
        a('v_add_f32 %s, %s, %s row_ror:%d' % (vr(v), vr(v), vr(v), r))
    a('v_mov_b32 %s, %s' % (vr(tmp), vr(v)))
    a('v_permlane16_swap_b32 %s, %s' % (vr(v), vr(tmp)))
    a('v_add_f32 %s, %s, %s' % (vr(v), vr(v), vr(tmp)))


def chan_of(dst, pos):
    a(f'''
    s_cmp_ge_u32 s{pos}, 320
    s_cselect_b32 s{t3}, 639, 0
    s_lshl_b32 s{dst}, s{pos}, 1
    s_sub_u32 s{dst}, s{dst}, s{t3}
    ''')


a('s_cmp_ge_u32 s2, 256')
a('s_cbranch_scc1 L_end')
a('s_load_dwordx16 s[4:19], s[0:1], 0')
a('s_load_dwordx8 s[20:27], s[0:1], 64')
a('s_load_dwordx2 s[28:29], s[0:1], 96')
a('s_load_dwordx2 s[30:31], s[0:1], 112')
a('v_lshrrev_b32 %s, 6, v0' % vr(vT))
a('v_and_b32 %s, 63, v0' % vr(vLane))
a('v_readfirstlane_b32 %s, %s' % (sr(sWave), vr(vT)))
a('v_lshrrev_b32 %s, 4, %s' % (vr(vG), vr(vLane)))
a('v_and_b32 %s, 15, %s' % (vr(vU), vr(vLane)))
if STAMPS:
    for i in range(16):
        a('s_mov_b32 %s, 0' % sr(sStamp + i))
vQo, vQo2, vL5, vRow = vT, vT + 1, vT + 2, vT + 3
a(f"""
s_and_b32 s{sx}, s2, 7
s_lshr_b32 s{sj}, s2, 3
s_lshl_b32 s{sR}, s{sx}, 5
s_add_u32 s{sR}, s{sR}, s{sj}
v_and_b32 v{vL5}, 31, v0
v_lshrrev_b32 v{vRow}, 5, v0
s_lshl_b32 s{t2}, s{sR}, 3
v_add_u32 v{vQo2}, s{t2}, v{vRow}
v_mul_u32_u24 v{vQo2}, 1280, v{vQo2}
v_lshl_add_u32 v{vQo}, v{vL5}, 4, v{vQo2}
v_lshl_add_u32 v{vQo2}, v{vL5}, 3, v{vQo2}
""")
if P['arr1'] == 2:
    a(f"""
    s_mul_i32 s{t2}, s{sj}, 52
    s_lshr_b32 s{t2}, s{t2}, 8
    s_mul_i32 s{t3}, s{t2}, 5
    s_sub_u32 s{sDT}, s{sj}, s{t3}
    s_mul_i32 s{sRot}, s{sDT}, 3
    s_and_b32 s{t3}, s{sx}, 1
    s_lshl1_add_u32 s{sRot}, s{t3}, s{sRot}
    s_mul_i32 s{t3}, s{t3}, 5
    s_add_u32 s{sDT}, s{sDT}, s{t3}
    s_lshr_b32 s{t3}, s{sx}, 1
    s_mul_i32 s{sFT}, s{t3}, 6
    s_add_u32 s{sFT}, s{sFT}, s{t2}
    """)
else:
    a(f"""
    s_mul_i32 s{t2}, s{sj}, 26
    s_lshr_b32 s{t2}, s{t2}, 8
    s_mul_i32 s{t3}, s{t2}, 10
    s_sub_u32 s{sDT}, s{sj}, s{t3}
    s_mul_i32 s{sRot}, s{sDT}, 13
    s_lshr_b32 s{sRot}, s{sRot}, 3
    s_mul_i32 s{sFT}, s{sx}, 3
    s_add_u32 s{sFT}, s{sFT}, s{t2}
    """)
a(f"""
s_cmp_lt_u32 s{sj}, 30
s_cselect_b32 s{sAct}, 1, 0
s_mul_i32 s{sRing}, s{sWave}, {RINGW}
""")
if P['hrot']:
    a(f"""
    s_mul_i32 s{t2}, s{t2}, {P['hrot']}
    s_lshr_b32 s{t2}, s{t2}, 4
    s_add_u32 s{sRot}, s{sRot}, s{t2}
    """)
if P['xrot']:
    a(f"""
    s_lshr_b32 s{t2}, s{sx}, {P['arr1']-1}
    s_mul_i32 s{t2}, s{t2}, {P['xrot']}
    s_add_u32 s{sRot}, s{sRot}, s{t2}
    """)
a(f"""
v_lshrrev_b32 v{t0}, 3, v{vLane}
v_mul_u32_u24 v{t0}, 3072, v{t0}
s_mul_i32 s{t2}, s{sWave}, {512*3072}
s_lshl_b32 s{t3}, s{sFT}, 7
s_add_u32 s{t2}, s{t2}, s{t3}
v_add_u32 v{t0}, s{t2}, v{t0}
v_and_b32 v{t1}, 7, v{vLane}
v_and_b32 v{t4}, 1, v{vG}
v_lshlrev_b32 v{t4}, 1, v{t4}
v_xor_b32 v{t1}, v{t1}, v{t4}
v_xor_b32 v{t4}, 4, v{t1}
v_lshl_add_u32 v{vWo}, v{t1}, 4, v{t0}
v_lshl_add_u32 v{vWo+1}, v{t4}, 4, v{t0}
v_add_u32 v{vWo+2}, {2*(24576-1024)}, v{vWo}
v_add_u32 v{vWo+3}, {3*(24576-1024)}, v{vWo+1}
v_add_u32 v{vWo+1}, {24576-1024}, v{vWo+1}
""")
vQ = 64
vX = 76
vGWp = 96
vHp = vHt = 108
vKV1, vKV2 = 120, 144
vSS, vSN, vSNew, vK2a = 156, 180, 184, 192
vGa, vGa2, vGs = 236, 237, 238
vK2t, vSa, vSna, vMla, vT4a = 196, 197, 201, 204, 232
vBf = 208
sCh = [96, 97]
vLw, vLw2, vLr, vHs, vHs1, vHs2 = vMisc, vMisc + 1, vMisc + 2, vMisc + 3, vMisc + 4, vMisc + 5
vKo, vKo4, vKoh, vTo, vKs = 240, 241, 242, 243, 234
vDe, vDm = 246, 247
vXg, vXw, vPkv, vUo = vMisc, vMisc + 1, vMisc + 2, vMisc + 4
vUst = 245
vPu = 39
vEr, vYe, vYm, vMw, vMr = 6, 8, 9, 14, 15
vXl = 224
step = {}


def script_step(name):
    def deco(f):
        step[name] = f
        return f
    return deco


@script_step('Q')
def _():
    a('s_waitcnt lgkmcnt(0)')
    stamp('start')
    a('global_load_dwordx4 %s, %s, %s' % (vr(vQ, 4), vr(vQo), sr(sQ, 2)), tag='q')
    a('global_load_dwordx4 %s, %s, %s offset:512' % (vr(vQ + 4, 4), vr(vQo), sr(sQ, 2)), tag='q')
    a('global_load_dwordx2 %s, %s, %s offset:1024' % (vr(vQ + 8, 2), vr(vQo2), sr(sQ, 2)), tag='q')
    a(f"""
    s_load_dwordx2 s[{sN}:{sN+1}], s[{sWS}:{sWS+1}], {WS_EPOCH}
    s_mov_b32 s{rW}, s{sW1}
    s_and_b32 s{rW+1}, s{sW1+1}, 0xffff
    s_mul_i32 s{rW+2}, s{sAct}, {2048*3072}
    s_mov_b32 s{rW+3}, 0x20000
    """)


@script_step('SA')
def _():
    if P['arr2'] == 2:
        a(f"""
        s_and_b32 s{t3}, s{sx}, 1
        s_lshl_b32 s{sDT2}, s{t3}, 2
        s_lshl_b32 s{sRot2}, s{t3}, 1
        s_lshr_b32 s{t3}, s{sx}, 1
        s_lshl_b32 s{sST2}, s{t3}, 3
        s_lshr_b32 s{t2}, s{sj}, 2
        s_add_u32 s{sST2}, s{sST2}, s{t2}
        s_and_b32 s{t3}, s{sj}, 3
        s_add_u32 s{sDT2}, s{sDT2}, s{t3}
        s_mul_i32 s{t3}, s{t3}, 3
        s_add_u32 s{sRot2}, s{sRot2}, s{t3}
        """)
    else:
        a(f"""
        s_and_b32 s{sDT2}, s{sj}, 7
        s_lshr_b32 s{t2}, s{sj}, 3
        s_lshl2_add_u32 s{sST2}, s{sx}, s{t2}
        s_mul_i32 s{sRot2}, s{sDT2}, 3
        s_lshr_b32 s{sRot2}, s{sRot2}, 1
        """)
    if P['urot']:
        a(f"""
        s_mul_i32 s{t2}, s{t2}, {P['urot']}
        s_lshr_b32 s{t2}, s{t2}, 4
        s_add_u32 s{sRot2}, s{sRot2}, s{t2}
        s_cmp_ge_u32 s{sRot2}, 12
        s_cselect_b32 s{t3}, 12, 0
        s_sub_u32 s{sRot2}, s{sRot2}, s{t3}
        """)
    if P['xrot2']:
        a(f"""
        s_lshr_b32 s{t2}, s{sx}, {P['arr2']-1}
        s_mul_i32 s{t2}, s{t2}, {P['xrot2']}
        s_lshr_b32 s{t2}, s{t2}, 1
        s_add_u32 s{sRot2}, s{sRot2}, s{t2}
        s_cmp_ge_u32 s{sRot2}, 12
        s_cselect_b32 s{t3}, 12, 0
        s_sub_u32 s{sRot2}, s{sRot2}, s{t3}
        """)
    a(f"""
    s_mul_i32 s{sP0}, s{sx}, 80
    s_lshr_b32 s{t3}, s{sj}, 1
    s_mul_i32 s{t3}, s{t3}, 5
    s_add_u32 s{sP0}, s{sP0}, s{t3}
    s_and_b32 s{t3}, s{sj}, 1
    s_sub_u32 s{sNCH}, 3, s{t3}
    s_mul_i32 s{t3}, s{t3}, 3
    s_add_u32 s{sP0}, s{sP0}, s{t3}
    s_mov_b32 s{sOOB}, {OOB}
    s_mov_b32 s{rWS}, s{sWS}
    s_and_b32 s{rWS+1}, s{sWS+1}, 0xffff
    s_mov_b32 s{rWS+2}, {WS_END}
    s_mov_b32 s{rWS+3}, 0x20000
    s_mov_b32 s{rK}, s{sK}
    s_and_b32 s{rK+1}, s{sK+1}, 0xffff
    s_mov_b32 s{rK+2}, {2048*1280}
    s_mov_b32 s{rK+3}, 0x20000
    s_mov_b32 s{rH}, s{sHK}
    s_and_b32 s{rH+1}, s{sHK+1}, 0xffff
    s_mov_b32 s{rH+2}, {640*4096}
    s_mov_b32 s{rH+3}, 0x20000
    """)
    chan_of(sCh[0], sP0)
    a(f"""
    s_add_u32 s{t2}, s{sP0}, s{sNCH}
    s_sub_u32 s{t2}, s{t2}, 1
    """)
    chan_of(sChE, t2)
    a(f"""
    s_lshr_b32 s{t2}, s{sWave}, 1
    s_add_u32 s{t2}, s{t2}, s{sP0}
    """)
    chan_of(sChM, t2)
    a(f"""
    s_mov_b32 s{sC40}, 40960
    v_lshrrev_b32 v{t0}, 2, v{vU}
    v_lshl_add_u32 v{t0}, v{vG}, 3, v{t0}
    v_lshlrev_b32 v{t0}, 7, v{t0}
    v_and_b32 v{t1}, 3, v{vU}
    v_lshl_add_u32 v{t0}, v{t1}, 3, v{t0}
    v_add_u32 v{t0}, s{sRing}, v{t0}
    v_lshrrev_b32 v{t1}, 3, v{vU}
    v_and_b32 v{t4}, 1, v{vG}
    v_lshl_add_u32 v{t1}, v{t4}, 1, v{t1}
    """)
    for n in range(4):
        a(f"""
        v_xor_b32 v{t4}, {n}, v{t1}
        v_lshl_add_u32 v{vTr+n}, v{t4}, 5, v{t0}
        """)
    a(f"""
    v_mul_u32_u24 v{vLw2}, {LNROW}, v{vRow}
    v_add_u32 v{vLw2}, {L_LN}, v{vLw2}
    v_lshl_add_u32 v{vLw}, v{vL5}, 4, v{vLw2}
    v_lshl_add_u32 v{vLw2}, v{vL5}, 3, v{vLw2}
    v_lshrrev_b32 v{t0}, 2, v{vU}
    v_mul_u32_u24 v{t0}, {LNROW}, v{t0}
    v_and_b32 v{t1}, 3, v{vU}
    v_lshl_add_u32 v{t0}, v{t1}, 3, v{t0}
    v_lshl_add_u32 v{t0}, v{vG}, 5, v{t0}
    s_lshl_b32 s{t2}, s{sWave}, 7
    s_add_u32 s{t2}, s{t2}, {L_LN}
    v_add_u32 v{vLr}, s{t2}, v{t0}
    s_mul_i32 s{t3}, s{sR}, 10240
    s_add_u32 s{t2}, s{t3}, {WS_HT8}
    v_lshl_add_u32 v{vHs}, v0, 4, s{t2}
    v_add_u32 v{vHs1}, 4096, v{vHs}
    s_cmp_lt_u32 s{sWave}, 2
    s_cselect_b32 s{t2}, 8192, s{sOOB}
    v_add_u32 v{vHs2}, s{t2}, v{vHs}
    v_lshl_add_u32 v{vKo}, v0, 2, s{t3}
    v_add_u32 v{vKo4}, 5120, v{vKo}
    v_subrev_u32 v{vKoh}, 3840, v{vKo}
    v_lshlrev_b32 v{vTo}, 4, v0
    v_add_u32 v{vKs}, {WS_KV-WS_HT8}, v{vHs}
    v_add_u32 v{vKs+1}, 5120, v{vKs}
    v_lshlrev_b32 v{vGa}, 4, v{vL5}
    v_lshlrev_b32 v{vGa2}, 3, v{vL5}
    s_lshl_b32 s{t2}, s{sR}, 5
    s_add_u32 s{t2}, s{t2}, {WS_G}
    v_lshl_add_u32 v{vGs}, v{vRow}, 2, s{t2}
    v_mul_u32_u24 v{t0}, 2560, v{vG}
    s_lshl_b32 s{t2}, s{sWave}, 6
    v_lshl_add_u32 v{t1}, v{vU}, 2, s{t2}
    s_add_u32 s{t3}, s{t3}, {1024+3840}
    v_sub_u32 v{t0}, v{t1}, v{t0}
    v_add_u32 v{vK2a}, s{t3}, v{t0}
    v_lshlrev_b32 v{t1}, 2, v{t1}
    v_add_u32 v{vK2t}, 4096, v{t1}
    v_add_u32 v{vK2a+1}, 1280, v{vK2a}
    v_add_u32 v{vK2a+2}, 2560, v{vK2a}
    v_add_u32 v{vK2a+3}, 3840, v{vK2a}
    s_lshl_b32 s{t2}, s{sWave}, 10
    v_lshl_add_u32 v{t0}, v{vLane}, 3, s{t2}
    v_lshl_add_u32 v{vSa}, s{sCh[0]}, 12, v{t0}
    v_add_u32 v{vSa+1}, 8192, v{vSa}
    v_lshl_add_u32 v{vSa+2}, s{sChE}, 12, v{t0}
    s_lshl1_add_u32 s{t2}, s{sWave}, s{sCh[0]}
    s_min_u32 s{t2}, s{t2}, s{sChE}
    s_lshl_b32 s{t2}, s{t2}, 12
    """)
    for jj in range(3):
        a(f"""
        v_subrev_u32 v{t0}, {8-jj}, v{vLane}
        v_lshl_add_u32 v{t1}, v{t0}, 2, s{t2}
        v_and_or_b32 v{vSna+jj}, v{t0}, s{sOOB}, v{t1}
        """)
    a(f"""
    v_lshlrev_b32 v{vMla}, 1, s{sChE}
    v_lshlrev_b32 v{vMla+1}, 1, s{sChM}
    s_min_u32 s{t2}, s{sFT}, 23
    s_lshl_b32 s{t2}, s{t2}, 7
    v_lshl_add_u32 v{vMla+2}, v{vG}, 3, s{t2}
    """)


@script_step('CP')
def _():
    a.raw('    s_getpc_b64 s[16:17]')
    a.label('L_pc')
    a(f"""
    s_lshl2_add_u32 s{t2}, s{sj}, s{sWave}
    s_lshl_b32 s{t2}, s{t2}, 8
    v_lshl_add_u32 v{t0}, v{vLane}, 6, s{t2}
    v_min_u32 v{t0}, L_end-L_pc, v{t0}
    s_mov_b64 exec, 15
    global_load_dword v200, v{t0}, s[16:17]
    s_mov_b64 exec, -1
    """)


@script_step('LN')
def _():
    a.wait_vm('q')
    stamp('q')
    for i in range(10):
        a('v_lshlrev_b32 %s, 16, %s' % (vr(vX + 2 * i), vr(vQ + i)))
        a('v_and_b32 %s, 0xffff0000, %s' % (vr(vX + 2 * i + 1), vr(vQ + i)))
    vS = vT + 4
    a('v_pk_add_f32 %s, %s, %s' % (vr(vS, 2), vr(vX, 2), vr(vX + 2, 2)))
    a('v_pk_add_f32 %s, %s, %s' % (vr(vS + 2, 2), vr(vX + 4, 2), vr(vX + 6, 2)))
    for i in range(4, 10):
        d = vS + 2 * (i & 1)
        a('v_pk_add_f32 %s, %s, %s' % (vr(d, 2), vr(d, 2), vr(vX + 2 * i, 2)))
    a('v_pk_add_f32 %s, %s, %s' % (vr(vS, 2), vr(vS, 2), vr(vS + 2, 2)))
    a('v_add_f32 %s, %s, %s' % (vr(vS), vr(vS), vr(vS + 1)))
    reduce32(vS, vS + 1)
    a('v_mul_f32 %s, 0x%08x, %s' % (vr(vS), f2u(-1.0 / 640), vr(vS)))
    for i in range(10):
        a('v_pk_add_f32 %s, %s, %s op_sel_hi:[1,0]' % (vr(vX + 2 * i, 2), vr(vX + 2 * i, 2), vr(vS, 2)))
    a('v_pk_mul_f32 %s, %s, %s' % (vr(vS, 2), vr(vX, 2), vr(vX, 2)))
    a('v_pk_mul_f32 %s, %s, %s' % (vr(vS + 2, 2), vr(vX + 2, 2), vr(vX + 2, 2)))
    for i in range(2, 10):
        d = vS + 2 * (i & 1)
        a('v_pk_fma_f32 %s, %s, %s, %s' % (vr(d, 2), vr(vX + 2 * i, 2), vr(vX + 2 * i, 2), vr(d, 2)))
    a('v_pk_add_f32 %s, %s, %s' % (vr(vS, 2), vr(vS, 2), vr(vS + 2, 2)))
    a('v_add_f32 %s, %s, %s' % (vr(vS), vr(vS), vr(vS + 1)))
    reduce32(vS, vS + 1)
    a('v_mov_b32 %s, 0x%08x' % (vr(vS + 1), f2u(1e-5)))
    a('v_fmac_f32 %s, 0x%08x, %s' % (vr(vS + 1), f2u(1.0 / 640), vr(vS)))
    a('v_rsq_f32 %s, %s' % (vr(vS), vr(vS + 1)))
    for i in range(10):
        a('v_pk_mul_f32 %s, %s, %s op_sel_hi:[1,0]' % (vr(vX + 2 * i, 2), vr(vX + 2 * i, 2), vr(vS, 2)))
    for i in range(10):
        a('v_cvt_pk_bf16_f32 %s, %s, %s' % (vr(vHp + i), vr(vX + 2 * i), vr(vX + 2 * i + 1)))
    a('ds_write_b128 %s, %s' % (vr(vLw), vr(vHp, 4)))
    a('ds_write_b128 %s, %s offset:512' % (vr(vLw), vr(vHp + 4, 4)))
    a('ds_write_b64 %s, %s offset:1024' % (vr(vLw2), vr(vHp + 8, 2)))
    a('s_waitcnt lgkmcnt(0)')
    a('s_barrier')
    for m in range(3):
        for hh in range(2):
            a('ds_read_b64_tr_b16 %s, %s offset:%d' % (
                vr(vHt + 4 * m + 2 * hh, 2), vr(vLr), 512 * m + 4 * LNROW * hh), tag=('ht', m))
    a(f"""
    s_add_u32 s{sN}, s{sN}, 0x9e3779b1
    s_add_u32 s{sN+1}, s{sN+1}, 0x85ebca77
    v_mov_b32 v{vN}, s{sN}
    v_mov_b32 v{vN+1}, s{sN+1}
    """)
    for m, vo in enumerate((vHs, vHs1, vHs2)):
        a.wait_lg(('ht', m))
        a('buffer_store_dwordx4 %s, %s, %s, 0 offen sc1' % (vr(vHt + 4 * m, 4), vr(vo), sr(rWS, 4)), tag='hst')
    stamp('hst')


small = {}
small['GW'] = [('global_load_dwordx4 %s, %s, %s' % (vr(vGWp, 4), vr(vGa), sr(sGW, 2)), 'gw'),
               ('global_load_dwordx4 %s, %s, %s offset:512' % (vr(vGWp + 4, 4), vr(vGa), sr(sGW, 2)), 'gw'),
               ('global_load_dwordx2 %s, %s, %s offset:1024' % (vr(vGWp + 8, 2), vr(vGa2), sr(sGW, 2)), 'gw')]
small['KL'] = []
for r in list(range(3, 11)) + [0, 1, 2]:
    vo, off = ((vKoh, 1280 * r) if r < 3 else (vKo, 1280 * (r - 3)) if r < 7 else (vKo4, 1280 * (r - 7)))
    small['KL'].append(('buffer_load_dword %s, %s, %s, 0 offen offset:%d' % (
        vr(vKV1 + 4 + r), vr(vo), sr(rK, 4), off), 'kv1'))
small['KL'].append(('global_load_dwordx4 %s, %s, %s' % (vr(vKV1, 4), vr(vTo), sr(sSK, 2)), 'kv1'))
small['VL'] = []
for r in range(8):
    vo, off = ((vKo, 1280 * r) if r < 4 else (vKo4, 1280 * (r - 4)))
    small['VL'].append(('global_load_dword %s, %s, %s offset:%d' % (vr(vKV1 + 15 + r), vr(vo), sr(sV, 2), off), 'kv1'))
small['K2L'] = [('buffer_load_dword %s, %s, %s, 0 offen offset:%d' % (
    vr(vKV2 + 4 + m), vr(vK2a + min(m, 3)), sr(rK, 4), 1280 if m == 4 else 0), 'kv2') for m in range(5)]
small['K2L'] += [('global_load_dword %s, %s, %s offset:%d' % (
    vr(vKV2 + 9 + m), vr(vK2a + 3), sr(sV, 2), 1280 * m), 'kv2') for m in range(2)]
small['K2L'].append(('global_load_dwordx4 %s, %s, %s' % (vr(vKV2, 4), vr(vK2t), sr(sSK, 2)), 'kv2'))
small['SSL'] = [('buffer_load_dwordx4 %s, %s, %s, 0 offen offset:%d' % (
    vr(vSS + 8 * t + 4 * c, 4), vr(vSa + t), sr(rH, 4), 512 * c), 'ss') for t in range(3) for c in range(2)]
small['SSL'] += [('buffer_load_dword %s, %s, %s, 0 offen' % (vr(vSN + jj), vr(vSna + jj), sr(rH, 4)), 'ss')
                 for jj in range(3)]
small['ML'] = [('global_load_ushort %s, %s, %s' % (vr(vDe), vr(vMla), sr(sD, 2)), 'dd'),
               ('global_load_ushort %s, %s, %s' % (vr(vDm), vr(vMla + 1), sr(sD, 2)), 'dd')]
small['ML'] += [('global_load_dwordx2 %s, %s, %s offset:%d' % (
    vr(vB1 + 2 * n, 2), vr(vMla + 2), sr(sB1, 2), 32 * n), 'b1') for n in range(4)]

W = []


def w_dma(i):
    L = dma_list('w1', i, i % 6)
    pre = [lambda: a.wait_lg(('tr', 'w1', i - 6))] if i >= 6 else []
    W.append(('D', i, False, pre + L[:-3]))
    for k in range(3):
        W.append(('D', i, k == 2, [L[-3 + k]]))


def w_tr(i):
    L = tr_list('w1', i, i % 6)
    W.append(('T', i, False, [lambda: a.wait_vm(('w1', i))] + L[:4]))
    W.append(('T', i, True, L[4:]))


nd = nt = 0
for tok in P['wscript'].replace('_', ' ').split():
    if tok in small:
        for k, it in enumerate(small[tok]):
            W.append(('W', tok, k == len(small[tok]) - 1, [it]))
    elif tok[0] == 'D':
        assert int(tok[1:]) == nd and nd < nt + 6
        w_dma(nd)
        nd += 1
    else:
        assert int(tok[1:]) == nt and nt < nd
        w_tr(nt)
        nt += 1
while nt < 16:
    w_tr(nt)
    nt += 1
    while nd < 16 and nd < nt + 5:
        w_dma(nd)
        nd += 1
T4Q = []
wdone = set()


def w_atom():
    kind, i, fin_, items = W.pop(0)
    was = a.in_hook
    a.in_hook = True
    for it in items:
        emit(it)
    a.in_hook = was
    if fin_:
        wdone.add((kind, i))


def w_until(kind, i):
    n = 0
    while (kind, i) not in wdone:
        w_atom()
        n += 1
        if T4Q and n % 2 == 0:
            was = a.in_hook
            a.in_hook = True
            T4Q.pop(0)()
            a.in_hook = was


rate, since = [0], [0, 0]


def w_hook():
    since[0] += 1
    if rate[0] and since[0] >= rate[0] and W:
        since[0] = 0
        w_atom()
    since[1] += 1
    if T4Q and since[1] >= P['t4rate']:
        since[1] = 0
        T4Q.pop(0)()


@script_step('GATE')
def _():
    w_until('W', 'GW')
    a.wait_vm('gw')
    vZ = vT + 4
    a('v_mov_b32 %s, 0' % vr(vZ))
    for i in range(10):
        a('v_dot2_f32_bf16 %s, %s, %s, %s' % (vr(vZ), vr(vQ + i), vr(vGWp + i), vr(vZ)))
    reduce32(vZ, vZ + 1)
    a(f"""
    v_mul_f32 v{vZ}, 0xbfb8aa3b, v{vZ}
    v_exp_f32 v{vZ}, v{vZ}
    v_add_f32 v{vZ}, 1.0, v{vZ}
    v_rcp_f32 v{vZ}, v{vZ}
    s_mov_b32 exec_lo, 1
    s_mov_b32 exec_hi, 1
    """)
    a('buffer_store_dword %s, %s, %s, 0 offen sc1' % (vr(vZ), vr(vGs), sr(rWS, 4)), tag='kvst')
    a('s_mov_b64 exec, -1')


vP, vKu, vAcc, vVt, vKp = 64, 72, 94, 110, 112


def kv_compute(b):
    for c in range(2):
        for h in range(2):
            a('v_lshlrev_b32 %s, 16, %s' % (vr(vP + 4 * h + c), vr(b + 2 * c + h)))
            a('v_and_b32 %s, 0xffff0000, %s' % (vr(vP + 4 * h + 2 + c), vr(b + 2 * c + h)))
    for r in range(11):
        a('v_lshlrev_b32 %s, 16, %s' % (vr(vKu + 2 * r), vr(b + 4 + r)))
        a('v_and_b32 %s, 0xffff0000, %s' % (vr(vKu + 2 * r + 1), vr(b + 4 + r)))
    for r in range(8):
        d = vr(vAcc + 2 * r, 2)
        a('v_pk_mul_f32 %s, %s, %s' % (d, vr(vP + 6, 2), vr(vKu + 2 * r, 2)))
        a('v_lshlrev_b32 %s, 16, %s' % (vr(vVt), vr(b + 15 + r)))
        for j in (2, 1, 0):
            a('v_pk_fma_f32 %s, %s, %s, %s' % (d, vr(vP + 2 * j, 2), vr(vKu + 2 * (r + 3 - j), 2), d))
        a('v_and_b32 %s, 0xffff0000, %s' % (vr(vVt + 1), vr(b + 15 + r)))
        a('v_pk_mul_f32 %s, %s, %s' % (d, d, vr(vVt, 2)))
    for c in range(2):
        for j in range(4):
            a('v_cvt_pk_bf16_f32 %s, %s, %s' % (
                vr(vKp + 4 * c + j), vr(vAcc + 2 * (7 - 2 * j) + c), vr(vAcc + 2 * (6 - 2 * j) + c)))
    a('buffer_store_dwordx4 %s, %s, %s, 0 offen sc1' % (vr(vKp, 4), vr(vKs), sr(rWS, 4)), tag='kvst')
    a('buffer_store_dwordx4 %s, %s, %s, 0 offen sc1' % (vr(vKp + 4, 4), vr(vKs + 1), sr(rWS, 4)), tag='kvst')


@script_step('KC')
def _():
    w_until('W', 'KL')
    w_until('W', 'VL')
    a.wait_vm('kv1')
    kv_compute(vKV1)


@script_step('K2C')
def _():
    b = vKV2
    w_until('W', 'K2L')
    a.wait_vm('kv2')
    for c in range(2):
        for h in range(2):
            a('v_lshlrev_b32 %s, 16, %s' % (vr(vP + 4 * h + c), vr(b + 2 * c + h)))
            a('v_and_b32 %s, 0xffff0000, %s' % (vr(vP + 4 * h + 2 + c), vr(b + 2 * c + h)))
    for r in range(7):
        a('v_lshlrev_b32 %s, 16, %s' % (vr(vKu + 2 * r), vr(b + 4 + r)))
        a('v_and_b32 %s, 0xffff0000, %s' % (vr(vKu + 2 * r + 1), vr(b + 4 + r)))
    for r in range(2):
        d = vr(vAcc + 2 * r, 2)
        a('v_pk_mul_f32 %s, %s, %s' % (d, vr(vP + 6, 2), vr(vKu + 2 * r, 2)))
        for j in (2, 1, 0):
            a('v_pk_fma_f32 %s, %s, %s, %s' % (d, vr(vP + 2 * j, 2), vr(vKu + 2 * (r + 3 - j), 2), d))
        a('v_pk_mul_f32 %s, %s, %s' % (d, d, vr(vKu + 10 + 2 * r, 2)))
    a(f"""
    s_mul_i32 s{t2}, s{sR}, 10240
    s_add_u32 s{t2}, s{t2}, {WS_KV+4096}
    s_lshl_b32 s{t3}, s{sWave}, 8
    s_add_u32 s{t2}, s{t2}, s{t3}
    v_lshl_add_u32 v{t0}, v{vU}, 4, s{t2}
    v_lshl_add_u32 v{t0}, v{vG}, 2, v{t0}
    v_add_u32 v{t1}, 5120, v{t0}
    """)
    for c in range(2):
        a('v_cvt_pk_bf16_f32 %s, %s, %s' % (vr(vAcc + 4 + c), vr(vAcc + 2 + c), vr(vAcc + c)))
        a('buffer_store_dword %s, %s, %s, 0 offen sc1' % (vr(vAcc + 4 + c), vr((t0, t1)[c]), sr(rWS, 4)), tag='kvst')
    stamp('kvst')


@script_step('T4')
def _():
    w_until('W', 'SSL')
    a(f"""
    s_min_u32 s{t2}, s{sWave}, 2
    s_mul_i32 s{t2}, s{t2}, {T4SZ}
    s_add_u32 s{t2}, s{t2}, {L_T4}
    v_lshl_add_u32 v{vT4a}, v{vLane}, 4, s{t2}
    s_lshl_b32 s{t2}, s{sWave}, 12
    s_add_u32 s{t2}, s{t2}, {L_T4+128}
    v_lshl_add_u32 v{vT4a+1}, v{vLane}, 5, s{t2}
    """)

    def neg():
        a.wait_vm('ss')
        q = vSN
        a('v_alignbit_b32 %s, %s, %s, 16' % (vr(q + 3), vr(q + 2), vr(q + 1)))
        a('v_alignbit_b32 %s, %s, %s, 16' % (vr(q + 2), vr(q + 1), vr(q)))
        a('ds_write_b128 %s, %s' % (vr(vT4a), vr(q, 4)), tag='t4')

    def hi(t, c):
        r, n = vSS + 8 * t + 4 * c, vSNew + 4 * c
        a('v_pk_mov_b32 %s, %s, %s op_sel:[1,0]' % (vr(n, 2), vr(r, 2), vr(r + 2, 2)))
        a('v_alignbit_b32 %s, %s, %s, 16' % (vr(n + 3), vr(r + 3), vr(r + 2)))
        a('v_alignbit_b32 %s, %s, %s, 16' % (vr(n + 2), vr(r + 2), vr(r + 1)))
        a('ds_write_b128 %s, %s offset:%d' % (vr(vT4a + 1), vr(n, 4), T4SZ * t + 2048 * c + 16), tag='t4')

    def lo(t, c):
        r = vSS + 8 * t + 4 * c
        a('v_alignbit_b32 %s, %s, %s, 16' % (vr(r + 3), vr(r + 2), vr(r + 1)))
        a('v_alignbit_b32 %s, %s, %s, 16' % (vr(r + 2), vr(r + 1), vr(r)))
        a('ds_write_b128 %s, %s offset:%d' % (vr(vT4a + 1), vr(r, 4), T4SZ * t + 2048 * c), tag='t4')

    T4Q.append(neg)
    for t in range(3):
        for c in range(2):
            T4Q.append(lambda t=t, c=c: hi(t, c))
            T4Q.append(lambda t=t, c=c: lo(t, c))


@script_step('KF')
def _():
    a.wait_vm('kvst')
    a.wait_vm('hst')
    a('s_barrier')
    a(f"""
    s_lshl_b32 s{t2}, s{sR}, 5
    s_add_u32 s{t2}, s{t2}, {WS_FKV}
    s_cmp_eq_u32 s{sWave}, 0
    s_cbranch_scc0 L_nokvflag
    """)
    a.cond = True
    flag(t2)
    a.cond = False
    a.label('L_nokvflag')
    stamp('kvflag')
    a(f"""
    s_mul_i32 s{t2}, s{sWave}, {XSZ}
    s_add_u32 s{t2}, s{t2}, {L_X}
    v_lshl_add_u32 v{t0}, v{vLane}, 3, s{t2}
    v_mov_b32 v{t4}, 0
    v_mov_b32 v{t4+1}, 0
    ds_write_b64 v{t0}, v[{t4}:{t4+1}]
    """)


@script_step('SB')
def _():
    for ks in range(16):
        a(f"""
        s_add_u32 s{t2}, s{sRot}, {ks}
        s_and_b32 s{t2}, s{t2}, 15
        s_mul_i32 s{sKS+ks}, s{t2}, s{sC40}
        """)
    a(f"""
    s_lshl_b32 s{t2}, s{sDT}, 2
    s_add_u32 s{t2}, s{t2}, s{sWave}
    s_mul_i32 s{t3}, s{sFT}, 80
    s_add_u32 s{t3}, s{t3}, s{t2}
    s_lshl_b32 s{t3}, s{t3}, 10
    s_add_u32 s{t3}, s{t3}, {WS_UF}
    v_lshl_add_u32 v{vUst}, v{vLane}, 4, s{t3}
    s_mul_i32 s{t2}, s{t2}, 24
    s_add_u32 s{t2}, s{t2}, s{sFT}
    s_lshl_b32 s{t2}, s{t2}, 5
    s_add_u32 s{t2}, s{t2}, {WS_FU}
    s_cmp_eq_u32 s{sAct}, 1
    s_cselect_b32 s{sFU}, s{t2}, {WS_DUMMY}
    v_lshlrev_b32 v{vPo}, 5, v0
    v_add_u32 v{vPo}, {WS_FKV}, v{vPo}
    v_mul_u32_u24 v{t0}, 10240, v{vG}
    v_lshl_add_u32 v{t0}, v{vU}, 4, v{t0}
    s_mul_i32 s{t2}, s{sWave}, {64*10240}
    s_lshl_b32 s{t3}, s{sDT}, 10
    s_add_u32 s{t2}, s{t2}, s{t3}
    s_add_u32 s{t2}, s{t2}, {WS_HT8}
    """)
    for st in range(4):
        a(f"""
        s_add_u32 s{t3}, s{sWave}, {st+1}
        s_and_b32 s{t3}, s{t3}, 3
        s_lshl_b32 s{t3}, s{t3}, 8
        s_add_u32 s{t3}, s{t3}, s{t2}
        v_add_u32 v{vHo+st}, s{t3}, v{t0}
        """)
    a(f'v_lshl_add_u32 v{vXa+3}, v{vLane}, 4, s{sRing}')
    for st in range(3):
        a(f"""
        s_add_u32 s{t3}, s{sWave}, {3-st}
        s_and_b32 s{t3}, s{t3}, 3
        s_mul_i32 s{t3}, s{t3}, {RINGW}
        v_lshl_add_u32 v{vXa+st}, v{vLane}, 4, s{t3}
        """)


step['HP'] = lambda: poll_issue(vPo)


def late_setup():
    L = lines(f"""
    v_lshrrev_b32 v{t0}, 2, v{vLane}
    v_and_b32 v{t1}, 3, v{vLane}
    v_mul_u32_u24 v{t4}, 10240, v{t0}
    v_lshl_add_u32 v{t4}, v{t1}, 4, v{t4}
    s_mul_i32 s{t2}, s{sWave}, {64*10240}
    s_lshl_b32 s{t3}, s{sP0}, 4
    s_add_u32 s{t2}, s{t2}, s{t3}
    s_add_u32 s{t2}, s{t2}, {WS_KV}
    v_add_u32 v{t4}, s{t2}, v{t4}
    v_cmp_gt_u32 vcc, s{sNCH}, v{t1}
    v_mov_b32 v{vXg}, s{sOOB}
    v_mul_u32_u24 v{t1}, {XSZ}, v{t1}
    v_cndmask_b32 v{vXg}, v{vXg}, v{t4}, vcc
    v_lshl_add_u32 v{t1}, v{t0}, 4, v{t1}
    s_lshl_b32 s{t2}, s{sWave}, 10
    s_add_u32 s{t2}, s{t2}, {L_X+512}
    v_add_u32 v{vXw}, s{t2}, v{t1}
    v_lshlrev_b32 v{t0}, 7, v{t0}
    v_and_b32 v{t1}, 3, v{vU}
    v_lshl_add_u32 v{t0}, v{t1}, 3, v{t0}
    v_add_u32 v{t0}, s{sRing}, v{t0}
    v_bfe_u32 v{t1}, v{vLane}, 3, 2
    """)
    for n in range(4):
        L += lines(f"""
        s_add_u32 s{t2}, s{sWave}, {n}
        s_and_b32 s{t2}, s{t2}, 3
        v_xor_b32 v{t4}, s{t2}, v{t1}
        v_lshl_add_u32 v{vTr2+n}, v{t4}, 5, v{t0}
        """)
    L += lines(f"""
    v_lshlrev_b32 v{t0}, 3, v{vU}
    v_lshlrev_b32 v{t1}, 6, v{vG}
    v_sub_u32 v{t0}, v{t0}, v{t1}
    s_lshl_b32 s{t2}, s{sWave}, 9
    s_add_u32 s{t2}, s{t2}, {L_T4+2*T4SZ+200}
    v_add_u32 v{vAe}, s{t2}, v{t0}
    s_lshr_b32 s{t2}, s{sWave}, 1
    s_mul_i32 s{t2}, s{t2}, {T4SZ}
    s_and_b32 s{t3}, s{sWave}, 1
    s_lshl_b32 s{t3}, s{t3}, 10
    s_add_u32 s{t2}, s{t2}, s{t3}
    s_add_u32 s{t2}, s{t2}, {L_T4+200}
    v_add_u32 v{vAm}, s{t2}, v{t0}
    v_lshlrev_b32 v{t0}, 5, v{vU}
    v_lshl_add_u32 v{t4}, v{vG}, 4, v{t0}
    s_lshl_b32 s{t2}, s{sWave}, 7
    s_sub_u32 s{t2}, {L_X+2*XSZ+480-64}, s{t2}
    v_add_u32 v{vBe}, s{t2}, v{t4}
    s_lshr_b32 s{t2}, s{sWave}, 1
    s_mul_i32 s{t2}, s{t2}, {XSZ}
    s_lshr_b32 s{t3}, s{t3}, 2
    s_sub_u32 s{t2}, s{t2}, s{t3}
    s_add_u32 s{t2}, s{t2}, {L_X+480-192}
    v_add_u32 v{vBm}, s{t2}, v{t4}
    s_lshl_b32 s{t2}, s{sWave}, 11
    s_add_u32 s{t2}, s{t2}, {4*4096}
    v_lshl_add_u32 v{vEr}, v{vLane}, 4, s{t2}
    v_add_u32 v{vEr+1}, {2*RINGW}, v{vEr}
    v_and_b32 v{t1}, 1, v{vG}
    v_lshl_add_u32 v{t0}, v{t1}, 9, v{t0}
    v_lshrrev_b32 v{t1}, 1, v{vG}
    v_lshl_add_u32 v{t0}, v{t1}, 4, v{t0}
    s_lshl_b32 s{t2}, s{sChE}, 2
    s_add_u32 s{t2}, s{t2}, s{sWave}
    s_lshl_b32 s{t2}, s{t2}, 10
    s_add_u32 s{t2}, s{t2}, {WS_YT}
    s_cmp_eq_u32 s{sNCH}, 3
    s_cselect_b32 s{t2}, s{t2}, s{sOOB}
    v_add_u32 v{vYe}, s{t2}, v{t0}
    s_and_b32 s{t2}, s{sWave}, 1
    s_lshl1_add_u32 s{t2}, s{sChM}, s{t2}
    s_lshl_b32 s{t2}, s{t2}, 11
    s_add_u32 s{t2}, s{t2}, {WS_YT}
    v_add_u32 v{vYm}, s{t2}, v{t0}
    s_lshl_b32 s{t2}, s{sWave}, 12
    s_add_u32 s{t3}, s{t2}, {L_T4+2*T4SZ}
    v_lshl_add_u32 v{vMw}, v{vLane}, 4, s{t3}
    s_xor_b32 s{t2}, s{t2}, 4096
    s_add_u32 s{t3}, s{t2}, {L_T4+2*T4SZ}
    v_lshl_add_u32 v{vMr}, v{vLane}, 4, s{t3}
    s_mul_i32 s{t2}, s{sWave}, {12*40960}
    s_mul_i32 s{t3}, s{sDT2}, 5120
    s_add_u32 s{t2}, s{t2}, s{t3}
    s_add_u32 s{t2}, s{t2}, {WS_UF}
    v_lshl_add_u32 v{vUo}, v{vLane}, 4, s{t2}
    v_add_u32 v{vUo+1}, 4096, v{vUo}
    v_min_u32 v{t0}, 29, v{vLane}
    v_mul_u32_u24 v{t1}, 43, v{t0}
    v_lshrrev_b32 v{t1}, 8, v{t1}
    v_mul_u32_u24 v{t1}, 18, v{t1}
    v_add_u32 v{t0}, v{t0}, v{t1}
    s_mul_i32 s{t2}, s{sDT2}, 120
    s_mul_i32 s{t3}, s{sWave}, 6
    s_add_u32 s{t2}, s{t2}, s{t3}
    s_lshl_b32 s{t2}, s{t2}, 5
    s_add_u32 s{t2}, s{t2}, {WS_FU}
    v_lshl_add_u32 v{vPu}, v{t0}, 5, s{t2}
    v_lshrrev_b32 v{t0}, 3, v{vLane}
    v_lshlrev_b32 v{t0}, 12, v{t0}
    s_mul_i32 s{t2}, s{sWave}, {384*4096}
    s_lshl_b32 s{t3}, s{sST2}, 7
    s_add_u32 s{t2}, s{t2}, s{t3}
    v_add_u32 v{t0}, s{t2}, v{t0}
    v_and_b32 v{t1}, 7, v{vLane}
    v_lshlrev_b32 v{t4}, 1, v{vG}
    v_xor_b32 v{t1}, v{t1}, v{t4}
    v_lshl_add_u32 v{vWo2}, v{t1}, 4, v{t0}
    v_add_u32 v{vWo2+1}, {32768-1024}, v{vWo2}
    v_add_u32 v{vWo2+2}, {2*(32768-1024)}, v{vWo2}
    v_add_u32 v{vWo2+3}, {3*(32768-1024)}, v{vWo2}
    """)
    return L


@script_step('SL')
def _():
    for it in late_setup():
        emit(it)


@script_step('ST')
def _():
    for k in small:
        w_until('W', k)
    for it in table_setup():
        emit(it)


@script_step('AD')
def _():
    w_until('W', 'ML')
    a.wait_vm('dd')
    a(f"""
    s_cmp_eq_u32 s{sWave}, 0
    s_cselect_b32 s{t2}, 0xffff, 0
    s_bitcmp0_b32 s{sWave}, 0
    s_cselect_b32 s{t3}, 0xffff, 0
    v_and_b32 v{vDe}, s{t2}, v{vDe}
    v_and_b32 v{vDm}, s{t3}, v{vDm}
    v_lshlrev_b32 v{t0}, 3, v{vG}
    v_sub_u32 v{t0}, v{t0}, v{vU}
    v_subrev_u32 v{t0}, 9, v{t0}
    v_and_b32 v{t1}, 1, v{t0}
    v_lshlrev_b32 v{t1}, 4, v{t1}
    v_lshlrev_b32 v{vDe}, v{t1}, v{vDe}
    v_lshlrev_b32 v{vDm}, v{t1}, v{vDm}
    v_ashrrev_i32 v{t0}, 1, v{t0}
    """)
    for jj in range(4):
        a(f"""
        v_cmp_eq_u32 vcc, {jj}, v{t0}
        v_cndmask_b32 v{vADe+jj}, 0, v{vDe}, vcc
        v_cndmask_b32 v{vADm+jj}, 0, v{vDm}, vcc
        """)


C0 = -2.0 * 0.7978845608028654 * 1.4426950408889634
C1 = C0 * 0.044715
vC0 = 50


@script_step('BU')
def _():
    w_until('W', 'ML')
    a.wait_vm('b1')
    for i in range(8):
        a('v_lshlrev_b32 %s, 16, %s' % (vr(vBf + 2 * i), vr(vB1 + i)))
        a('v_and_b32 %s, 0xffff0000, %s' % (vr(vBf + 2 * i + 1), vr(vB1 + i)))
    a(f"""
    s_mov_b32 s{sT0}, 0x{f2u(C1):08x}
    s_mov_b32 s{sT1}, 0x{f2u(C1):08x}
    v_mov_b32 v{vC0}, 0x{f2u(C0):08x}
    v_mov_b32 v{vC0+1}, 0x{f2u(C0):08x}
    """)


def table_setup():
    L = []
    for ks in range(12):
        if ks:
            L += lines(f"""
            s_add_u32 s{sRot2}, s{sRot2}, 1
            s_cmp_eq_u32 s{sRot2}, 12
            s_cselect_b32 s{sRot2}, 0, s{sRot2}
            """)
        L += lines(f"""
        s_lshl_b32 s{sW2o[ks]}, s{sRot2}, 17
        s_mul_i32 s{sUo[ks]}, s{sRot2}, s{sC40}
        """)
    return L


def lines(txt):
    L = []
    for l in txt.strip().split('\n'):
        l = l.strip()
        if not l:
            continue
        if l.startswith('s_cselect'):
            L[-1] = (L[-1][0] + '\n' + l, None)
        else:
            L.append((l, None))
    return L


def emit(it):
    if callable(it):
        it()
    else:
        a(it[0], tag=it[1])


a.hook = w_hook
for tok in P['script'].replace('_', ' ').split():
    if tok.startswith('S:'):
        stamp(tok[2:])
    elif tok.startswith('R:'):
        rate[0] = int(tok[2:])
    elif tok.startswith('W:'):
        w_until('W', tok[2:])
    elif tok != 'T4' and tok[0] in 'DT' and tok[1:].isdigit():
        w_until(tok[0], int(tok[1:]))
    else:
        step[tok]()
a.hook = None
while T4Q:
    T4Q.pop(0)()
assert ('D', 15) in wdone
a(f"""
s_mov_b32 s{rW}, s{sW2}
s_and_b32 s{rW+1}, s{sW2+1}, 0xffff
s_mov_b32 s{rW+2}, {1536*4096}
""")


def gather_list():
    return [(f's_mul_i32 s{sWoff}, s{sC40}, {4*m}\n' + 'buffer_load_dwordx4 %s, %s, %s, %s offen sc1' % (
        vr(vXl + 4 * m, 4), vr(vXg), sr(rWS, 4), sr(sWoff)), 'xl') for m in range(4)]


def x_write():
    a.wait_vm('xl')
    a('s_mov_b32 exec_lo, 0x77777777')
    a('s_mov_b32 exec_hi, 0x77777777')
    for m in range(4):
        a('ds_write_b128 %s, %s offset:%d' % (vr(vXw), vr(vXl + 4 * m, 4), 256 * m), tag='xw')
    a('s_mov_b64 exec, -1')


poll_check('L_pollh', vPo)
stamp('hpoll')
a('s_cmp_eq_u32 %s, 1' % sr(sAct))
a('s_cbranch_scc1 L_gemm1')
sv, sl, sh = list(a.vm), list(a.lg), list(a.hist)
a('s_waitcnt vmcnt(0) lgkmcnt(0)')
for it in gather_list():
    emit(it)
assert P['ntail'] in (4, 8, 12, 16)
for ks in range(P['ntail'] // 4 - 1):
    D('w2', ks, ks)
x_write()
a('s_waitcnt vmcnt(0) lgkmcnt(0)')
a('s_branch L_conv')
a.vm, a.lg, a.hist = sv, sl, sh
a.label('L_gemm1')
WIN = P['win']
vWin = 96
vAc = 64


def hload(F):
    st, ks = divmod(F, 16)
    a('buffer_load_dwordx4 %s, %s, %s, %s offen sc1' % (
        vr(vWin + 4 * (F % WIN), 4), vr(vHo + st), sr(rWS, 4), sr(sKS + ks)), tag=('h', F))


for F in range(WIN):
    hload(F)
    if W:
        w_atom()
while W:
    w_atom()
vPt = 160
side = []


def Q(*items):
    side.extend(items)


def drain_side(n):
    while side and n > 0:
        emit(side.pop(0))
        n -= 1


tailq = gather_list()
for i in range(3):
    L = dma_list('w2', i, i)
    tailq += [(L[0][0] + '\n' + L[1][0], L[1][1])] + L[2:]
TAIL0 = 64 - WIN + P['tail0']
for F in range(64):
    st, ks = divmod(F, 16)
    a.wait_vm(('h', F))
    if st == 0:
        a.wait_lg(('tr', 'w1', ks))
    acc = vAc + 16 * (st & 1)
    for n in range(4):
        d = vr(acc + 4 * n, 4)
        a('v_mfma_f32_16x16x32_bf16 %s, %s, %s, %s' % (
            d, ar(16 * ks + 4 * n, 4), vr(vWin + 4 * (F % WIN), 4), '0' if ks == 0 else d))
        drain_side(2)
    if F + WIN < 64:
        hload(F + WIN)
    if F >= TAIL0 and len(tailq) > 16 - P['ntail']:
        emit(tailq.pop(0))
    if st > 0 and ks == 1:
        pa = vAc + 16 * ((st - 1) & 1)
        for n in range(4):
            a('ds_write_b128 %s, %s offset:%d' % (vr(vXa + 3), vr(pa + 4 * n, 4), 4096 * (2 + st) + 1024 * n))
    if st == 3 and ks == 3:
        a('s_waitcnt lgkmcnt(0)')
        a('s_barrier')
        for s2 in range(3):
            for n in range(4):
                Q(('ds_read_b128 %s, %s offset:%d' % (
                    vr(vPt + 16 * s2 + 4 * n, 4), vr(vXa + s2), 4096 * (3 + s2) + 1024 * n), ('pr', s2)))
    if st == 3 and ks == 6:
        for s2 in range(3):
            Q(lambda s2=s2: a.wait_lg(('pr', s2)))
            for i in range(16):
                Q(('v_add_f32 %s, %s, %s' % (vr(vBf + i), vr(vBf + i), vr(vPt + 16 * s2 + i)), None))
assert not side
stamp('g1end')
acc = vAc + 16
vE = vPt
for p in range(2):
    rng = range(4 * p, 4 * p + 4)
    for i in rng:
        a('v_pk_add_f32 %s, %s, %s' % (vr(vBf + 2 * i, 2), vr(vBf + 2 * i, 2), vr(acc + 2 * i, 2)))
    for i in rng:
        a('v_pk_mul_f32 %s, %s, %s' % (vr(vE + 2 * i, 2), vr(vBf + 2 * i, 2), vr(vBf + 2 * i, 2)))
    for i in rng:
        a('v_pk_fma_f32 %s, %s, %s, %s' % (vr(vE + 2 * i, 2), vr(vE + 2 * i, 2), sr(sT0, 2), vr(vC0, 2)))
    for i in rng:
        a('v_pk_mul_f32 %s, %s, %s' % (vr(vE + 2 * i, 2), vr(vE + 2 * i, 2), vr(vBf + 2 * i, 2)))
    if len(tailq) > 16 - P['ntail'] and P['gfill']:
        emit(tailq.pop(0))
    for i in range(8 * p, 8 * p + 8):
        a('v_exp_f32 %s, %s' % (vr(vE + i), vr(vE + i)))
    if len(tailq) > 16 - P['ntail'] and P['gfill']:
        emit(tailq.pop(0))
    for i in rng:
        a('v_pk_add_f32 %s, %s, 1.0 op_sel_hi:[1,0]' % (vr(vE + 2 * i, 2), vr(vE + 2 * i, 2)))
    for i in range(8 * p, 8 * p + 8):
        a('v_rcp_f32 %s, %s' % (vr(vE + i), vr(vE + i)))
    for i in rng:
        a('v_pk_mul_f32 %s, %s, %s' % (vr(vE + 2 * i, 2), vr(vE + 2 * i, 2), vr(vBf + 2 * i, 2)))
    for i in rng:
        a('v_cvt_pk_bf16_f32 %s, %s, %s' % (vr(vE + 16 + i), vr(vE + 2 * i), vr(vE + 2 * i + 1)))
    a('buffer_store_dwordx4 %s, %s, %s, %s offen sc1' % (
        vr(vE + 16 + 4 * p, 4), vr(vUst), sr(rWS, 4), sr(sC40) if p else '0'), tag='ust')
while len(tailq) > 16 - P['ntail']:
    emit(tailq.pop(0))
x_write()
a('s_waitcnt lgkmcnt(0)')
a.label('L_conv')
a('s_barrier')
stamp('conv0')
vAccM = 64
aAccE = 224
aOth = 192
POOL = [96 + 4 * i for i in range(19)]
vUw = 172
vOwn = 236
UW = 16

mf = []
units = [('e', 0), ('e', 1), ('m', 0), ('m', 1), ('m', 2), ('m', 3)]
ustart = []
for ui, (kind, e) in enumerate(units):
    accs = (lambda q: ar(aAccE + 4 * q, 4)) if kind == 'e' else (lambda q: vr(vAccM + 4 * q, 4))
    ustart.append(len(mf))
    if e == 0:
        for q in range(8):
            mf.append((accs(q), vr(vADe if kind == 'e' else vADm, 4), ('B', ui, q), '0'))
    rows = range(8) if ui % 2 == 0 else range(7, -1, -1)
    for r in rows:
        for q in range(r, 8):
            mf.append((accs(q), ('A', ui, r), ('B', ui, q - r), accs(q)))
ustart.append(len(mf))


def frag_loads(key, reg):
    t, ui, i = key
    kind, e = units[ui]
    if t == 'A':
        v = vAe if kind == 'e' else vAm
        return ['ds_read_b64 %s, %s offset:%d' % (vr(reg, 2), vr(v), 256 * e + 2048 * i),
                'ds_read_b64 %s, %s offset:%d' % (vr(reg + 2, 2), vr(v), 256 * e + 2048 * i + 32)]
    v, b = (vBe, 64) if kind == 'e' else (vBm, 192)
    return ['ds_read_b128 %s, %s offset:%d' % (vr(reg, 4), vr(v), b - 64 * e + 512 * i)]


order, last = [], {}
for k, (d, A, B, C) in enumerate(mf):
    for f in (A, B):
        if isinstance(f, tuple):
            if f not in last:
                order.append(f)
            last[f] = k
free, reg_of, pend, issued_at = list(POOL), {}, [], {}
cur = [0]


def issue_frag(maxn):
    n = 0
    while n < maxn:
        if not pend:
            if not order or not free:
                return n
            f = order.pop(0)
            reg_of[f] = free.pop(0)
            pend.extend((x, f) for x in frag_loads(f, reg_of[f]))
        x, f = pend.pop(0)
        a(x, tag=f)
        issued_at[f] = cur[0]
        n += 1
    return n


def wait_frags(*fs):
    if not any(t in fs for t in a.lg):
        return
    more = [t for t in a.lg if t in issued_at and issued_at[t] <= cur[0] - P['lead'] and not any(p[1] == t for p in pend)]
    a.wait_lg(*fs, *more)


sideq = []


def S(pos, *items):
    for it in items:
        sideq.append((pos, it))


vEx = vUw


def w2T(ks, slot):
    return [lambda: a.wait_vm(('w2', ks))] + tr_list('w2', ks, slot)


def w2D(ks, slot, prev):
    pre = [lambda: a.wait_lg(('tr', 'w2', prev))] if prev is not None else []
    return pre + dma_list('w2', ks, slot)


def uload(F):
    st, ks = divmod(F, 12)
    a('buffer_load_dwordx4 %s, %s, %s, %s offen offset:%d sc1' % (
        vr(vUw + 4 * (F % UW), 4), vr(vUo + st // 4), sr(rWS, 4), sr(sUo[ks]), 1024 * (st % 4)), tag=('u', F))


TP = [P['t0'] + i * P['tstep'] for i in range(12)]
ev = []
pos = 0
for it in tailq + w2D(3, 3, None):
    ev.append((pos, [it]))
    pos += P['dsp']
for ks in range(12 - P['ndef']):
    ev.append((TP[ks], w2T(ks, ks % 4)))
    if ks + 4 < 12:
        L = w2D(ks + 4, ks % 4, ks)
        p0 = TP[ks] + 9
        ev.append((p0, L[:3]))
        for k in range(3):
            ev.append((p0 + (k + 1) * P['dsp'], [L[3 + k]]))
ev.append((P['uflag'], [lambda: a.wait_vm('ust'), lambda: flag(sFU), lambda: stamp('uflag')]))
e_end = ustart[2]
ev.append((e_end + 8, [('ds_write_b128 %s, %s offset:%d' % (
    vr(vXa + 3), ar(aAccE + 4 * q, 4), 4 * 4096 + 1024 * q), 'ew') for q in range(8)]))
ev.append((e_end + 30, [lambda: a.wait_lg('ew'), ('s_barrier', None)] + [('ds_read_b128 %s, %s offset:%d' % (
    vr(vEx + 8 * w2 + 4 * h, 4), vr(vEr + w2 // 2), RINGW * (w2 % 2) + 1024 * h), 'er')
    for w2 in range(4) for h in range(2)]))
it = [lambda: a.wait_lg('er')]
for w2 in range(1, 4):
    it += [('v_add_f32 %s, %s, %s' % (vr(vEx + i), vr(vEx + i), vr(vEx + 8 * w2 + i)), None) for i in range(8)]
vYp = 28
it += [('v_cvt_pk_bf16_f32 %s, %s, %s' % (vr(vYp + h), vr(vEx + 2 * h), vr(vEx + 2 * h + 1)), None) for h in range(4)]
it += [('v_permlane16_swap_b32 %s, %s' % (vr(vYp), vr(vYp + 2)), None),
       ('v_permlane16_swap_b32 %s, %s' % (vr(vYp + 1), vr(vYp + 3)), None)]
ev.append((e_end + 44, it))
ev.append((P['pollu'], [lambda: poll_issue(vPu)]))
UC = max(P['pollu'] + P['ulag'], e_end + 45)
ev.append((UC, [lambda: poll_check('L_pollu', vPu), lambda: stamp('upoll')]))
for F in range(UW):
    ev.append((UC + 1 + P['usp'] * F, [lambda F=F: uload(F)]))
ev.sort(key=lambda x: x[0])
for pos, it in ev:
    if 'T' in P['dbg']:
        it = [x for x in it if callable(x) or '_tr_' not in x[0]]
    if 'D' in P['dbg']:
        it = [x for x in it if callable(x) or ' lds' not in x[0]]
    if 'X' in P['dbg']:
        it = [x for x in it if callable(x) or not x[0].startswith(('ds_write', 'ds_read_b128', 'v_add', 's_barr'))]
    S(pos, *it)


def run_side(k, maxn):
    n = 0
    while sideq and sideq[0][0] <= k and n < maxn:
        before = len(a.out)
        emit(sideq.pop(0)[1])
        n += 1 if len(a.out) > before else 0


issue_frag(14)
for k, (d, A, B, C) in enumerate(mf):
    cur[0] = k
    for f in (A, B):
        if isinstance(f, tuple):
            while f not in reg_of or any(p[1] == f for p in pend):
                assert pend or free
                issue_frag(1)
    wait_frags(A, B)
    a('v_mfma_f32_16x16x32_bf16 %s, %s, %s, %s' % (
        d, vr(reg_of[A], 4) if isinstance(A, tuple) else A, vr(reg_of[B], 4), C))
    for f in (A, B):
        if isinstance(f, tuple) and last[f] == k:
            free.append(reg_of[f])
    n = issue_frag(1)
    run_side(k, P['fill'] - n)
left = len(sideq)
vMx = 96
a('s_bitcmp1_b32 %s, 0' % sr(sWave))
a('s_cbranch_scc1 L_mw_odd')
sh = list(a.hist)
sl = list(a.lg)
for par in range(2):
    if par == 1:
        a.label('L_mw_odd')
        a.hist, a.lg = list(sh), list(sl)
    give = 4 if par == 0 else 0
    for q in range(4):
        a('ds_write_b128 %s, %s offset:%d' % (vr(vMw), vr(vAccM + 4 * (give + q), 4), 1024 * q), tag='mw')
    if par == 1:
        for i in range(8):
            a('v_mov_b64 %s, %s' % (vr(vAccM + 2 * i, 2), vr(vAccM + 16 + 2 * i, 2)))
    if par == 0:
        a('s_branch L_mw_done')
a.label('L_mw_done')
a.wait_lg('mw')
a('s_barrier')
for q in range(4):
    a('ds_read_b128 %s, %s offset:%d' % (vr(vMx + 4 * q, 4), vr(vMr), 1024 * q), tag=('mr', q))
a('buffer_store_dwordx4 %s, %s, %s, 0 offen sc1' % (vr(vYp, 4), vr(vYe), sr(rWS, 4)), tag='yst')
for qq in range(2):
    for q in (2 * qq, 2 * qq + 1):
        a.wait_lg(('mr', q))
        for h in range(2):
            a('v_pk_add_f32 %s, %s, %s' % (
                vr(vMx + 4 * q + 2 * h, 2), vr(vMx + 4 * q + 2 * h, 2), vr(vAccM + 4 * q + 2 * h, 2)))
    o = vMx + 16 + 4 * qq
    for h in range(4):
        a('v_cvt_pk_bf16_f32 %s, %s, %s' % (vr(o + h), vr(vMx + 8 * qq + 2 * h), vr(vMx + 8 * qq + 2 * h + 1)))
    a('v_permlane16_swap_b32 %s, %s' % (vr(o), vr(o + 2)))
    a('v_permlane16_swap_b32 %s, %s' % (vr(o + 1), vr(o + 3)))
    a('buffer_store_dwordx4 %s, %s, %s, 0 offen offset:%d sc1' % (vr(o, 4), vr(vYm), sr(rWS, 4), 1024 * qq), tag='yst')
stamp('convend')
run_side(10 ** 9, 10 ** 9)
vOo, vB2, vGt, vYr, vOg, vT0 = 52, 53, 54, 55, 56, 58
for ks in range(12 - P['ndef'], 12):
    Q(*w2T(ks, ks % 4))
vQe = 26
vQg = 64
vYa = 84
vPp = 124
vYl = 136
vYt = 148
vYu = 160
vOp = 88
Q(*lines(f"""
s_lshl_b32 s{t2}, s{sST2}, 2
s_add_u32 s{t2}, s{t2}, s{sWave}
s_lshl_b32 s{t2}, s{t2}, 4
v_add_u32 v{t0}, s{t2}, v{vU}
v_mul_u32_u24 v{vOo}, 1280, v{t0}
s_mul_i32 s{t3}, s{sDT2}, 160
v_lshl_add_u32 v{t1}, v{vG}, 3, s{t3}
v_add_u32 v{vOo}, v{vOo}, v{t1}
v_lshlrev_b32 v{t1}, 1, v{t0}
v_lshlrev_b32 v{vGt}, 2, v{t0}
v_add_u32 v{vGt}, {WS_G}, v{vGt}
"""))
Q(('global_load_ushort %s, %s, %s' % (vr(vB2), vr(t1), sr(sB2, 2)), 'gb'))
Q(('buffer_load_dword %s, %s, %s, 0 offen sc1' % (vr(vGt), vr(vGt), sr(rWS, 4)), 'gb'))
qeq = [('global_load_dwordx2 %s, %s, %s offset:%d' % (vr(vQe + 2 * i, 2), vr(vOo), sr(sQ, 2), 32 * i), ('qe', i))
       for i in range(5)]
Q(*lines(f"""
v_bfe_u32 v{t0}, v{vLane}, 4, 1
v_lshlrev_b32 v{t0}, 7, v{t0}
v_add_u32 v{t0}, v{t0}, v{vU}
s_lshl_b32 s{t2}, s{sDT2}, 9
s_add_u32 s{t2}, s{t2}, {WS_FY}
v_lshl_add_u32 v{vPo}, v{t0}, 5, s{t2}
v_lshrrev_b32 v{t0}, 3, v0
s_mul_i32 s{t2}, s{sDT2}, 80
v_add_u32 v{t0}, s{t2}, v{t0}
v_lshlrev_b32 v{t0}, 12, v{t0}
v_and_b32 v{t1}, 7, v{vLane}
v_lshlrev_b32 v{t4}, 1, v{vG}
v_xor_b32 v{t1}, v{t1}, v{t4}
v_lshl_add_u32 v{t0}, v{t1}, 4, v{t0}
s_lshl_b32 s{t3}, s{sST2}, 7
s_add_u32 s{t3}, s{t3}, {WS_YT}
v_add_u32 v{vYa}, s{t3}, v{t0}
v_add_u32 v{vYa+1}, {32*4096}, v{vYa}
s_cmp_lt_u32 s{sWave}, 2
s_cselect_b32 s{t3}, {64*4096}, s{sOOB}
v_add_u32 v{vYa+2}, s{t3}, v{vYa}
v_bfe_u32 v{t0}, v{vLane}, 2, 3
v_lshlrev_b32 v{t0}, 7, v{t0}
v_and_b32 v{t1}, 3, v{vU}
v_lshl_add_u32 v{t0}, v{t1}, 3, v{t0}
v_bfe_u32 v{t1}, v{vLane}, 3, 2
v_xor_b32 v{t1}, s{sWave}, v{t1}
v_lshl_add_u32 v{t0}, v{t1}, 5, v{t0}
v_lshrrev_b32 v{t1}, 1, v{vG}
v_mul_u32_u24 v{t1}, {RINGW}, v{t1}
v_add_u32 v{t0}, v{t0}, v{t1}
v_add_u32 v{vYr}, 16384, v{t0}
s_lshl_b32 s{sT0}, s{sR}, 5
s_add_u32 s{sT0}, s{sT0}, {WS_FY}
"""))


def xwrite(st):
    for n in range(1, 4):
        a('ds_write_b128 %s, %s offset:%d' % (
            vr(vXa + 3), ar(aOth + 12 * (st & 1) + 4 * (n - 1), 4), 3072 * st + 1024 * (n - 1)), tag='xw')


def xread(st):
    return [('ds_read_b128 %s, %s offset:%d' % (vr(vPp + 4 * (n - 1), 4), vr(vXa + n - 1), 3072 * st + 1024 * (n - 1)),
             ('xr', st)) for n in range(1, 4)]


def xsum(st, pk=False):
    L = [lambda: a.wait_lg(('xr', st))]
    o = vOwn + 4 * st
    if pk:
        for n in range(3):
            L += [('v_pk_add_f32 %s, %s, %s' % (vr(o + 2 * h, 2), vr(o + 2 * h, 2), vr(vPp + 4 * n + 2 * h, 2)), None)
                  for h in range(2)]
    else:
        for n in range(3):
            L += [('v_add_f32 %s, %s, %s' % (vr(o + j), vr(o + j), vr(vPp + 4 * n + j)), None) for j in range(4)]
    return L


def base(i, pk=False):
    o = vOwn + 4 * i
    if pk:
        return [('v_pk_fma_f32 %s, %s, %s, %s op_sel_hi:[1,0,0]' % (
            vr(o + 2 * h, 2), vr(o + 2 * h, 2), vr(vOg, 2), vr(vT0, 2)), None) for h in range(2)]
    return [('v_fma_f32 %s, %s, %s, %s' % (vr(o + j), vr(o + j), vr(vOg), vr(vT0)), None) for j in range(4)]


def fin(i):
    o, p, y = vOwn + 4 * i, vOp + 2 * (i & 1), vYu + 4 * (i & 1)
    L = [lambda: a.wait_lg(('yt', i))]
    for h in range(2):
        L += [('v_lshlrev_b32 %s, 16, %s' % (vr(y + 2 * h), vr(vYt + 2 * i + h)), None),
              ('v_and_b32 %s, 0xffff0000, %s' % (vr(y + 2 * h + 1), vr(vYt + 2 * i + h)), None)]
    L += [('v_pk_fma_f32 %s, %s, %s, %s' % (
        vr(o + 2 * h, 2), vr(vQg + 4 * i + 2 * h, 2), vr(y + 2 * h, 2), vr(o + 2 * h, 2)), None) for h in range(2)]
    L += [('v_cvt_pk_bf16_f32 %s, %s, %s' % (vr(p + h), vr(o + 2 * h), vr(o + 2 * h + 1)), None) for h in range(2)]
    L += [('global_store_dwordx2 %s, %s, %s offset:%d %s' % (vr(vOo), vr(p, 2), sr(sOUT, 2), 32 * i, P['outmod']), 'out')]
    return L


def qprep(pk):
    L = []
    for i in range(5):
        L.append(lambda i=i: a.wait_vm(('qe', i)))
        for h in range(2):
            L += [('v_lshlrev_b32 %s, 16, %s' % (vr(vQg + 4 * i + 2 * h), vr(vQe + 2 * i + h)), None),
                  ('v_and_b32 %s, 0xffff0000, %s' % (vr(vQg + 4 * i + 2 * h + 1), vr(vQe + 2 * i + h)), None)]
        if pk:
            L += [('v_pk_mul_f32 %s, %s, %s op_sel_hi:[1,0]' % (
                vr(vQg + 4 * i + 2 * h, 2), vr(vQg + 4 * i + 2 * h, 2), vr(vGt, 2)), None) for h in range(2)]
        else:
            L += [('v_mul_f32 %s, %s, %s' % (vr(vQg + 4 * i + j), vr(vGt), vr(vQg + 4 * i + j)), None) for j in range(4)]
    return L


def yflag():
    a(f"""
    s_cmp_eq_u32 s{sWave}, 0
    s_cbranch_scc0 L_noyflag
    """)
    sh = list(a.hist)
    a.cond = True
    flag(sT0)
    a.cond = False
    a.label('L_noyflag')
    a.hist = sh


YP = P['ypoll']
for F in range(60):
    st, ks = divmod(F, 12)
    a.wait_vm(('u', F))
    if st == 0:
        while any(not callable(x) and x[1] == ('tr', 'w2', ks) for x in side):
            drain_side(1)
        a.wait_lg(('tr', 'w2', ks))
    for n in range(4):
        d = vr(vOwn + 4 * st, 4) if n == 0 else ar(aOth + 12 * (st & 1) + 4 * (n - 1), 4)
        a('v_mfma_f32_16x16x32_bf16 %s, %s, %s, %s' % (
            d, vr(vUw + 4 * (F % UW), 4), ar(16 * ks + 4 * n, 4), '0' if ks == 0 else d))
        drain_side(2 if n < 3 else 1)
    if F + UW < 60:
        uload(F + UW)
    if F == P['yflag'] and F != 15:
        drain_side(10 ** 9)
        a.wait_vm('yst')
        a('s_barrier')
        yflag()
        stamp('yflag')
    if st > 0 and ks == 1:
        xwrite(st - 1)
    if st > 0 and ks == 3:
        drain_side(10 ** 9)
        if F == P['yflag']:
            a.wait_vm('yst')
        a.wait_lg('xw')
        a('s_barrier')
        if F == P['yflag']:
            yflag()
            stamp('yflag')
        Q(*xread(st - 1))
        if st == 2:
            Q(lambda: a.wait_vm('gb'))
            Q(*lines(f"""
            v_sub_f32 v{vOg}, 1.0, v{vGt}
            v_lshlrev_b32 v{vB2}, 16, v{vB2}
            v_mul_f32 v{vT0}, v{vOg}, v{vB2}
            """))
        if st == 4:
            for i in range(3):
                Q(*base(i))
        Q(*xsum(st - 1))
        if st == 4:
            Q(*base(3))
    if F >= P['qeat'] and qeq:
        emit(qeq.pop(0))
    if F == min(P['qeat'] + UW + 5, 59) and F < 59:
        Q(*qprep(False))
    if F == YP:
        poll_issue(vPo)
    if F == P['ychk']:
        poll_check('L_polly', vPo)
        stamp('ypoll')
        for m in range(3):
            a('buffer_load_dwordx4 %s, %s, %s, 0 offen sc1' % (vr(vYl + 4 * m, 4), vr(vYa + m), sr(rWS, 4)), tag='yl')
drain_side(10 ** 9)
stamp('g2end')
a.wait_vm('yl')
for m in range(3):
    a('ds_write_b128 %s, %s offset:%d' % (vr(vXa + 3), vr(vYl + 4 * m, 4), 16384 + 1024 * m), tag='xw')
xwrite(4)
if P['qeat'] + UW + 5 >= 59:
    for it in qprep(True):
        emit(it)
a('s_waitcnt lgkmcnt(0)')
a('s_barrier')
for i in range(5):
    a('ds_read_b64_tr_b16 %s, %s offset:%d' % (vr(vYt + 2 * i, 2), vr(vYr), RINGW * ((2 * i) % 4) + 1024 * (i // 2)),
      tag=('yt', i))
Q(*xread(4))
for i in range(4):
    Q(*fin(i))
Q(*xsum(4, True))
Q(*base(4, True))
Q(*fin(4))
drain_side(10 ** 9)
a('s_add_u32 %s, s2, %s' % (sr(t2), sr(sWave)))
a('s_cmp_eq_u32 %s, 0' % sr(t2))
a('s_cbranch_scc0 L_noepoch')
flag(t2)
a.label('L_noepoch')
if STAMPS:
    a('s_waitcnt vmcnt(0)')
    nstamp[0] = min(nstamp[0], 15)
    stamp('end')
    a(f'''
    s_lshl_b32 s{sT0}, s2, 2
    s_add_u32 s{sT0}, s{sT0}, s{sWave}
    s_lshl_b32 s{sT0}, s{sT0}, 7
    s_add_u32 s{sT0}, s{sT0}, {WS_ST}
    s_mov_b64 exec, 1
    ''')
    for i in range(nstamp[0]):
        a('v_mov_b32 v10, %s' % sr(sStamp + i))
        a('buffer_store_dword v10, off, %s, %s offset:%d' % (sr(rWS, 4), sr(sT0), 4 * i))
if PROBE:
    a(f'''
    s_cmp_eq_u32 s{sStamp+PROBE[0]}, 0
    s_cselect_b32 s{sT0}, s{sStamp}, s{sStamp+PROBE[0]}
    s_add_u32 s{sT0}, s{sT0}, 6000
    ''')
    a.label('L_probe')
    a(f'''
    s_memrealtime s[100:101]
    s_waitcnt lgkmcnt(0)
    s_sub_u32 s{sT1}, s100, s{sT0}
    s_cmp_lt_i32 s{sT1}, 0
    s_cbranch_scc1 L_probe
    ''')
a.label('L_end')
a('s_endpgm')

hdr = open('cdna_kernels/%s.s.ref' % NAME).read().split('; Override launch')[0]
txt = hdr + f'''; @launch grid=(256,1,1) block=(256,1,1) lds={LDS_BYTES}
; stamps: {' '.join(stamp_names)}
.amdgcn_target "amdgcn-amd-amdhsa--gfx950"
.text
.globl {NAME}_kernel
.p2align 8
.type {NAME}_kernel,@function
{NAME}_kernel:
''' + a.text() + f'''.section .rodata,"a"
.p2align 6
.amdhsa_kernel {NAME}_kernel
  .amdhsa_next_free_vgpr 512
  .amdhsa_next_free_sgpr 102
  .amdhsa_accum_offset 256
  .amdhsa_group_segment_fixed_size 0
  .amdhsa_kernarg_size 120
  .amdhsa_user_sgpr_count 2
  .amdhsa_user_sgpr_kernarg_segment_ptr 1
  .amdhsa_system_sgpr_workgroup_id_x 1
.end_amdhsa_kernel
'''
open(OUT, 'w').write(txt)
print('side left after conv', left)
print('wrote', OUT, 'lines', len(a.out), 'nops', a.nops, 'stamps', nstamp[0], stamp_names)
```

```python
import sys, struct
from asmlib import Asm, vr, ar, sr

NAME = 'gated_mix__ssm_conv_h3__mixer_token_mlp__prompt'
STAMPS = '--stamps' in sys.argv
OUT = [x for x in sys.argv[1:] if not x.startswith('--')][0]
PROBE = [int(x[8:]) for x in sys.argv if x.startswith('--probe=')]
if PROBE:
    STAMPS = True
P = dict(hrot=0, urot=0, xrot=2, xrot2=0, arr1=1, arr2=1, outmod='', nost='', dbg='',
         win=10, gat=2, ntail=8, gfill=1, npf=0,
         lead=5, ldsr=5.0, vsp=3, t0=20, tlag=2, tdel=4, ndef=4, uflag=40, pollu=130, ulag=40, uw=18,
         yflag=10, ypoll=40, ychk=52, qeat=42,
         wscript='KL K2L VL GW D0 D1 SSL D2 D3 D4 T0 D5 T1 D6 ML', t4rate=10,
         script='Q CP SA W:GW R:16 LN GATE KC K2C W:SSL R:24 SB SL KF R:4 T4 ST AD BU D13 HP D15 T12')
for x in sys.argv:
    if x.startswith('--p:'):
        k, v = x[4:].split('=')
        assert k in P, k
        P[k] = type(P[k])(v)
f2u = lambda x: struct.unpack('<I', struct.pack('<f', x))[0]

WS_EPOCH = 0
WS_DUMMY = 0x800
WS_FH = 0x1000
WS_FKV = 0x9000
WS_FU = 0xB000
WS_FY = 0x13000
WS_G = 0x18000
WS_ST = 0x20000
WS_HT8 = 0x40000
WS_KV = 0x2C0000
WS_UF = 0x540000
WS_YT = 0x720000
WS_END = 0x9A0000
OOB = 0x7ff00000
RINGW = 24576
L_T4 = 98304
T4SZ = 16512
L_X = 147840
XSZ = 4608
L_LN = L_X
LNROW = 1344
LDS_BYTES = 163840
SPIN_MAX = 200000

sQ, sK, sV, sSK, sHK, sD, sW1, sB1, sW2, sB2, sGW, sOUT, sWS = 4, 6, 8, 10, 12, 14, 18, 20, 22, 24, 26, 28, 30
rWS, rW, rK, rH = 32, 36, 40, 44
sN = 48
sWave, sR, sDT, sFT, sDT2, sST2, sP0, sNCH, sRot, sRing = 50, 51, 52, 53, 54, 55, 56, 57, 58, 59
sKS = 60
sT0, sT1, sSpin = 16, 17, 3
sWoff = 76
sAct = 77
sStamp = 78
sOOB = 94
sRot2 = 95
sx, sj, t2, t3 = 96, 97, 98, 99
sFU, sC40, sChE, sChM = 6, 7, 12, 13
sW2o = [8, 9, 10, 11, 14, 15, 18, 19, 20, 21, 26, 27]
sUo = [40, 41, 42, 43, 44, 45, 46, 47, 0, 1, 30, 31]

a = Asm()
nstamp = [0]
stamp_names = []


def stamp(name):
    if STAMPS and name not in P['nost'].split(','):
        i = nstamp[0]
        nstamp[0] += 1
        stamp_names.append(name)
        assert i < 16
        a.atomic = True
        a('s_memtime s[100:101]' if '--cyc' in sys.argv else 's_memrealtime s[100:101]')
        a('s_waitcnt lgkmcnt(0)')
        a.atomic = False
        a('s_mov_b32 %s, s100' % sr(sStamp + i))


vLane, vG, vU, vN = 1, 2, 3, 4
vT = 6
vWo = 16
vTr = 20
vHo = 24
vB1 = 28
vPoll = 36
vPo = 38
vXa = 40
vMisc = 44
vAe, vBe, vAm, vBm = 52, 53, 54, 55
vADe, vADm = 56, 60
t0, t1, t4 = vT + 4, vT + 5, vT + 6
vTr2, vWo2 = 248, 252


def poll_issue(voff):
    a('buffer_load_dwordx2 %s, %s, %s, 0 offen sc1' % (vr(vPoll, 2), vr(voff), sr(rWS, 4)), tag='poll')


def poll_check(name, voff):
    a.wait_vm('poll')
    a('v_cmp_ne_u64 vcc, %s, %s' % (sr(sN, 2), vr(vPoll, 2)))
    a('s_cbranch_vccz %s_ok' % name)
    save = list(a.vm)
    a('s_mov_b32 %s, 0' % sr(sSpin))
    a.label(name)
    a('buffer_load_dwordx2 %s, %s, %s, 0 offen sc1' % (vr(vPoll, 2), vr(voff), sr(rWS, 4)))
    a('s_waitcnt vmcnt(0)')
    a('v_cmp_ne_u64 vcc, %s, %s' % (sr(sN, 2), vr(vPoll, 2)))
    a('s_add_u32 %s, %s, 1' % (sr(sSpin), sr(sSpin)))
    a('s_cbranch_vccz %s_ok' % name)
    a('s_cmp_lt_u32 %s, %d' % (sr(sSpin), SPIN_MAX))
    a('s_cbranch_scc1 %s' % name)
    a.label(name + '_ok')
    a.vm = save
    a.hist = a.hist[:-8]


def flag(soff):
    a('s_mov_b64 exec, 1')
    a('buffer_store_dwordx2 %s, off, %s, %s sc1' % (vr(vN, 2), sr(rWS, 4), sr(soff)), tag='flag')
    a('s_mov_b64 exec, -1')


def dma_list(which, ks, slot):
    L = []
    if which == 'w1':
        L += [f's_add_u32 s{sWoff}, s{sRot}, {ks}', f's_and_b32 s{sWoff}, s{sWoff}, 15',
              f's_mul_i32 s{sWoff}, s{sWoff}, {32*3072}']
    L.append('s_add_u32 m0, %s, %d' % (sr(sRing), slot * 4096))
    L = [(x, None) for x in L]
    for jj in range(4):
        L.append(('buffer_load_dwordx4 %s, %s, %s offen offset:%d lds' % (
            vr((vWo if which == 'w1' else vWo2) + jj), sr(rW, 4), sr(sWoff if which == 'w1' else sW2o[ks]), 1024 * jj), (which, ks)))
    return L


def D(which, ks, slot):
    for x, t in dma_list(which, ks, slot):
        a(x, tag=t)


def tr_list(which, ks, slot):
    hs = 512 if which == 'w1' else 2048
    return [('ds_read_b64_tr_b16 %s, %s offset:%d' % (
        ar(16 * ks + 4 * n + 2 * hh, 2), vr((vTr if which == 'w1' else vTr2) + n), slot * 4096 + hh * hs), ('tr', which, ks))
        for n in range(4) for hh in range(2)]


def T(which, ks, slot):
    a.wait_vm((which, ks))
    for x, t in tr_list(which, ks, slot):
        a(x, tag=t)


def reduce32(v, tmp):
    for r in (8, 4, 2, 1):
        a('v_add_f32 %s, %s, %s row_ror:%d' % (vr(v), vr(v), vr(v), r))
    a('v_mov_b32 %s, %s' % (vr(tmp), vr(v)))
    a('v_permlane16_swap_b32 %s, %s' % (vr(v), vr(tmp)))
    a('v_add_f32 %s, %s, %s' % (vr(v), vr(v), vr(tmp)))


def chan_of(dst, pos):
    a(f'''
    s_cmp_ge_u32 s{pos}, 320
    s_cselect_b32 s{t3}, 639, 0
    s_lshl_b32 s{dst}, s{pos}, 1
    s_sub_u32 s{dst}, s{dst}, s{t3}
    ''')


a('s_cmp_ge_u32 s2, 256')
a('s_cbranch_scc1 L_end')
a('s_load_dwordx16 s[4:19], s[0:1], 0')
a('s_load_dwordx8 s[20:27], s[0:1], 64')
a('s_load_dwordx2 s[28:29], s[0:1], 96')
a('s_load_dwordx2 s[30:31], s[0:1], 112')
a('v_lshrrev_b32 %s, 6, v0' % vr(vT))
a('v_and_b32 %s, 63, v0' % vr(vLane))
a('v_readfirstlane_b32 %s, %s' % (sr(sWave), vr(vT)))
a('v_lshrrev_b32 %s, 4, %s' % (vr(vG), vr(vLane)))
a('v_and_b32 %s, 15, %s' % (vr(vU), vr(vLane)))
if STAMPS:
    for i in range(16):
        a('s_mov_b32 %s, 0' % sr(sStamp + i))
vQo, vQo2, vL5, vRow = vT, vT + 1, vT + 2, vT + 3
a(f"""
s_and_b32 s{sx}, s2, 7
s_lshr_b32 s{sj}, s2, 3
s_lshl_b32 s{sR}, s{sx}, 5
s_add_u32 s{sR}, s{sR}, s{sj}
v_and_b32 v{vL5}, 31, v0
v_lshrrev_b32 v{vRow}, 5, v0
s_lshl_b32 s{t2}, s{sR}, 3
v_add_u32 v{vQo2}, s{t2}, v{vRow}
v_mul_u32_u24 v{vQo2}, 1280, v{vQo2}
v_lshl_add_u32 v{vQo}, v{vL5}, 4, v{vQo2}
v_lshl_add_u32 v{vQo2}, v{vL5}, 3, v{vQo2}
""")
if P['arr1'] == 2:
    a(f"""
    s_mul_i32 s{t2}, s{sj}, 52
    s_lshr_b32 s{t2}, s{t2}, 8
    s_mul_i32 s{t3}, s{t2}, 5
    s_sub_u32 s{sDT}, s{sj}, s{t3}
    s_mul_i32 s{sRot}, s{sDT}, 3
    s_and_b32 s{t3}, s{sx}, 1
    s_lshl1_add_u32 s{sRot}, s{t3}, s{sRot}
    s_mul_i32 s{t3}, s{t3}, 5
    s_add_u32 s{sDT}, s{sDT}, s{t3}
    s_lshr_b32 s{t3}, s{sx}, 1
    s_mul_i32 s{sFT}, s{t3}, 6
    s_add_u32 s{sFT}, s{sFT}, s{t2}
    """)
else:
    a(f"""
    s_mul_i32 s{t2}, s{sj}, 26
    s_lshr_b32 s{t2}, s{t2}, 8
    s_mul_i32 s{t3}, s{t2}, 10
    s_sub_u32 s{sDT}, s{sj}, s{t3}
    s_mul_i32 s{sRot}, s{sDT}, 13
    s_lshr_b32 s{sRot}, s{sRot}, 3
    s_mul_i32 s{sFT}, s{sx}, 3
    s_add_u32 s{sFT}, s{sFT}, s{t2}
    """)
a(f"""
s_cmp_lt_u32 s{sj}, 30
s_cselect_b32 s{sAct}, 1, 0
s_mul_i32 s{sRing}, s{sWave}, {RINGW}
""")
if P['hrot']:
    a(f"""
    s_mul_i32 s{t2}, s{t2}, {P['hrot']}
    s_lshr_b32 s{t2}, s{t2}, 4
    s_add_u32 s{sRot}, s{sRot}, s{t2}
    """)
if P['xrot']:
    a(f"""
    s_lshr_b32 s{t2}, s{sx}, {P['arr1']-1}
    s_mul_i32 s{t2}, s{t2}, {P['xrot']}
    s_add_u32 s{sRot}, s{sRot}, s{t2}
    """)
a(f"""
v_lshrrev_b32 v{t0}, 3, v{vLane}
v_mul_u32_u24 v{t0}, 3072, v{t0}
s_mul_i32 s{t2}, s{sWave}, {512*3072}
s_lshl_b32 s{t3}, s{sFT}, 7
s_add_u32 s{t2}, s{t2}, s{t3}
v_add_u32 v{t0}, s{t2}, v{t0}
v_and_b32 v{t1}, 7, v{vLane}
v_and_b32 v{t4}, 1, v{vG}
v_lshlrev_b32 v{t4}, 1, v{t4}
v_xor_b32 v{t1}, v{t1}, v{t4}
v_xor_b32 v{t4}, 4, v{t1}
v_lshl_add_u32 v{vWo}, v{t1}, 4, v{t0}
v_lshl_add_u32 v{vWo+1}, v{t4}, 4, v{t0}
v_add_u32 v{vWo+2}, {2*(24576-1024)}, v{vWo}
v_add_u32 v{vWo+3}, {3*(24576-1024)}, v{vWo+1}
v_add_u32 v{vWo+1}, {24576-1024}, v{vWo+1}
""")
vQ = 64
vX = 76
vGWp = 96
vHp = vHt = 108
vKV1, vKV2 = 120, 144
vSS, vSN, vSNew, vK2a = 156, 180, 184, 192
vGa, vGa2, vGs = 236, 237, 238
vK2t, vSa, vSna, vMla, vT4a = 196, 197, 201, 204, 232
vBf = 208
sCh = [96, 97]
vLw, vLw2, vLr, vHs, vHs1, vHs2 = vMisc, vMisc + 1, vMisc + 2, vMisc + 3, vMisc + 4, vMisc + 5
vKo, vKo4, vKoh, vTo, vKs = 240, 241, 242, 243, 234
vDe, vDm = 246, 247
vXg, vXw, vPkv, vUo = vMisc, vMisc + 1, vMisc + 2, vMisc + 4
vUst = 245
vPu = 39
vEr, vYe, vYm, vMw, vMr = 6, 8, 9, 14, 15
vXl = 224
step = {}


def script_step(name):
    def deco(f):
        step[name] = f
        return f
    return deco


@script_step('Q')
def _():
    a('s_waitcnt lgkmcnt(0)')
    stamp('start')
    a('global_load_dwordx4 %s, %s, %s' % (vr(vQ, 4), vr(vQo), sr(sQ, 2)), tag='q')
    a('global_load_dwordx4 %s, %s, %s offset:512' % (vr(vQ + 4, 4), vr(vQo), sr(sQ, 2)), tag='q')
    a('global_load_dwordx2 %s, %s, %s offset:1024' % (vr(vQ + 8, 2), vr(vQo2), sr(sQ, 2)), tag='q')
    a(f"""
    s_load_dwordx2 s[{sN}:{sN+1}], s[{sWS}:{sWS+1}], {WS_EPOCH}
    s_mov_b32 s{rW}, s{sW1}
    s_and_b32 s{rW+1}, s{sW1+1}, 0xffff
    s_mul_i32 s{rW+2}, s{sAct}, {2048*3072}
    s_mov_b32 s{rW+3}, 0x20000
    """)


@script_step('SA')
def _():
    if P['arr2'] == 2:
        a(f"""
        s_and_b32 s{t3}, s{sx}, 1
        s_lshl_b32 s{sDT2}, s{t3}, 2
        s_lshl_b32 s{sRot2}, s{t3}, 1
        s_lshr_b32 s{t3}, s{sx}, 1
        s_lshl_b32 s{sST2}, s{t3}, 3
        s_lshr_b32 s{t2}, s{sj}, 2
        s_add_u32 s{sST2}, s{sST2}, s{t2}
        s_and_b32 s{t3}, s{sj}, 3
        s_add_u32 s{sDT2}, s{sDT2}, s{t3}
        s_mul_i32 s{t3}, s{t3}, 3
        s_add_u32 s{sRot2}, s{sRot2}, s{t3}
        """)
    else:
        a(f"""
        s_and_b32 s{sDT2}, s{sj}, 7
        s_lshr_b32 s{t2}, s{sj}, 3
        s_lshl2_add_u32 s{sST2}, s{sx}, s{t2}
        s_mul_i32 s{sRot2}, s{sDT2}, 3
        s_lshr_b32 s{sRot2}, s{sRot2}, 1
        """)
    if P['urot']:
        a(f"""
        s_mul_i32 s{t2}, s{t2}, {P['urot']}
        s_lshr_b32 s{t2}, s{t2}, 4
        s_add_u32 s{sRot2}, s{sRot2}, s{t2}
        s_cmp_ge_u32 s{sRot2}, 12
        s_cselect_b32 s{t3}, 12, 0
        s_sub_u32 s{sRot2}, s{sRot2}, s{t3}
        """)
    if P['xrot2']:
        a(f"""
        s_lshr_b32 s{t2}, s{sx}, {P['arr2']-1}
        s_mul_i32 s{t2}, s{t2}, {P['xrot2']}
        s_lshr_b32 s{t2}, s{t2}, 1
        s_add_u32 s{sRot2}, s{sRot2}, s{t2}
        s_cmp_ge_u32 s{sRot2}, 12
        s_cselect_b32 s{t3}, 12, 0
        s_sub_u32 s{sRot2}, s{sRot2}, s{t3}
        """)
    a(f"""
    s_mul_i32 s{sP0}, s{sx}, 80
    s_lshr_b32 s{t3}, s{sj}, 1
    s_mul_i32 s{t3}, s{t3}, 5
    s_add_u32 s{sP0}, s{sP0}, s{t3}
    s_and_b32 s{t3}, s{sj}, 1
    s_sub_u32 s{sNCH}, 3, s{t3}
    s_mul_i32 s{t3}, s{t3}, 3
    s_add_u32 s{sP0}, s{sP0}, s{t3}
    s_mov_b32 s{sOOB}, {OOB}
    s_mov_b32 s{rWS}, s{sWS}
    s_and_b32 s{rWS+1}, s{sWS+1}, 0xffff
    s_mov_b32 s{rWS+2}, {WS_END}
    s_mov_b32 s{rWS+3}, 0x20000
    s_mov_b32 s{rK}, s{sK}
    s_and_b32 s{rK+1}, s{sK+1}, 0xffff
    s_mov_b32 s{rK+2}, {2048*1280}
    s_mov_b32 s{rK+3}, 0x20000
    s_mov_b32 s{rH}, s{sHK}
    s_and_b32 s{rH+1}, s{sHK+1}, 0xffff
    s_mov_b32 s{rH+2}, {640*4096}
    s_mov_b32 s{rH+3}, 0x20000
    """)
    chan_of(sCh[0], sP0)
    a(f"""
    s_add_u32 s{t2}, s{sP0}, s{sNCH}
    s_sub_u32 s{t2}, s{t2}, 1
    """)
    chan_of(sChE, t2)
    a(f"""
    s_lshr_b32 s{t2}, s{sWave}, 1
    s_add_u32 s{t2}, s{t2}, s{sP0}
    """)
    chan_of(sChM, t2)
    a(f"""
    s_mov_b32 s{sC40}, 40960
    v_lshrrev_b32 v{t0}, 2, v{vU}
    v_lshl_add_u32 v{t0}, v{vG}, 3, v{t0}
    v_lshlrev_b32 v{t0}, 7, v{t0}
    v_and_b32 v{t1}, 3, v{vU}
    v_lshl_add_u32 v{t0}, v{t1}, 3, v{t0}
    v_add_u32 v{t0}, s{sRing}, v{t0}
    v_lshrrev_b32 v{t1}, 3, v{vU}
    v_and_b32 v{t4}, 1, v{vG}
    v_lshl_add_u32 v{t1}, v{t4}, 1, v{t1}
    """)
    for n in range(4):
        a(f"""
        v_xor_b32 v{t4}, {n}, v{t1}
        v_lshl_add_u32 v{vTr+n}, v{t4}, 5, v{t0}
        """)
    a(f"""
    v_mul_u32_u24 v{vLw2}, {LNROW}, v{vRow}
    v_add_u32 v{vLw2}, {L_LN}, v{vLw2}
    v_lshl_add_u32 v{vLw}, v{vL5}, 4, v{vLw2}
    v_lshl_add_u32 v{vLw2}, v{vL5}, 3, v{vLw2}
    v_lshrrev_b32 v{t0}, 2, v{vU}
    v_mul_u32_u24 v{t0}, {LNROW}, v{t0}
    v_and_b32 v{t1}, 3, v{vU}
    v_lshl_add_u32 v{t0}, v{t1}, 3, v{t0}
    v_lshl_add_u32 v{t0}, v{vG}, 5, v{t0}
    s_lshl_b32 s{t2}, s{sWave}, 7
    s_add_u32 s{t2}, s{t2}, {L_LN}
    v_add_u32 v{vLr}, s{t2}, v{t0}
    s_mul_i32 s{t3}, s{sR}, 10240
    s_add_u32 s{t2}, s{t3}, {WS_HT8}
    v_lshl_add_u32 v{vHs}, v0, 4, s{t2}
    v_add_u32 v{vHs1}, 4096, v{vHs}
    s_cmp_lt_u32 s{sWave}, 2
    s_cselect_b32 s{t2}, 8192, s{sOOB}
    v_add_u32 v{vHs2}, s{t2}, v{vHs}
    v_lshl_add_u32 v{vKo}, v0, 2, s{t3}
    v_add_u32 v{vKo4}, 5120, v{vKo}
    v_subrev_u32 v{vKoh}, 3840, v{vKo}
    v_lshlrev_b32 v{vTo}, 4, v0
    v_add_u32 v{vKs}, {WS_KV-WS_HT8}, v{vHs}
    v_add_u32 v{vKs+1}, 5120, v{vKs}
    v_lshlrev_b32 v{vGa}, 4, v{vL5}
    v_lshlrev_b32 v{vGa2}, 3, v{vL5}
    s_lshl_b32 s{t2}, s{sR}, 5
    s_add_u32 s{t2}, s{t2}, {WS_G}
    v_lshl_add_u32 v{vGs}, v{vRow}, 2, s{t2}
    v_mul_u32_u24 v{t0}, 2560, v{vG}
    s_lshl_b32 s{t2}, s{sWave}, 6
    v_lshl_add_u32 v{t1}, v{vU}, 2, s{t2}
    s_add_u32 s{t3}, s{t3}, {1024+3840}
    v_sub_u32 v{t0}, v{t1}, v{t0}
    v_add_u32 v{vK2a}, s{t3}, v{t0}
    v_lshlrev_b32 v{t1}, 2, v{t1}
    v_add_u32 v{vK2t}, 4096, v{t1}
    v_add_u32 v{vK2a+1}, 1280, v{vK2a}
    v_add_u32 v{vK2a+2}, 2560, v{vK2a}
    v_add_u32 v{vK2a+3}, 3840, v{vK2a}
    s_lshl_b32 s{t2}, s{sWave}, 10
    v_lshl_add_u32 v{t0}, v{vLane}, 3, s{t2}
    v_lshl_add_u32 v{vSa}, s{sCh[0]}, 12, v{t0}
    v_add_u32 v{vSa+1}, 8192, v{vSa}
    v_lshl_add_u32 v{vSa+2}, s{sChE}, 12, v{t0}
    s_lshl1_add_u32 s{t2}, s{sWave}, s{sCh[0]}
    s_min_u32 s{t2}, s{t2}, s{sChE}
    s_lshl_b32 s{t2}, s{t2}, 12
    """)
    for jj in range(3):
        a(f"""
        v_subrev_u32 v{t0}, {8-jj}, v{vLane}
        v_lshl_add_u32 v{t1}, v{t0}, 2, s{t2}
        v_and_or_b32 v{vSna+jj}, v{t0}, s{sOOB}, v{t1}
        """)
    a(f"""
    v_lshlrev_b32 v{vMla}, 1, s{sChE}
    v_lshlrev_b32 v{vMla+1}, 1, s{sChM}
    s_min_u32 s{t2}, s{sFT}, 23
    s_lshl_b32 s{t2}, s{t2}, 7
    v_lshl_add_u32 v{vMla+2}, v{vG}, 3, s{t2}
    """)


@script_step('CP')
def _():
    a.raw('    s_getpc_b64 s[16:17]')
    a.label('L_pc')
    a(f"""
    s_lshl2_add_u32 s{t2}, s{sj}, s{sWave}
    s_lshl_b32 s{t2}, s{t2}, 8
    v_lshl_add_u32 v{t0}, v{vLane}, 6, s{t2}
    v_min_u32 v{t0}, L_end-L_pc, v{t0}
    s_mov_b64 exec, 15
    global_load_dword v200, v{t0}, s[16:17]
    s_mov_b64 exec, -1
    """)


@script_step('LN')
def _():
    a.wait_vm('q')
    stamp('q')
    for i in range(10):
        a('v_lshlrev_b32 %s, 16, %s' % (vr(vX + 2 * i), vr(vQ + i)))
        a('v_and_b32 %s, 0xffff0000, %s' % (vr(vX + 2 * i + 1), vr(vQ + i)))
    vS = vT + 4
    a('v_pk_add_f32 %s, %s, %s' % (vr(vS, 2), vr(vX, 2), vr(vX + 2, 2)))
    a('v_pk_add_f32 %s, %s, %s' % (vr(vS + 2, 2), vr(vX + 4, 2), vr(vX + 6, 2)))
    for i in range(4, 10):
        d = vS + 2 * (i & 1)
        a('v_pk_add_f32 %s, %s, %s' % (vr(d, 2), vr(d, 2), vr(vX + 2 * i, 2)))
    a('v_pk_add_f32 %s, %s, %s' % (vr(vS, 2), vr(vS, 2), vr(vS + 2, 2)))
    a('v_add_f32 %s, %s, %s' % (vr(vS), vr(vS), vr(vS + 1)))
    reduce32(vS, vS + 1)
    a('v_mul_f32 %s, 0x%08x, %s' % (vr(vS), f2u(-1.0 / 640), vr(vS)))
    for i in range(10):
        a('v_pk_add_f32 %s, %s, %s op_sel_hi:[1,0]' % (vr(vX + 2 * i, 2), vr(vX + 2 * i, 2), vr(vS, 2)))
    a('v_pk_mul_f32 %s, %s, %s' % (vr(vS, 2), vr(vX, 2), vr(vX, 2)))
    a('v_pk_mul_f32 %s, %s, %s' % (vr(vS + 2, 2), vr(vX + 2, 2), vr(vX + 2, 2)))
    for i in range(2, 10):
        d = vS + 2 * (i & 1)
        a('v_pk_fma_f32 %s, %s, %s, %s' % (vr(d, 2), vr(vX + 2 * i, 2), vr(vX + 2 * i, 2), vr(d, 2)))
    a('v_pk_add_f32 %s, %s, %s' % (vr(vS, 2), vr(vS, 2), vr(vS + 2, 2)))
    a('v_add_f32 %s, %s, %s' % (vr(vS), vr(vS), vr(vS + 1)))
    reduce32(vS, vS + 1)
    a('v_mov_b32 %s, 0x%08x' % (vr(vS + 1), f2u(1e-5)))
    a('v_fmac_f32 %s, 0x%08x, %s' % (vr(vS + 1), f2u(1.0 / 640), vr(vS)))
    a('v_rsq_f32 %s, %s' % (vr(vS), vr(vS + 1)))
    for i in range(10):
        a('v_pk_mul_f32 %s, %s, %s op_sel_hi:[1,0]' % (vr(vX + 2 * i, 2), vr(vX + 2 * i, 2), vr(vS, 2)))
    for i in range(10):
        a('v_cvt_pk_bf16_f32 %s, %s, %s' % (vr(vHp + i), vr(vX + 2 * i), vr(vX + 2 * i + 1)))
    a('ds_write_b128 %s, %s' % (vr(vLw), vr(vHp, 4)))
    a('ds_write_b128 %s, %s offset:512' % (vr(vLw), vr(vHp + 4, 4)))
    a('ds_write_b64 %s, %s offset:1024' % (vr(vLw2), vr(vHp + 8, 2)))
    a('s_waitcnt lgkmcnt(0)')
    a('s_barrier')
    for m in range(3):
        for hh in range(2):
            a('ds_read_b64_tr_b16 %s, %s offset:%d' % (
                vr(vHt + 4 * m + 2 * hh, 2), vr(vLr), 512 * m + 4 * LNROW * hh), tag=('ht', m))
    a(f"""
    s_add_u32 s{sN}, s{sN}, 0x9e3779b1
    s_add_u32 s{sN+1}, s{sN+1}, 0x85ebca77
    v_mov_b32 v{vN}, s{sN}
    v_mov_b32 v{vN+1}, s{sN+1}
    """)
    for m, vo in enumerate((vHs, vHs1, vHs2)):
        a.wait_lg(('ht', m))
        a('buffer_store_dwordx4 %s, %s, %s, 0 offen sc1' % (vr(vHt + 4 * m, 4), vr(vo), sr(rWS, 4)), tag='hst')
    stamp('hst')


small = {}
small['GW'] = [('global_load_dwordx4 %s, %s, %s' % (vr(vGWp, 4), vr(vGa), sr(sGW, 2)), 'gw'),
               ('global_load_dwordx4 %s, %s, %s offset:512' % (vr(vGWp + 4, 4), vr(vGa), sr(sGW, 2)), 'gw'),
               ('global_load_dwordx2 %s, %s, %s offset:1024' % (vr(vGWp + 8, 2), vr(vGa2), sr(sGW, 2)), 'gw')]
small['KL'] = []
for r in list(range(3, 11)) + [0, 1, 2]:
    vo, off = ((vKoh, 1280 * r) if r < 3 else (vKo, 1280 * (r - 3)) if r < 7 else (vKo4, 1280 * (r - 7)))
    small['KL'].append(('buffer_load_dword %s, %s, %s, 0 offen offset:%d' % (
        vr(vKV1 + 4 + r), vr(vo), sr(rK, 4), off), 'kv1'))
small['KL'].append(('global_load_dwordx4 %s, %s, %s' % (vr(vKV1, 4), vr(vTo), sr(sSK, 2)), 'kv1'))
small['VL'] = []
for r in range(8):
    vo, off = ((vKo, 1280 * r) if r < 4 else (vKo4, 1280 * (r - 4)))
    small['VL'].append(('global_load_dword %s, %s, %s offset:%d' % (vr(vKV1 + 15 + r), vr(vo), sr(sV, 2), off), 'kv1'))
small['K2L'] = [('buffer_load_dword %s, %s, %s, 0 offen offset:%d' % (
    vr(vKV2 + 4 + m), vr(vK2a + min(m, 3)), sr(rK, 4), 1280 if m == 4 else 0), 'kv2') for m in range(5)]
small['K2L'] += [('global_load_dword %s, %s, %s offset:%d' % (
    vr(vKV2 + 9 + m), vr(vK2a + 3), sr(sV, 2), 1280 * m), 'kv2') for m in range(2)]
small['K2L'].append(('global_load_dwordx4 %s, %s, %s' % (vr(vKV2, 4), vr(vK2t), sr(sSK, 2)), 'kv2'))
small['SSL'] = [('buffer_load_dwordx4 %s, %s, %s, 0 offen offset:%d' % (
    vr(vSS + 8 * t + 4 * c, 4), vr(vSa + t), sr(rH, 4), 512 * c), 'ss') for t in range(3) for c in range(2)]
small['SSL'] += [('buffer_load_dword %s, %s, %s, 0 offen' % (vr(vSN + jj), vr(vSna + jj), sr(rH, 4)), 'ss')
                 for jj in range(3)]
small['ML'] = [('global_load_ushort %s, %s, %s' % (vr(vDe), vr(vMla), sr(sD, 2)), 'dd'),
               ('global_load_ushort %s, %s, %s' % (vr(vDm), vr(vMla + 1), sr(sD, 2)), 'dd')]
small['ML'] += [('global_load_dwordx2 %s, %s, %s offset:%d' % (
    vr(vB1 + 2 * n, 2), vr(vMla + 2), sr(sB1, 2), 32 * n), 'b1') for n in range(4)]

W = []


def w_dma(i):
    L = dma_list('w1', i, i % 6)
    pre = [lambda: a.wait_lg(('tr', 'w1', i - 6))] if i >= 6 else []
    W.append(('D', i, False, pre + L[:-3]))
    for k in range(3):
        W.append(('D', i, k == 2, [L[-3 + k]]))


def w_tr(i):
    L = tr_list('w1', i, i % 6)
    W.append(('T', i, False, [lambda: a.wait_vm(('w1', i))] + L[:4]))
    W.append(('T', i, True, L[4:]))


nd = nt = 0
for tok in P['wscript'].replace('_', ' ').split():
    if tok in small:
        for k, it in enumerate(small[tok]):
            W.append(('W', tok, k == len(small[tok]) - 1, [it]))
    elif tok[0] == 'D':
        assert int(tok[1:]) == nd and nd < nt + 6
        w_dma(nd)
        nd += 1
    else:
        assert int(tok[1:]) == nt and nt < nd
        w_tr(nt)
        nt += 1
while nt < 16:
    w_tr(nt)
    nt += 1
    while nd < 16 and nd < nt + 5:
        w_dma(nd)
        nd += 1
T4Q = []
wdone = set()


def w_atom():
    kind, i, fin_, items = W.pop(0)
    was = a.in_hook
    a.in_hook = True
    for it in items:
        emit(it)
    a.in_hook = was
    if fin_:
        wdone.add((kind, i))


def w_until(kind, i):
    n = 0
    while (kind, i) not in wdone:
        w_atom()
        n += 1
        if T4Q and n % 2 == 0:
            was = a.in_hook
            a.in_hook = True
            T4Q.pop(0)()
            a.in_hook = was


rate, since = [0], [0, 0]


def w_hook():
    since[0] += 1
    if rate[0] and since[0] >= rate[0] and W:
        since[0] = 0
        w_atom()
    since[1] += 1
    if T4Q and since[1] >= P['t4rate']:
        since[1] = 0
        T4Q.pop(0)()


@script_step('GATE')
def _():
    w_until('W', 'GW')
    a.wait_vm('gw')
    vZ = vT + 4
    a('v_mov_b32 %s, 0' % vr(vZ))
    for i in range(10):
        a('v_dot2_f32_bf16 %s, %s, %s, %s' % (vr(vZ), vr(vQ + i), vr(vGWp + i), vr(vZ)))
    reduce32(vZ, vZ + 1)
    a(f"""
    v_mul_f32 v{vZ}, 0xbfb8aa3b, v{vZ}
    v_exp_f32 v{vZ}, v{vZ}
    v_add_f32 v{vZ}, 1.0, v{vZ}
    v_rcp_f32 v{vZ}, v{vZ}
    s_mov_b32 exec_lo, 1
    s_mov_b32 exec_hi, 1
    """)
    a('buffer_store_dword %s, %s, %s, 0 offen sc1' % (vr(vZ), vr(vGs), sr(rWS, 4)), tag='kvst')
    a('s_mov_b64 exec, -1')


vP, vKu, vAcc, vVt, vKp = 64, 72, 94, 110, 112


def kv_compute(b):
    for c in range(2):
        for h in range(2):
            a('v_lshlrev_b32 %s, 16, %s' % (vr(vP + 4 * h + c), vr(b + 2 * c + h)))
            a('v_and_b32 %s, 0xffff0000, %s' % (vr(vP + 4 * h + 2 + c), vr(b + 2 * c + h)))
    for r in range(11):
        a('v_lshlrev_b32 %s, 16, %s' % (vr(vKu + 2 * r), vr(b + 4 + r)))
        a('v_and_b32 %s, 0xffff0000, %s' % (vr(vKu + 2 * r + 1), vr(b + 4 + r)))
    for r in range(8):
        d = vr(vAcc + 2 * r, 2)
        a('v_pk_mul_f32 %s, %s, %s' % (d, vr(vP + 6, 2), vr(vKu + 2 * r, 2)))
        a('v_lshlrev_b32 %s, 16, %s' % (vr(vVt), vr(b + 15 + r)))
        for j in (2, 1, 0):
            a('v_pk_fma_f32 %s, %s, %s, %s' % (d, vr(vP + 2 * j, 2), vr(vKu + 2 * (r + 3 - j), 2), d))
        a('v_and_b32 %s, 0xffff0000, %s' % (vr(vVt + 1), vr(b + 15 + r)))
        a('v_pk_mul_f32 %s, %s, %s' % (d, d, vr(vVt, 2)))
    for c in range(2):
        for j in range(4):
            a('v_cvt_pk_bf16_f32 %s, %s, %s' % (
                vr(vKp + 4 * c + j), vr(vAcc + 2 * (7 - 2 * j) + c), vr(vAcc + 2 * (6 - 2 * j) + c)))
    a('buffer_store_dwordx4 %s, %s, %s, 0 offen sc1' % (vr(vKp, 4), vr(vKs), sr(rWS, 4)), tag='kvst')
    a('buffer_store_dwordx4 %s, %s, %s, 0 offen sc1' % (vr(vKp + 4, 4), vr(vKs + 1), sr(rWS, 4)), tag='kvst')


@script_step('KC')
def _():
    w_until('W', 'KL')
    w_until('W', 'VL')
    a.wait_vm('kv1')
    kv_compute(vKV1)


@script_step('K2C')
def _():
    b = vKV2
    w_until('W', 'K2L')
    a.wait_vm('kv2')
    for c in range(2):
        for h in range(2):
            a('v_lshlrev_b32 %s, 16, %s' % (vr(vP + 4 * h + c), vr(b + 2 * c + h)))
            a('v_and_b32 %s, 0xffff0000, %s' % (vr(vP + 4 * h + 2 + c), vr(b + 2 * c + h)))
    for r in range(7):
        a('v_lshlrev_b32 %s, 16, %s' % (vr(vKu + 2 * r), vr(b + 4 + r)))
        a('v_and_b32 %s, 0xffff0000, %s' % (vr(vKu + 2 * r + 1), vr(b + 4 + r)))
    for r in range(2):
        d = vr(vAcc + 2 * r, 2)
        a('v_pk_mul_f32 %s, %s, %s' % (d, vr(vP + 6, 2), vr(vKu + 2 * r, 2)))
        for j in (2, 1, 0):
            a('v_pk_fma_f32 %s, %s, %s, %s' % (d, vr(vP + 2 * j, 2), vr(vKu + 2 * (r + 3 - j), 2), d))
        a('v_pk_mul_f32 %s, %s, %s' % (d, d, vr(vKu + 10 + 2 * r, 2)))
    a(f"""
    s_mul_i32 s{t2}, s{sR}, 10240
    s_add_u32 s{t2}, s{t2}, {WS_KV+4096}
    s_lshl_b32 s{t3}, s{sWave}, 8
    s_add_u32 s{t2}, s{t2}, s{t3}
    v_lshl_add_u32 v{t0}, v{vU}, 4, s{t2}
    v_lshl_add_u32 v{t0}, v{vG}, 2, v{t0}
    v_add_u32 v{t1}, 5120, v{t0}
    """)
    for c in range(2):
        a('v_cvt_pk_bf16_f32 %s, %s, %s' % (vr(vAcc + 4 + c), vr(vAcc + 2 + c), vr(vAcc + c)))
        a('buffer_store_dword %s, %s, %s, 0 offen sc1' % (vr(vAcc + 4 + c), vr((t0, t1)[c]), sr(rWS, 4)), tag='kvst')
    stamp('kvst')


@script_step('T4')
def _():
    w_until('W', 'SSL')
    a(f"""
    s_min_u32 s{t2}, s{sWave}, 2
    s_mul_i32 s{t2}, s{t2}, {T4SZ}
    s_add_u32 s{t2}, s{t2}, {L_T4}
    v_lshl_add_u32 v{vT4a}, v{vLane}, 4, s{t2}
    s_lshl_b32 s{t2}, s{sWave}, 12
    s_add_u32 s{t2}, s{t2}, {L_T4+128}
    v_lshl_add_u32 v{vT4a+1}, v{vLane}, 5, s{t2}
    """)

    def neg():
        a.wait_vm('ss')
        q = vSN
        a('v_alignbit_b32 %s, %s, %s, 16' % (vr(q + 3), vr(q + 2), vr(q + 1)))
        a('v_alignbit_b32 %s, %s, %s, 16' % (vr(q + 2), vr(q + 1), vr(q)))
        a('ds_write_b128 %s, %s' % (vr(vT4a), vr(q, 4)), tag='t4')

    def hi(t, c):
        r, n = vSS + 8 * t + 4 * c, vSNew + 4 * c
        a('v_pk_mov_b32 %s, %s, %s op_sel:[1,0]' % (vr(n, 2), vr(r, 2), vr(r + 2, 2)))
        a('v_alignbit_b32 %s, %s, %s, 16' % (vr(n + 3), vr(r + 3), vr(r + 2)))
        a('v_alignbit_b32 %s, %s, %s, 16' % (vr(n + 2), vr(r + 2), vr(r + 1)))
        a('ds_write_b128 %s, %s offset:%d' % (vr(vT4a + 1), vr(n, 4), T4SZ * t + 2048 * c + 16), tag='t4')

    def lo(t, c):
        r = vSS + 8 * t + 4 * c
        a('v_alignbit_b32 %s, %s, %s, 16' % (vr(r + 3), vr(r + 2), vr(r + 1)))
        a('v_alignbit_b32 %s, %s, %s, 16' % (vr(r + 2), vr(r + 1), vr(r)))
        a('ds_write_b128 %s, %s offset:%d' % (vr(vT4a + 1), vr(r, 4), T4SZ * t + 2048 * c), tag='t4')

    T4Q.append(neg)
    for t in range(3):
        for c in range(2):
            T4Q.append(lambda t=t, c=c: hi(t, c))
            T4Q.append(lambda t=t, c=c: lo(t, c))


@script_step('KF')
def _():
    a.wait_vm('kvst')
    a.wait_vm('hst')
    a('s_barrier')
    a(f"""
    s_lshl_b32 s{t2}, s{sR}, 5
    s_add_u32 s{t2}, s{t2}, {WS_FKV}
    s_cmp_eq_u32 s{sWave}, 0
    s_cbranch_scc0 L_nokvflag
    """)
    a.cond = True
    flag(t2)
    a.cond = False
    a.label('L_nokvflag')
    stamp('kvflag')
    a(f"""
    s_mul_i32 s{t2}, s{sWave}, {XSZ}
    s_add_u32 s{t2}, s{t2}, {L_X}
    v_lshl_add_u32 v{t0}, v{vLane}, 3, s{t2}
    v_mov_b32 v{t4}, 0
    v_mov_b32 v{t4+1}, 0
    ds_write_b64 v{t0}, v[{t4}:{t4+1}]
    """)


@script_step('SB')
def _():
    for ks in range(16):
        a(f"""
        s_add_u32 s{t2}, s{sRot}, {ks}
        s_and_b32 s{t2}, s{t2}, 15
        s_mul_i32 s{sKS+ks}, s{t2}, s{sC40}
        """)
    a(f"""
    s_lshl_b32 s{t2}, s{sDT}, 2
    s_add_u32 s{t2}, s{t2}, s{sWave}
    s_mul_i32 s{t3}, s{sFT}, 80
    s_add_u32 s{t3}, s{t3}, s{t2}
    s_lshl_b32 s{t3}, s{t3}, 10
    s_add_u32 s{t3}, s{t3}, {WS_UF}
    s_cmp_eq_u32 s{sAct}, 1
    s_cselect_b32 s{t3}, s{t3}, s{sOOB}
    v_lshl_add_u32 v{vUst}, v{vLane}, 4, s{t3}
    s_mul_i32 s{t2}, s{t2}, 24
    s_add_u32 s{t2}, s{t2}, s{sFT}
    s_lshl_b32 s{t2}, s{t2}, 5
    s_add_u32 s{t2}, s{t2}, {WS_FU}
    s_cmp_eq_u32 s{sAct}, 1
    s_cselect_b32 s{sFU}, s{t2}, {WS_DUMMY}
    v_lshlrev_b32 v{vPo}, 5, v0
    v_add_u32 v{vPo}, {WS_FKV}, v{vPo}
    v_mul_u32_u24 v{t0}, 10240, v{vG}
    v_lshl_add_u32 v{t0}, v{vU}, 4, v{t0}
    s_mul_i32 s{t2}, s{sWave}, {64*10240}
    s_lshl_b32 s{t3}, s{sDT}, 10
    s_add_u32 s{t2}, s{t2}, s{t3}
    s_add_u32 s{t2}, s{t2}, {WS_HT8}
    """)
    for st in range(4):
        a(f"""
        s_add_u32 s{t3}, s{sWave}, {st+1}
        s_and_b32 s{t3}, s{t3}, 3
        s_lshl_b32 s{t3}, s{t3}, 8
        s_add_u32 s{t3}, s{t3}, s{t2}
        v_add_u32 v{vHo+st}, s{t3}, v{t0}
        """)
    a(f'v_lshl_add_u32 v{vXa+3}, v{vLane}, 4, s{sRing}')
    for st in range(3):
        a(f"""
        s_add_u32 s{t3}, s{sWave}, {3-st}
        s_and_b32 s{t3}, s{t3}, 3
        s_mul_i32 s{t3}, s{t3}, {RINGW}
        v_lshl_add_u32 v{vXa+st}, v{vLane}, 4, s{t3}
        """)


step['HP'] = lambda: poll_issue(vPo)


def late_setup():
    L = lines(f"""
    v_lshrrev_b32 v{t0}, 2, v{vLane}
    v_and_b32 v{t1}, 3, v{vLane}
    v_min_u32 v{t1}, 2, v{t1}
    v_mul_u32_u24 v{t4}, 10240, v{t0}
    v_lshl_add_u32 v{t4}, v{t1}, 4, v{t4}
    s_mul_i32 s{t2}, s{sWave}, {64*10240}
    s_lshl_b32 s{t3}, s{sP0}, 4
    s_add_u32 s{t2}, s{t2}, s{t3}
    s_add_u32 s{t2}, s{t2}, {WS_KV}
    v_add_u32 v{t4}, s{t2}, v{t4}
    v_cmp_gt_u32 vcc, s{sNCH}, v{t1}
    v_mov_b32 v{vXg}, s{sOOB}
    v_mul_u32_u24 v{t1}, {XSZ}, v{t1}
    v_cndmask_b32 v{vXg}, v{vXg}, v{t4}, vcc
    v_lshl_add_u32 v{t1}, v{t0}, 4, v{t1}
    s_lshl_b32 s{t2}, s{sWave}, 10
    s_add_u32 s{t2}, s{t2}, {L_X+512}
    v_add_u32 v{vXw}, s{t2}, v{t1}
    v_lshlrev_b32 v{t0}, 7, v{t0}
    v_and_b32 v{t1}, 3, v{vU}
    v_lshl_add_u32 v{t0}, v{t1}, 3, v{t0}
    v_add_u32 v{t0}, s{sRing}, v{t0}
    v_bfe_u32 v{t1}, v{vLane}, 3, 2
    """)
    for n in range(4):
        L += lines(f"""
        s_add_u32 s{t2}, s{sWave}, {n}
        s_and_b32 s{t2}, s{t2}, 3
        v_xor_b32 v{t4}, s{t2}, v{t1}
        v_lshl_add_u32 v{vTr2+n}, v{t4}, 5, v{t0}
        """)
    L += lines(f"""
    v_lshlrev_b32 v{t0}, 3, v{vU}
    v_lshlrev_b32 v{t1}, 6, v{vG}
    v_sub_u32 v{t0}, v{t0}, v{t1}
    s_lshl_b32 s{t2}, s{sWave}, 9
    s_add_u32 s{t2}, s{t2}, {L_T4+2*T4SZ+200}
    v_add_u32 v{vAe}, s{t2}, v{t0}
    s_lshr_b32 s{t2}, s{sWave}, 1
    s_mul_i32 s{t2}, s{t2}, {T4SZ}
    s_and_b32 s{t3}, s{sWave}, 1
    s_lshl_b32 s{t3}, s{t3}, 10
    s_add_u32 s{t2}, s{t2}, s{t3}
    s_add_u32 s{t2}, s{t2}, {L_T4+200}
    v_add_u32 v{vAm}, s{t2}, v{t0}
    v_lshlrev_b32 v{t0}, 5, v{vU}
    v_lshl_add_u32 v{t4}, v{vG}, 4, v{t0}
    s_lshl_b32 s{t2}, s{sWave}, 7
    s_sub_u32 s{t2}, {L_X+2*XSZ+480-64}, s{t2}
    v_add_u32 v{vBe}, s{t2}, v{t4}
    s_lshr_b32 s{t2}, s{sWave}, 1
    s_mul_i32 s{t2}, s{t2}, {XSZ}
    s_lshr_b32 s{t3}, s{t3}, 2
    s_sub_u32 s{t2}, s{t2}, s{t3}
    s_add_u32 s{t2}, s{t2}, {L_X+480-192}
    v_add_u32 v{vBm}, s{t2}, v{t4}
    s_lshl_b32 s{t2}, s{sWave}, 11
    s_add_u32 s{t2}, s{t2}, {4*4096}
    v_lshl_add_u32 v{vEr}, v{vLane}, 4, s{t2}
    v_add_u32 v{vEr+1}, {2*RINGW}, v{vEr}
    v_and_b32 v{t1}, 1, v{vG}
    v_lshl_add_u32 v{t0}, v{t1}, 9, v{t0}
    v_lshrrev_b32 v{t1}, 1, v{vG}
    v_lshl_add_u32 v{t0}, v{t1}, 4, v{t0}
    s_lshl_b32 s{t2}, s{sChE}, 2
    s_add_u32 s{t2}, s{t2}, s{sWave}
    s_lshl_b32 s{t2}, s{t2}, 10
    s_add_u32 s{t2}, s{t2}, {WS_YT}
    s_cmp_eq_u32 s{sNCH}, 3
    s_cselect_b32 s{t2}, s{t2}, s{sOOB}
    v_add_u32 v{vYe}, s{t2}, v{t0}
    s_and_b32 s{t2}, s{sWave}, 1
    s_lshl1_add_u32 s{t2}, s{sChM}, s{t2}
    s_lshl_b32 s{t2}, s{t2}, 11
    s_add_u32 s{t2}, s{t2}, {WS_YT}
    v_add_u32 v{vYm}, s{t2}, v{t0}
    s_lshl_b32 s{t2}, s{sWave}, 12
    s_add_u32 s{t3}, s{t2}, {L_T4+2*T4SZ}
    v_lshl_add_u32 v{vMw}, v{vLane}, 4, s{t3}
    s_xor_b32 s{t2}, s{t2}, 4096
    s_add_u32 s{t3}, s{t2}, {L_T4+2*T4SZ}
    v_lshl_add_u32 v{vMr}, v{vLane}, 4, s{t3}
    s_mul_i32 s{t2}, s{sWave}, {12*40960}
    s_mul_i32 s{t3}, s{sDT2}, 5120
    s_add_u32 s{t2}, s{t2}, s{t3}
    s_add_u32 s{t2}, s{t2}, {WS_UF}
    v_lshl_add_u32 v{vUo}, v{vLane}, 4, s{t2}
    v_add_u32 v{vUo+1}, 4096, v{vUo}
    v_min_u32 v{t0}, 29, v{vLane}
    v_mul_u32_u24 v{t1}, 43, v{t0}
    v_lshrrev_b32 v{t1}, 8, v{t1}
    v_mul_u32_u24 v{t1}, 18, v{t1}
    v_add_u32 v{t0}, v{t0}, v{t1}
    s_mul_i32 s{t2}, s{sDT2}, 120
    s_mul_i32 s{t3}, s{sWave}, 6
    s_add_u32 s{t2}, s{t2}, s{t3}
    s_lshl_b32 s{t2}, s{t2}, 5
    s_add_u32 s{t2}, s{t2}, {WS_FU}
    v_lshl_add_u32 v{vPu}, v{t0}, 5, s{t2}
    v_lshrrev_b32 v{t0}, 3, v{vLane}
    v_lshlrev_b32 v{t0}, 12, v{t0}
    s_mul_i32 s{t2}, s{sWave}, {384*4096}
    s_lshl_b32 s{t3}, s{sST2}, 7
    s_add_u32 s{t2}, s{t2}, s{t3}
    v_add_u32 v{t0}, s{t2}, v{t0}
    v_and_b32 v{t1}, 7, v{vLane}
    v_lshlrev_b32 v{t4}, 1, v{vG}
    v_xor_b32 v{t1}, v{t1}, v{t4}
    v_lshl_add_u32 v{vWo2}, v{t1}, 4, v{t0}
    v_add_u32 v{vWo2+1}, {32768-1024}, v{vWo2}
    v_add_u32 v{vWo2+2}, {2*(32768-1024)}, v{vWo2}
    v_add_u32 v{vWo2+3}, {3*(32768-1024)}, v{vWo2}
    """)
    return L


@script_step('SL')
def _():
    for it in late_setup():
        emit(it)


@script_step('ST')
def _():
    for k in small:
        w_until('W', k)
    for it in table_setup():
        emit(it)


@script_step('AD')
def _():
    w_until('W', 'ML')
    a.wait_vm('dd')
    a(f"""
    s_cmp_eq_u32 s{sWave}, 0
    s_cselect_b32 s{t2}, 0xffff, 0
    s_bitcmp0_b32 s{sWave}, 0
    s_cselect_b32 s{t3}, 0xffff, 0
    v_and_b32 v{vDe}, s{t2}, v{vDe}
    v_and_b32 v{vDm}, s{t3}, v{vDm}
    v_lshlrev_b32 v{t0}, 3, v{vG}
    v_sub_u32 v{t0}, v{t0}, v{vU}
    v_subrev_u32 v{t0}, 9, v{t0}
    v_and_b32 v{t1}, 1, v{t0}
    v_lshlrev_b32 v{t1}, 4, v{t1}
    v_lshlrev_b32 v{vDe}, v{t1}, v{vDe}
    v_lshlrev_b32 v{vDm}, v{t1}, v{vDm}
    v_ashrrev_i32 v{t0}, 1, v{t0}
    """)
    for jj in range(4):
        a(f"""
        v_cmp_eq_u32 vcc, {jj}, v{t0}
        v_cndmask_b32 v{vADe+jj}, 0, v{vDe}, vcc
        v_cndmask_b32 v{vADm+jj}, 0, v{vDm}, vcc
        """)


C0 = -2.0 * 0.7978845608028654 * 1.4426950408889634
C1 = C0 * 0.044715
vC0 = 50


@script_step('BU')
def _():
    w_until('W', 'ML')
    a.wait_vm('b1')
    for i in range(8):
        a('v_lshlrev_b32 %s, 16, %s' % (vr(vBf + 2 * i), vr(vB1 + i)))
        a('v_and_b32 %s, 0xffff0000, %s' % (vr(vBf + 2 * i + 1), vr(vB1 + i)))
    a(f"""
    s_mov_b32 s{sT0}, 0x{f2u(C1):08x}
    s_mov_b32 s{sT1}, 0x{f2u(C1):08x}
    v_mov_b32 v{vC0}, 0x{f2u(C0):08x}
    v_mov_b32 v{vC0+1}, 0x{f2u(C0):08x}
    """)


def table_setup():
    L = []
    for ks in range(12):
        if ks:
            L += lines(f"""
            s_add_u32 s{sRot2}, s{sRot2}, 1
            s_cmp_eq_u32 s{sRot2}, 12
            s_cselect_b32 s{sRot2}, 0, s{sRot2}
            """)
        L += lines(f"""
        s_lshl_b32 s{sW2o[ks]}, s{sRot2}, 17
        s_mul_i32 s{sUo[ks]}, s{sRot2}, s{sC40}
        """)
    return L


def lines(txt):
    L = []
    for l in txt.strip().split('\n'):
        l = l.strip()
        if not l:
            continue
        if l.startswith('s_cselect'):
            L[-1] = (L[-1][0] + '\n' + l, None)
        else:
            L.append((l, None))
    return L


def emit(it):
    if callable(it):
        it()
    else:
        a(it[0], tag=it[1])


a.hook = w_hook
for tok in P['script'].replace('_', ' ').split():
    if tok.startswith('S:'):
        stamp(tok[2:])
    elif tok.startswith('R:'):
        rate[0] = int(tok[2:])
    elif tok.startswith('W:'):
        w_until('W', tok[2:])
    elif tok != 'T4' and tok[0] in 'DT' and tok[1:].isdigit():
        w_until(tok[0], int(tok[1:]))
    else:
        step[tok]()
a.hook = None
while T4Q:
    T4Q.pop(0)()
assert ('D', 15) in wdone
a(f"""
s_mov_b32 s{rW}, s{sW2}
s_and_b32 s{rW+1}, s{sW2+1}, 0xffff
s_mov_b32 s{rW+2}, {1536*4096}
""")


def gather_list():
    return [(f's_mul_i32 s{sWoff}, s{sC40}, {4*m}\n' + 'buffer_load_dwordx4 %s, %s, %s, %s offen sc1' % (
        vr(vXl + 4 * m, 4), vr(vXg), sr(rWS, 4), sr(sWoff)), ('xl', m)) for m in range(4)]


def x_write(m):
    a.wait_vm(('xl', m))
    a('ds_write_b128 %s, %s offset:%d' % (vr(vXw), vr(vXl + 4 * m, 4), 256 * m), tag='xw')


def w2_atoms(ks, slot):
    L = dma_list('w2', ks, slot)
    return [(L[0][0] + '\n' + L[1][0], L[1][1])] + L[2:]


mtime = {}


class Sched:
    def __init__(self):
        self.k = 0
        self.streams = []
        self.credit = 8.0
        self.lastvm = -100

    def stream(self, *items):
        st = dict(q=list(items), wake=0)
        self.streams.append(st)
        return st['q']

    @staticmethod
    def kind(it):
        if callable(it):
            return 'misc', 1, 0
        if it[0] == 'vm':
            return 'vm', 2, 0
        op = it[0].split('\n')[-1].split()[0]
        if op.startswith(('buffer_', 'global_')):
            return 'vm', 2, 0
        if op.startswith('ds_write'):
            return 'lds', 1, 13
        if op.startswith('ds_read_b128'):
            return 'lds', 1, 4
        if op.startswith('ds_'):
            return 'lds', 1, 2
        if op.startswith('s_') and op != 's_barrier':
            return 'salu', 0.67, 0
        return 'valu', 1, 0

    def do(self, it):
        if not callable(it) and it[0] == 'vm':
            it[1]()
        else:
            emit(it)

    def gap(self, budget):
        self.k += 1
        self.credit = min(self.credit + P['ldsr'], 8.0)
        for st in self.streams:
            q = st['q']
            while q and budget > 0:
                it = q[0]
                if not callable(it) and it[0] == 'at':
                    if self.k < it[1]:
                        break
                    q.pop(0)
                    continue
                if not callable(it) and it[0] == 'delay':
                    st['wake'] = self.k + it[1]
                    q.pop(0)
                    continue
                if not callable(it) and it[0] == 'after':
                    if it[1]:
                        break
                    q.pop(0)
                    continue
                if not callable(it) and it[0] == 'since':
                    if it[1] not in mtime or self.k < mtime[it[1]] + it[2]:
                        break
                    q.pop(0)
                    continue
                if self.k < st['wake']:
                    break
                kind, cost, lds = self.kind(it)
                if kind == 'vm' and (self.k - self.lastvm < P['vsp'] or
                                     (budget < 2 and self.k - self.lastvm < P['vsp'] + 2)):
                    break
                if kind == 'lds' and self.credit <= 0:
                    break
                q.pop(0)
                n0 = len(a.out)
                self.do(it)
                if len(a.out) > n0:
                    budget -= cost
                self.credit -= lds
                if kind == 'vm':
                    self.lastvm = self.k

    def flush(self, q, until=None):
        while q and (until is None or until()):
            it = q.pop(0)
            if callable(it) or it[0] not in ('at', 'delay', 'after'):
                self.do(it)
            elif it[0] == 'after':
                self.flush(it[1])


NT = P['ntail']
assert NT % 4 == 0 and NT <= 12
a('s_cmp_eq_u32 %s, 1' % sr(sAct))
a('s_cbranch_scc1 L_gemm1')
sv, sl, sh = list(a.vm), list(a.lg), list(a.hist)
if P['npf']:
    if P['arr2'] == 1:
        a(f"""
        s_and_b32 s{t2}, s{sR}, 1
        s_lshl2_add_u32 s{t2}, s{t2}, s{sWave}
        s_mul_i32 s{t2}, s{t2}, {192*4096}
        s_lshr_b32 s{t3}, s{sR}, 5
        s_lshl_b32 s{t3}, s{t3}, 9
        s_add_u32 s{t2}, s{t2}, s{t3}
        v_lshrrev_b32 v{t0}, 3, v{vLane}
        v_lshlrev_b32 v{t0}, 12, v{t0}
        v_and_b32 v{t1}, 7, v{vLane}
        """)
        pstep = 8 * 4096
    else:
        a(f"""
        s_and_b32 s{t2}, s{sR}, 1
        s_bfe_u32 s{t3}, s{sR}, 0x10005
        s_lshl1_add_u32 s{t2}, s{t3}, s{t2}
        s_lshl2_add_u32 s{t2}, s{t2}, s{sWave}
        s_mul_i32 s{t2}, s{t2}, {96*4096}
        s_lshr_b32 s{t3}, s{sR}, 6
        s_lshl_b32 s{t3}, s{t3}, 10
        s_add_u32 s{t2}, s{t2}, s{t3}
        v_lshlrev_b32 v{t0}, 12, v{vG}
        v_mov_b32 v{t1}, v{vU}
        """)
        pstep = 4 * 4096
    a(f"""
    v_lshl_add_u32 v{t0}, v{t1}, 6, v{t0}
    v_add_u32 v{t0}, s{t2}, v{t0}
    s_mov_b32 s{t2}, 0
    """)
    a.label('L_pf')
    a(f"""
    buffer_load_dword v200, v{t0}, s[{rW}:{rW+3}], s{t2} offen
    s_add_u32 s{t2}, s{t2}, {pstep}
    s_cmp_lt_u32 s{t2}, {pstep*P['npf']}
    s_cbranch_scc1 L_pf
    """)
a('s_waitcnt vmcnt(0) lgkmcnt(0)')
poll_check('L_pollh0', vPo)
for it in gather_list():
    emit(it)
for ks in range(NT // 4):
    D('w2', ks, ks)
for m in range(4):
    x_write(m)
a('s_waitcnt vmcnt(0) lgkmcnt(0)')
a('s_barrier')
a('s_branch L_join')
a.vm, a.lg, a.hist = sv, sl, sh
a.label('L_gemm1')
poll_check('L_pollh', vPo)
stamp('hpoll')
WIN = P['win']
vWin = 96
vAc = 64


def hload(F):
    st, ks = divmod(F, 16)
    a('buffer_load_dwordx4 %s, %s, %s, %s offen sc1' % (
        vr(vWin + 4 * (F % WIN), 4), vr(vHo + st), sr(rWS, 4), sr(sKS + ks)), tag=('h', F))


for F in range(WIN):
    hload(F)
    if W:
        w_atom()
while W:
    w_atom()
vPt = 160
g1 = Sched()
side = g1.stream()
gq = gather_list()
tailq = []
for i in range(4):
    tailq += w2_atoms(i, i)
GAT = P['gat']
assert GAT + WIN + 4 <= 49
for F in range(64):
    st, ks = divmod(F, 16)
    a.wait_vm(('h', F))
    if st == 0:
        a.wait_lg(('tr', 'w1', ks))
    acc = vAc + 16 * (st & 1)
    for n in range(4):
        d = vr(acc + 4 * n, 4)
        a('v_mfma_f32_16x16x32_bf16 %s, %s, %s, %s' % (
            d, ar(16 * ks + 4 * n, 4), vr(vWin + 4 * (F % WIN), 4), '0' if ks == 0 else d))
        if n == 1 and GAT <= F < GAT + 4:
            emit(gq.pop(0))
        elif n == 1 and 0 <= F - (GAT + WIN + 1) < 4:
            x_write(F - (GAT + WIN + 1))
        elif n < 3:
            g1.gap(2)
    if F + WIN < 64:
        hload(F + WIN)
    elif len(tailq) > 16 - NT:
        emit(tailq.pop(0))
    if st > 0 and ks == 1:
        pa = vAc + 16 * ((st - 1) & 1)
        for n in range(4):
            side.append(('ds_write_b128 %s, %s offset:%d' % (
                vr(vXa + 3), vr(pa + 4 * n, 4), 4096 * (2 + st) + 1024 * n), 'pw'))
        if st == 3:
            side += [('delay', 3), ('s_waitcnt lgkmcnt(0)', None), ('s_barrier', None)]
            for s2 in range(3):
                for n in range(4):
                    side.append(('ds_read_b128 %s, %s offset:%d' % (
                        vr(vPt + 16 * s2 + 4 * n, 4), vr(vXa + s2), 4096 * (3 + s2) + 1024 * n), ('pr', s2)))
                if s2:
                    side.append(lambda s2=s2: a.wait_lg(('pr', s2 - 1)))
                    for i in range(16):
                        side.append(('v_add_f32 %s, %s, %s' % (
                            vr(vBf + i), vr(vBf + i), vr(vPt + 16 * (s2 - 1) + i)), None))
g1left = len(side)
g1.flush(side)
while len(tailq) > 16 - NT:
    emit(tailq.pop(0))
stamp('g1end')
a.label('L_join')
vAccM = 64
aAccE = 224
aOth = 192
UW = P['uw']
NPOOL = 35 - UW
POOL = [96 + 4 * i for i in range(NPOOL)]
vUw = 96 + 4 * NPOOL
vOwn = 236

mf = []
units = [('e', 0), ('e', 1), ('m', 0), ('m', 1), ('m', 2), ('m', 3)]
ustart = []
for ui, (kind, e) in enumerate(units):
    accs = (lambda q: ar(aAccE + 4 * q, 4)) if kind == 'e' else (lambda q: vr(vAccM + 4 * q, 4))
    ustart.append(len(mf))
    if e == 0:
        for q in range(8):
            mf.append((accs(q), vr(vADe if kind == 'e' else vADm, 4), ('B', ui, q), '0'))
    rows = range(8) if ui % 2 == 0 else range(7, -1, -1)
    for r in rows:
        for q in range(r, 8):
            mf.append((accs(q), ('A', ui, r), ('B', ui, q - r), accs(q)))
ustart.append(len(mf))


def frag_loads(key, reg):
    t, ui, i = key
    kind, e = units[ui]
    if t == 'A':
        v = vAe if kind == 'e' else vAm
        return ['ds_read_b64 %s, %s offset:%d' % (vr(reg, 2), vr(v), 256 * e + 2048 * i),
                'ds_read_b64 %s, %s offset:%d' % (vr(reg + 2, 2), vr(v), 256 * e + 2048 * i + 32)]
    v, b = (vBe, 64) if kind == 'e' else (vBm, 192)
    return ['ds_read_b128 %s, %s offset:%d' % (vr(reg, 4), vr(v), b - 64 * e + 512 * i)]


order, last = [], {}
for k, (d, A, B, C) in enumerate(mf):
    for f in (A, B):
        if isinstance(f, tuple):
            if f not in last:
                order.append(f)
            last[f] = k
free, reg_of, pend, issued_at = list(POOL), {}, [], {}
cv = Sched()


def issue_frag(maxn):
    n = 0
    while n < maxn:
        if not pend:
            if not order or not free:
                return n
            f = order.pop(0)
            reg_of[f] = free.pop(0)
            pend.extend((x, f) for x in frag_loads(f, reg_of[f]))
        x, f = pend.pop(0)
        a(x, tag=f)
        cv.credit -= 4 if 'b128' in x else 2
        issued_at[f] = cv.k
        n += 1
    return n


def wait_frags(*fs):
    if not any(t in fs for t in a.lg):
        return 0
    more = [t for t in a.lg if t in issued_at and issued_at[t] <= cv.k - P['lead'] and not any(p[1] == t for p in pend)]
    a.wait_lg(*fs, *more)
    return 1


issue_frag(12)
a.wait_lg(('pr', 2))
acc = vAc + 16
vE, vEp = 172, 224
for i in range(8):
    a('v_pk_add_f32 %s, %s, %s' % (vr(vBf + 2 * i, 2), vr(vBf + 2 * i, 2), vr(vPt + 32 + 2 * i, 2)))
for p in range(2):
    rng = range(4 * p, 4 * p + 4)
    for i in rng:
        a('v_pk_add_f32 %s, %s, %s' % (vr(vBf + 2 * i, 2), vr(vBf + 2 * i, 2), vr(acc + 2 * i, 2)))
    for i in rng:
        a('v_pk_mul_f32 %s, %s, %s' % (vr(vE + 2 * i, 2), vr(vBf + 2 * i, 2), vr(vBf + 2 * i, 2)))
    for i in rng:
        a('v_pk_fma_f32 %s, %s, %s, %s' % (vr(vE + 2 * i, 2), vr(vE + 2 * i, 2), sr(sT0, 2), vr(vC0, 2)))
    for i in rng:
        a('v_pk_mul_f32 %s, %s, %s' % (vr(vE + 2 * i, 2), vr(vE + 2 * i, 2), vr(vBf + 2 * i, 2)))
    for i in range(8 * p, 8 * p + 8):
        a('v_exp_f32 %s, %s' % (vr(vE + i), vr(vE + i)))
    for i in rng:
        a('v_pk_add_f32 %s, %s, 1.0 op_sel_hi:[1,0]' % (vr(vE + 2 * i, 2), vr(vE + 2 * i, 2)))
    for i in range(8 * p, 8 * p + 8):
        a('v_rcp_f32 %s, %s' % (vr(vE + i), vr(vE + i)))
    for i in rng:
        a('v_pk_mul_f32 %s, %s, %s' % (vr(vE + 2 * i, 2), vr(vE + 2 * i, 2), vr(vBf + 2 * i, 2)))
    for i in rng:
        a('v_cvt_pk_bf16_f32 %s, %s, %s' % (vr(vEp + i), vr(vE + 2 * i), vr(vE + 2 * i + 1)))
    a('buffer_store_dwordx4 %s, %s, %s, %s offen sc1' % (
        vr(vEp + 4 * p, 4), vr(vUst), sr(rWS, 4), sr(sC40) if p else '0'), tag='ust')
    if p == 0:
        a('s_barrier')
        issue_frag(12)
stamp('conv0')
cv.credit = 8.0
vEx = 204
vYp = 28


def w2T(ks, slot):
    return [lambda: a.wait_vm(('w2', ks))] + tr_list('w2', ks, slot)


def uload(F):
    st, ks = divmod(F, 12)
    a('buffer_load_dwordx4 %s, %s, %s, %s offen offset:%d sc1' % (
        vr(vUw + 4 * (F % UW), 4), vr(vUo + st // 4), sr(rWS, 4), sr(sUo[ks]), 1024 * (st % 4)), tag=('u', F))


def dbgf(it):
    if 'T' in P['dbg']:
        it = [x for x in it if callable(x) or '_tr_' not in x[0]]
    if 'D' in P['dbg']:
        it = [x for x in it if callable(x) or ' lds' not in x[0]]
    return it


e_end = ustart[2]
qF = cv.stream(('at', P['uflag']), lambda: a.wait_vm('ust'), ('vm', lambda: flag(sFU)), lambda: stamp('uflag'),
               ('at', P['pollu']), ('vm', lambda: poll_issue(vPu)))
qX = cv.stream(('at', e_end + 6))
qX += [('ds_write_b128 %s, %s offset:%d' % (vr(vXa + 3), ar(aAccE + 4 * q, 4), 4 * 4096 + 1024 * q), 'ew')
       for q in range(8)]
qX += [('delay', 5), lambda: a.wait_lg('ew'), ('s_barrier', None)]
qX += [('ds_read_b128 %s, %s offset:%d' % (
    vr(vEx + 8 * w2 + 4 * h, 4), vr(vEr + w2 // 2), RINGW * (w2 % 2) + 1024 * h), 'er')
    for w2 in range(4) for h in range(2)]
qX += [('delay', 6), lambda: a.wait_lg('er')]
for w2 in range(1, 4):
    qX += [('v_add_f32 %s, %s, %s' % (vr(vEx + i), vr(vEx + i), vr(vEx + 8 * w2 + i)), None) for i in range(8)]
qX += [('v_cvt_pk_bf16_f32 %s, %s, %s' % (vr(vYp + h), vr(vEx + 2 * h), vr(vEx + 2 * h + 1)), None) for h in range(4)]
qX += [('delay', 1), ('v_permlane16_swap_b32 %s, %s' % (vr(vYp), vr(vYp + 2)), None),
       ('v_permlane16_swap_b32 %s, %s' % (vr(vYp + 1), vr(vYp + 3)), None)]
NDEF = P['ndef']
tq = [w2T(ks, ks % 4) for ks in range(12 - NDEF)]
marks = {(c, ks): [1] for c in 'TD' for ks in range(12)}
log = []


def mark(c, ks):
    def f():
        marks[(c, ks)].clear()
        mtime[(c, ks)] = cv.k
        log.append('%s%d@%d' % (c, ks, cv.k))
    return f


qD = cv.stream(*dbgf(tailq), mark('D', 3))
qT = cv.stream(('at', P['t0']))
for ks in range(12 - NDEF):
    dep = min(ks + P['tlag'], 11)
    if dep >= 3:
        qT.append(('after', marks[('D', dep)]))
    qT += dbgf(tq[ks]) + [mark('T', ks)]
    if ks + 4 < 12:
        qD += [('since', ('T', ks), P['tdel']), lambda ks=ks: a.wait_lg(('tr', 'w2', ks))]
        qD += dbgf(w2_atoms(ks + 4, ks % 4)) + [mark('D', ks + 4)]
qX.append(lambda: log.append('X@%d' % cv.k))
qU = cv.stream(('after', qF), ('after', qD), ('at', P['pollu'] + P['ulag']),
               lambda: poll_check('L_pollu', vPu), lambda: stamp('upoll'), lambda: log.append('U@%d' % cv.k))
for F in range(UW):
    if vUw + 4 * F + 4 > vEx:
        qU.append(('after', qX))
    qU.append(('vm', lambda F=F: uload(F)))
cv.streams.append(cv.streams.pop(1))

for k, (d, A, B, C) in enumerate(mf):
    for f in (A, B):
        if isinstance(f, tuple):
            while f not in reg_of or any(p[1] == f for p in pend):
                assert pend or free
                issue_frag(1)
    wait_frags(A, B)
    a('v_mfma_f32_16x16x32_bf16 %s, %s, %s, %s' % (
        d, vr(reg_of[A], 4) if isinstance(A, tuple) else A, vr(reg_of[B], 4), C))
    for f in (A, B):
        if isinstance(f, tuple) and last[f] == k:
            free.append(reg_of[f])
    n = issue_frag(1)
    cv.gap(2 - n)
left = [len(x['q']) for x in cv.streams]
cv.streams.pop(3)
while qX or qT or qD or qF:
    cv.gap(4)
vMx = 96
a('s_bitcmp1_b32 %s, 0' % sr(sWave))
a('s_cbranch_scc1 L_mw_odd')
sh = list(a.hist)
sl = list(a.lg)
for par in range(2):
    if par == 1:
        a.label('L_mw_odd')
        a.hist, a.lg = list(sh), list(sl)
    give = 4 if par == 0 else 0
    for q in range(4):
        a('ds_write_b128 %s, %s offset:%d' % (vr(vMw), vr(vAccM + 4 * (give + q), 4), 1024 * q), tag='mw')
        if par == 1:
            for i in (2 * q, 2 * q + 1):
                a('v_mov_b64 %s, %s' % (vr(vAccM + 2 * i, 2), vr(vAccM + 16 + 2 * i, 2)))
    if par == 0:
        a('s_branch L_mw_done')
a.label('L_mw_done')
stamp('convend')
g2 = Sched()
vB2, vGt, vYr, vOg, vT0 = 53, 54, 55, 56, 58
vOo = 60
vQa = 32
vOl = 104
rQ, rO = 60, 64
STG = 20480
vQe = 16
vQg = 64
vYa = 84
vPp = 120
vYl = 132
vYt = 144
vYu = 96
vOp = 88
assert vYt + 10 <= vUw
qM = g2.stream(lambda: a.wait_lg('mw'), ('s_barrier', None))
qM += [('ds_read_b128 %s, %s offset:%d' % (vr(vMx + 4 * q, 4), vr(vMr), 1024 * q), ('mr', q // 2)) for q in range(4)]
qM += [('buffer_store_dwordx4 %s, %s, %s, 0 offen sc1' % (vr(vYp, 4), vr(vYe), sr(rWS, 4)), 'yst'), ('delay', 2)]
for qq in range(2):
    qM.append(lambda qq=qq: a.wait_lg(('mr', qq)))
    qM += [('v_add_f32 %s, %s, %s' % (vr(vMx + i), vr(vMx + i), vr(vAccM + i)), None) for i in range(8 * qq, 8 * qq + 8)]
    o = vMx + 16 + 4 * qq
    qM += [('v_cvt_pk_bf16_f32 %s, %s, %s' % (vr(o + h), vr(vMx + 8 * qq + 2 * h), vr(vMx + 8 * qq + 2 * h + 1)), None)
           for h in range(4)]
    qM += [('v_permlane16_swap_b32 %s, %s' % (vr(o), vr(o + 2)), None),
           ('v_permlane16_swap_b32 %s, %s' % (vr(o + 1), vr(o + 3)), None),
           ('buffer_store_dwordx4 %s, %s, %s, 0 offen offset:%d sc1' % (
               vr(o, 4), vr(vYm), sr(rWS, 4), 1024 * qq), 'yst')]
if 'M' in P['dbg'] or len(qU) > UW - 4:
    g2.flush(qM)
cv.flush(qU)
qT2 = g2.stream()
for ks in range(12 - NDEF, 12):
    qT2 += w2T(ks, ks % 4)
side = g2.stream()
a(f"""
s_lshl_b32 s{sT0}, s{sR}, 5
s_add_u32 s{sT0}, s{sT0}, {WS_FY}
""")
side += lines(f"""
s_lshl_b32 s{t2}, s{sST2}, 2
s_add_u32 s{t2}, s{t2}, s{sWave}
s_lshl_b32 s{t2}, s{t2}, 4
v_add_u32 v{t0}, s{t2}, v{vU}
v_lshlrev_b32 v{t1}, 1, v{t0}
v_lshlrev_b32 v{vGt}, 2, v{t0}
v_add_u32 v{vGt}, {WS_G}, v{vGt}
""")
side += [('global_load_ushort %s, %s, %s' % (vr(vB2), vr(t1), sr(sB2, 2)), 'gb'),
         ('buffer_load_dword %s, %s, %s, 0 offen sc1' % (vr(vGt), vr(vGt), sr(rWS, 4)), 'gb')]
side += lines(f"""
s_mov_b32 s{rQ}, s{sQ}
s_and_b32 s{rQ+1}, s{sQ+1}, 0xffff
s_mov_b32 s{rQ+2}, {2048*1280}
s_mov_b32 s{rQ+3}, 0x20000
s_mov_b32 s{rO}, s{sOUT}
s_and_b32 s{rO+1}, s{sOUT+1}, 0xffff
s_mov_b32 s{rO+2}, {2048*1280}
s_mov_b32 s{rO+3}, 0x20000
s_mul_i32 s{t2}, s{t2}, 1280
s_mul_i32 s{t3}, s{sDT2}, 160
s_add_u32 s{t2}, s{t2}, s{t3}
v_lshrrev_b32 v{t0}, 3, v{vLane}
v_mul_u32_u24 v{t0}, 1280, v{t0}
v_and_b32 v{t1}, 7, v{vLane}
v_xor_b32 v{t1}, v{t1}, v{vG}
v_add_u32 v{t0}, s{t2}, v{t0}
v_lshl_add_u32 v{vOo}, v{t1}, 4, v{t0}
v_xor_b32 v{t1}, 4, v{t1}
v_lshl_add_u32 v{vOo+1}, v{t1}, 4, v{t0}
v_add_u32 v{vOo+1}, {8*1280}, v{vOo+1}
v_lshrrev_b32 v{t0}, 1, v{vLane}
v_mul_u32_u24 v{t0}, 1280, v{t0}
v_and_b32 v{t1}, 1, v{vLane}
v_lshl_add_u32 v{t0}, v{t1}, 4, v{t0}
s_add_u32 s{t2}, s{t2}, 128
v_lshlrev_b32 v{t1}, 25, v{vLane}
v_add_u32 v{t0}, s{t2}, v{t0}
v_and_or_b32 v{vOo+2}, v{t1}, 2.0, v{t0}
s_add_u32 s{t2}, s{sRing}, {STG}
v_lshrrev_b32 v{t0}, 1, v{vU}
v_lshrrev_b32 v{t1}, 1, v{vG}
v_xor_b32 v{t0}, v{t0}, v{t1}
v_lshlrev_b32 v{t0}, 4, v{t0}
v_lshl_add_u32 v{t0}, v{vU}, 7, v{t0}
v_and_b32 v{t1}, 1, v{vG}
v_lshl_add_u32 v{t0}, v{t1}, 3, v{t0}
v_add_u32 v{vQa}, s{t2}, v{t0}
v_xor_b32 v{vQa+1}, 32, v{vQa}
v_xor_b32 v{vQa+2}, 64, v{vQa}
v_xor_b32 v{vQa+3}, 0x60, v{vQa}
v_lshl_add_u32 v{t0}, v{vU}, 5, s{t2}
v_lshl_add_u32 v63, v{vG}, 3, v{t0}
""")
qeq = [(f's_add_u32 m0, s{sRing}, {STG+1024*i}\n' + 'buffer_load_dwordx4 %s, %s, 0 offen lds' % (
    vr(vOo + i), sr(rQ, 4)), 'qe') for i in range(3)]


def stg(i):
    return (vr(vQa + i), 0) if i < 4 else ('v63', 2048)


side += lines(f"""
v_bfe_u32 v{t0}, v{vLane}, 4, 1
v_lshlrev_b32 v{t0}, 7, v{t0}
v_add_u32 v{t0}, v{t0}, v{vU}
s_lshl_b32 s{t2}, s{sDT2}, 9
s_add_u32 s{t2}, s{t2}, {WS_FY}
v_lshl_add_u32 v{vPo}, v{t0}, 5, s{t2}
v_lshrrev_b32 v{t0}, 3, v0
s_mul_i32 s{t2}, s{sDT2}, 80
v_add_u32 v{t0}, s{t2}, v{t0}
v_lshlrev_b32 v{t0}, 12, v{t0}
v_and_b32 v{t1}, 7, v{vLane}
v_lshlrev_b32 v{t4}, 1, v{vG}
v_xor_b32 v{t1}, v{t1}, v{t4}
v_lshl_add_u32 v{t0}, v{t1}, 4, v{t0}
s_lshl_b32 s{t3}, s{sST2}, 7
s_add_u32 s{t3}, s{t3}, {WS_YT}
v_add_u32 v{vYa}, s{t3}, v{t0}
v_add_u32 v{vYa+1}, {32*4096}, v{vYa}
s_cmp_lt_u32 s{sWave}, 2
s_cselect_b32 s{t3}, {64*4096}, s{sOOB}
v_add_u32 v{vYa+2}, s{t3}, v{vYa}
v_bfe_u32 v{t0}, v{vLane}, 2, 3
v_lshlrev_b32 v{t0}, 7, v{t0}
v_and_b32 v{t1}, 3, v{vU}
v_lshl_add_u32 v{t0}, v{t1}, 3, v{t0}
v_bfe_u32 v{t1}, v{vLane}, 3, 2
v_xor_b32 v{t1}, s{sWave}, v{t1}
v_lshl_add_u32 v{t0}, v{t1}, 5, v{t0}
v_lshrrev_b32 v{t1}, 1, v{vG}
v_mul_u32_u24 v{t1}, {RINGW}, v{t1}
v_add_u32 v{t0}, v{t0}, v{t1}
v_add_u32 v{vYr}, 16384, v{t0}
""")


def xwrite(st):
    return [('ds_write_b128 %s, %s offset:%d' % (
        vr(vXa + 3), ar(aOth + 12 * (st & 1) + 4 * (n - 1), 4), 3072 * st + 1024 * (n - 1)), 'xw') for n in range(1, 4)]


def xread(st):
    return [('ds_read_b128 %s, %s offset:%d' % (vr(vPp + 4 * (n - 1), 4), vr(vXa + n - 1), 3072 * st + 1024 * (n - 1)),
             ('xr', st)) for n in range(1, 4)]


def xsum(st, pk=False):
    L = [lambda: a.wait_lg(('xr', st))]
    o = vOwn + 4 * st
    if pk:
        for n in range(3):
            L += [('v_pk_add_f32 %s, %s, %s' % (vr(o + 2 * h, 2), vr(o + 2 * h, 2), vr(vPp + 4 * n + 2 * h, 2)), None)
                  for h in range(2)]
    else:
        for n in range(3):
            L += [('v_add_f32 %s, %s, %s' % (vr(o + j), vr(o + j), vr(vPp + 4 * n + j)), None) for j in range(4)]
    return L


def base(i, pk=False):
    o = vOwn + 4 * i
    if pk:
        return [('v_pk_fma_f32 %s, %s, %s, %s op_sel_hi:[1,0,0]' % (
            vr(o + 2 * h, 2), vr(o + 2 * h, 2), vr(vOg, 2), vr(vT0, 2)), None) for h in range(2)]
    return [('v_fma_f32 %s, %s, %s, %s' % (vr(o + j), vr(o + j), vr(vOg), vr(vT0)), None) for j in range(4)]


def fin(i, pk=True):
    o, p, y = vOwn + 4 * i, vOp + 2 * (i & 1), vYu + 4 * (i & 1)
    L = [lambda: a.wait_lg(('yt', i))]
    for h in range(2):
        L += [('v_lshlrev_b32 %s, 16, %s' % (vr(y + 2 * h), vr(vYt + 2 * i + h)), None),
              ('v_and_b32 %s, 0xffff0000, %s' % (vr(y + 2 * h + 1), vr(vYt + 2 * i + h)), None)]
    if pk:
        L += [('v_pk_fma_f32 %s, %s, %s, %s' % (
            vr(o + 2 * h, 2), vr(vQg + 4 * i + 2 * h, 2), vr(y + 2 * h, 2), vr(o + 2 * h, 2)), None) for h in range(2)]
    else:
        L += [('v_fmac_f32 %s, %s, %s' % (vr(o + j), vr(vQg + 4 * i + j), vr(y + j)), None) for j in range(4)]
    L += [('v_cvt_pk_bf16_f32 %s, %s, %s' % (vr(p + h), vr(o + 2 * h), vr(o + 2 * h + 1)), None) for h in range(2)]
    L += [('ds_write_b64 %s, %s offset:%d' % (stg(i)[0], vr(p, 2), stg(i)[1]), None)]
    return L


def oread(ms):
    return [('ds_read_b128 %s, %s offset:%d' % (vr(vOl + 4 * m, 4), vr(vXa + 3), STG + 1024 * m), ('or', m)) for m in ms]


def ostore(ms):
    L = []
    for m in ms:
        L += [lambda m=m: a.wait_lg(('or', m)), ('buffer_store_dwordx4 %s, %s, %s, 0 offen %s' % (
            vr(vOl + 4 * m, 4), vr(vOo + m), sr(rO, 4), P['outmod']), 'out')]
    return L


def qprep(pk):
    L = [lambda: a.wait_vm('qe')]
    L += [('ds_read_b64 %s, %s offset:%d' % (vr(vQe + 2 * i, 2), stg(i)[0], stg(i)[1]), ('qr', i)) for i in range(5)]
    if not pk:
        L.append(('delay', 4))
    for i in range(5):
        L.append(lambda i=i: a.wait_lg(('qr', i)))
        for h in range(2):
            L += [('v_lshlrev_b32 %s, 16, %s' % (vr(vQg + 4 * i + 2 * h), vr(vQe + 2 * i + h)), None),
                  ('v_and_b32 %s, 0xffff0000, %s' % (vr(vQg + 4 * i + 2 * h + 1), vr(vQe + 2 * i + h)), None)]
        if pk:
            L += [('v_pk_mul_f32 %s, %s, %s op_sel_hi:[1,0]' % (
                vr(vQg + 4 * i + 2 * h, 2), vr(vQg + 4 * i + 2 * h, 2), vr(vGt, 2)), None) for h in range(2)]
        else:
            L += [('v_mul_f32 %s, %s, %s' % (vr(vQg + 4 * i + j), vr(vGt), vr(vQg + 4 * i + j)), None) for j in range(4)]
    return L


def yflag():
    a(f"""
    s_cmp_eq_u32 s{sWave}, 0
    s_cbranch_scc0 L_noyflag
    """)
    sh = list(a.hist)
    a.cond = True
    flag(sT0)
    a.cond = False
    a.label('L_noyflag')
    a.hist = sh
    stamp('yflag')


def ywrite():
    return [lambda: a.wait_vm('yl')] + [('ds_write_b128 %s, %s offset:%d' % (
        vr(vXa + 3), vr(vYl + 4 * m, 4), 16384 + 1024 * m), 'xw') for m in range(3)]


def yread():
    return [('ds_read_b64_tr_b16 %s, %s offset:%d' % (
        vr(vYt + 2 * i, 2), vr(vYr), RINGW * ((2 * i) % 4) + 1024 * (i // 2)), ('yt', i)) for i in range(5)]


YC = P['ychk']
EARLY = YC <= 40
QLATE = P['qeat'] + UW >= 52
assert not (EARLY and QLATE)
yq = [('buffer_load_dwordx4 %s, %s, %s, 0 offen sc1' % (vr(vYl + 4 * m, 4), vr(vYa + m), sr(rWS, 4)), 'yl')
      for m in range(3)]
qE = g2.stream()
g2.streams.insert(0, g2.streams.pop())
for F in range(60):
    st, ks = divmod(F, 12)
    a.wait_vm(('u', F))
    if st == 0:
        g2.flush(qT2, lambda: any(not callable(x) and x[1] == ('tr', 'w2', ks) for x in qT2))
        a.wait_lg(('tr', 'w2', ks))
    if ks == 0:
        g2.flush(qE, lambda: any(not callable(x) and x[1] == 'xw' for x in qE))
    for n in range(4):
        d = vr(vOwn + 4 * st, 4) if n == 0 else ar(aOth + 12 * (st & 1) + 4 * (n - 1), 4)
        a('v_mfma_f32_16x16x32_bf16 %s, %s, %s, %s' % (
            d, vr(vUw + 4 * (F % UW), 4), ar(16 * ks + 4 * n, 4), '0' if ks == 0 else d))
        if n == 1 and F == P['ypoll']:
            g2.flush(side)
            poll_issue(vPo)
        elif n == 1 and F >= P['qeat'] and qeq:
            g2.flush(qM)
            g2.flush(side)
            emit(qeq.pop(0))
        elif n == 1 and F > YC and yq:
            emit(yq.pop(0))
        elif n < 3 or F + UW >= 60:
            g2.gap(2)
    if F + UW < 60:
        uload(F + UW)
    if F == P['yflag']:
        g2.flush(qM)
        qE += [lambda: a.wait_vm('yst'), ('s_barrier', None), yflag]
    if st > 0 and ks == 1:
        g2.flush(qM)
        if EARLY and st == 4:
            qE += ywrite()
        qE += xwrite(st - 1) + [('delay', 3), lambda: a.wait_lg('xw'), ('s_barrier', None)] + xread(st - 1)
        if EARLY and st == 4:
            qE += yread()
        if st == 2:
            qE += [('after', side), lambda: a.wait_vm('gb')] + lines(f"""
            v_sub_f32 v{vOg}, 1.0, v{vGt}
            v_lshlrev_b32 v{vB2}, 16, v{vB2}
            v_mul_f32 v{vT0}, v{vOg}, v{vB2}
            """) + base(0)
        qE += [('delay', 3)] + xsum(st - 1)
        if st >= 2:
            qE += base(st - 1)
        if EARLY and st == 4:
            for i in range(4):
                qE += fin(i, False)
            qE += oread((0, 1)) + [('delay', 4)] + ostore((0, 1))
    if not QLATE and F == max(P['qeat'] + UW + 2, 28):
        qE += qprep(False)
    if F == YC:
        poll_check('L_polly', vPo)
        stamp('ypoll')
g2left = len(qE)
stamp('g2end')
while yq:
    emit(yq.pop(0))
g2.flush(qE, lambda: any(not callable(x) and x[0] == 's_barrier' for x in qE))
for it in xwrite(4):
    emit(it)
g2.flush(qE)
if QLATE:
    for it in qprep(True):
        emit(it)
stamp('tq')
if not EARLY:
    for it in ywrite():
        emit(it)
a('s_waitcnt lgkmcnt(0)')
stamp('ty')
a('s_barrier')
stamp('tb')
L = xread(4)
if not EARLY:
    L = yread() + L
    for i in range(4):
        L += fin(i)
    L += oread((0, 1))
L += xsum(4, True) + base(4, True) + fin(4) + oread((2,))
L += ostore((2,) if EARLY else (0, 1, 2))
for it in L:
    emit(it)
stamp('tst')
a('s_add_u32 %s, s2, %s' % (sr(t2), sr(sWave)))
a('s_cmp_eq_u32 %s, 0' % sr(t2))
a('s_cbranch_scc0 L_noepoch')
flag(t2)
a.label('L_noepoch')
if STAMPS:
    a('s_waitcnt vmcnt(0)')
    nstamp[0] = min(nstamp[0], 15)
    stamp('end')
    a(f'''
    s_lshl_b32 s{sT0}, s2, 2
    s_add_u32 s{sT0}, s{sT0}, s{sWave}
    s_lshl_b32 s{sT0}, s{sT0}, 7
    s_add_u32 s{sT0}, s{sT0}, {WS_ST}
    s_mov_b64 exec, 1
    ''')
    for i in range(nstamp[0]):
        a('v_mov_b32 v10, %s' % sr(sStamp + i))
        a('buffer_store_dword v10, off, %s, %s offset:%d' % (sr(rWS, 4), sr(sT0), 4 * i))
if PROBE:
    a(f'''
    s_cmp_eq_u32 s{sStamp+PROBE[0]}, 0
    s_cselect_b32 s{sT0}, s{sStamp}, s{sStamp+PROBE[0]}
    s_add_u32 s{sT0}, s{sT0}, 6000
    ''')
    a.label('L_probe')
    a(f'''
    s_memrealtime s[100:101]
    s_waitcnt lgkmcnt(0)
    s_sub_u32 s{sT1}, s100, s{sT0}
    s_cmp_lt_i32 s{sT1}, 0
    s_cbranch_scc1 L_probe
    ''')
a.label('L_end')
a('s_endpgm')

hdr = open('cdna_kernels/%s.s.ref' % NAME).read().split('; Override launch')[0]
txt = hdr + f'''; @launch grid=(256,1,1) block=(256,1,1) lds={LDS_BYTES}
; stamps: {' '.join(stamp_names)}
.amdgcn_target "amdgcn-amd-amdhsa--gfx950"
.text
.globl {NAME}_kernel
.p2align 8
.type {NAME}_kernel,@function
{NAME}_kernel:
''' + a.text() + f'''.section .rodata,"a"
.p2align 6
.amdhsa_kernel {NAME}_kernel
  .amdhsa_next_free_vgpr 512
  .amdhsa_next_free_sgpr 102
  .amdhsa_accum_offset 256
  .amdhsa_group_segment_fixed_size 0
  .amdhsa_kernarg_size 120
  .amdhsa_user_sgpr_count 2
  .amdhsa_user_sgpr_kernarg_segment_ptr 1
  .amdhsa_system_sgpr_workgroup_id_x 1
.end_amdhsa_kernel
'''
open(OUT, 'w').write(txt)
print('left: g1', g1left, 'conv', left, 'g2', g2left, ' '.join(log))
print('wrote', OUT, 'lines', len(a.out), 'nops', a.nops, 'stamps', nstamp[0], stamp_names)
```

```python
import re

TRANS = ('v_exp_f32', 'v_log_f32', 'v_rcp_f32', 'v_rsq_f32', 'v_sqrt_f32', 'v_sin_f32', 'v_cos_f32')


def regs_of(tok):
    tok = tok.strip()
    if tok.startswith('-'):
        tok = tok[1:]
    m = re.fullmatch(r'abs\((.*)\)|\|(.*)\|', tok)
    if m:
        tok = m.group(1) or m.group(2)
    m = re.fullmatch(r'([vas])(\d+)', tok)
    if m:
        return {(m.group(1), int(m.group(2)))}
    m = re.fullmatch(r'([vas])\[(\d+):(\d+)\]', tok)
    if m:
        return {(m.group(1), i) for i in range(int(m.group(2)), int(m.group(3)) + 1)}
    if tok in ('vcc', 'vcc_lo', 'vcc_hi'):
        return {('s', 'vcc')}
    if tok in ('exec', 'exec_lo', 'exec_hi'):
        return {('s', 'exec')}
    if tok == 'm0':
        return {('s', 'm0')}
    return set()


class Ins:
    def __init__(self, text):
        self.text = text
        parts = text.split(None, 1)
        self.op = op = parts[0]
        rest = parts[1] if len(parts) > 1 else ''
        ops, depth, cur = [], 0, ''
        for ch in rest:
            if ch in '[(':
                depth += 1
            if ch in '])':
                depth -= 1
            if ch == ',' and depth == 0:
                ops.append(cur.strip())
                cur = ''
            else:
                cur += ch
        mods = ''
        if cur.strip():
            t = cur.strip().split(None, 1)
            ops.append(t[0])
            mods = t[1] if len(t) > 1 else ''
        self.ops, self.mods = ops, mods
        R = [regs_of(o) for o in ops]
        U = lambda l: set().union(*l) if l else set()
        self.states = 1
        self.kind = 'other'
        self.w, self.r = set(), set()
        self.A = self.B = self.C = set()
        self.sdata = set()
        if op.startswith('v_mfma'):
            self.kind = 'mfma'
            self.w, self.A, self.B, self.C = R[0], R[1], R[2], R[3]
            self.r = self.A | self.B | self.C
            self.passes = 8 if '32x32' in op else 4
        elif op.startswith('v_'):
            self.kind = 'valu'
            self.w, self.r = set(R[0]) if R else set(), U(R[1:])
            if 'permlane' in op and 'swap' in op:
                self.w = R[0] | R[1]
                self.r = R[0] | R[1]
            if op.startswith(('v_fmac', 'v_dot2c', 'v_pk_fmac')) or 'row_' in mods or 'quad_perm' in mods:
                self.r |= R[0]
            if re.match(r'v_(add|sub|subrev|addc|subb)_co', op):
                self.w |= R[1]
                self.r = U(R[2:])
            self.dpp = ('row_' in mods or 'quad_perm' in mods or 'wave_' in mods)
            self.trans = op.replace('_e32', '').replace('_e64', '') in TRANS
            self.dot = op.startswith('v_dot')
        elif op.startswith('ds_'):
            self.kind = 'ds'
            if op.startswith(('ds_read', 'ds_bpermute', 'ds_swizzle', 'ds_permute')):
                self.w, self.r = R[0], U(R[1:])
            else:
                self.r = U(R)
        elif op.startswith(('buffer_', 'global_')):
            self.kind = 'vmem'
            self.lds = bool(re.search(r'\blds\b', mods)) or '_lds_' in op
            if '_load' in op and not self.lds:
                self.w, self.r = R[0], U(R[1:])
            else:
                self.r = U(R)
                if self.lds:
                    self.r |= {('s', 'm0')}
                if '_store' in op and ('x3' in op or 'x4' in op):
                    self.sdata = R[0] if op.startswith('buffer_') else R[1]
        elif op == 's_nop':
            self.states = int(ops[0], 0) + 1
        elif op.startswith('s_'):
            self.kind = 'salu'
            if not op.startswith(('s_cmp', 's_waitcnt', 's_barrier', 's_branch', 's_cbranch', 's_endpgm', 's_sleep',
                                  's_setprio', 's_bitcmp', 's_setpc')):
                self.w, self.r = set(R[0]) if R else set(), U(R[1:])
                if 'saveexec' in op:
                    self.w |= {('s', 'exec')}
            else:
                self.r = U(R)


def isv(s):
    return {x for x in s if x[0] in 'va'}


def iss(s):
    return {x for x in s if x[0] == 's'}


def need(p, c):
    n = 0
    if p.kind == 'valu':
        wv, ws = isv(p.w), iss(p.w)
        if c.kind == 'mfma' and wv & c.r:
            n = max(n, 3 if p.dot else 2)
        if c.kind == 'valu':
            if wv & c.r:
                if p.trans and not c.trans:
                    n = max(n, 1)
                if c.dpp or 'permlane' in c.op:
                    n = max(n, 2)
                if c.op.startswith(('v_readlane', 'v_readfirstlane')):
                    n = max(n, 1)
            if p.dot and (wv & (c.r | c.w)):
                same_c = (c.op == p.op and not (wv & (regs_of(c.ops[1]) | regs_of(c.ops[2]))))
                if not same_c:
                    n = max(n, 3)
            if ws & c.r:
                n = max(n, 4 if c.op.startswith(('v_readlane', 'v_writelane')) else 2)
            if ('s', 'vcc') in ws and c.op.startswith(('v_cndmask', 'v_addc', 'v_subb')):
                n = max(n, 2)
        if p.dot and c.kind in ('vmem', 'ds') and wv & c.r:
            n = max(n, 3)
        if c.kind == 'vmem' and ws & c.r:
            n = max(n, 5)
    if p.kind == 'mfma':
        big = {4: 8, 8: 12}[p.passes]
        if c.kind == 'mfma':
            if p.w & (c.A | c.B):
                n = max(n, big)
            if p.w & c.C and not (p.w == c.C and p.passes == c.passes):
                n = max(n, big - 2)
            if p.w & c.w and not (p.w & c.C):
                n = max(n, big - 2)
        elif c.kind in ('valu', 'vmem', 'ds'):
            if p.w & (c.r | c.w):
                n = max(n, big)
            if c.kind == 'valu' and p.C & c.w:
                n = max(n, {4: 3, 8: 7}[p.passes])
    if p.kind == 'salu' and ('s', 'm0') in p.w and c.kind == 'vmem' and c.lds:
        n = max(n, 1)
    if p.kind == 'vmem' and p.sdata and p.sdata & c.w:
        n = max(n, 2)
    return n


class Asm:
    def __init__(self):
        self.out = []
        self.hist = []
        self.vm = []
        self.lg = []
        self.nops = 0
        self.count = {}
        self.cond = False
        self.hook = None
        self.scc_live = False
        self.exec_full = True
        self.in_hook = False
        self.atomic = False

    def raw(self, s):
        self.out.append(s)

    def comment(self, s):
        self.out.append('    ; ' + s)

    def label(self, name):
        self.out.append(name + ':')

    def I(self, text, tag=None):
        c = Ins(text)
        dist, pad = 0, 0
        for p in reversed(self.hist):
            if dist >= 20:
                break
            pad = max(pad, need(p, c) - dist)
            dist += p.states
        while pad > 0:
            k = min(pad, 16)
            nop = Ins('s_nop %d' % (k - 1))
            self.out.append('    ' + nop.text)
            self.hist.append(nop)
            self.nops += 1
            pad -= k
        self.out.append('    ' + text)
        self.hist.append(c)
        if len(self.hist) > 64:
            self.hist = self.hist[-32:]
        if c.kind == 'vmem':
            self.vm.append((tag, 0 if self.cond else 1))
            self.count[tag] = self.count.get(tag, 0) + 1
        if c.kind == 'ds':
            self.lg.append(tag)
        if c.op == 's_waitcnt':
            m = re.search(r'vmcnt\((\d+)\)', text)
            if m:
                self._retire(int(m.group(1)))
            m = re.search(r'lgkmcnt\((\d+)\)', text)
            if m:
                n = int(m.group(1))
                self.lg = self.lg[len(self.lg) - n:] if n and n < len(self.lg) else ([] if n == 0 else self.lg)
        if c.op.startswith(('s_cmp', 's_bitcmp')):
            self.scc_live = True
        elif not c.op.startswith(('s_cselect', 's_cbranch')):
            self.scc_live = False
        if ('s', 'exec') in c.w:
            self.exec_full = (text.replace(' ', '') == 's_mov_b64exec,-1')
        if self.hook and not (self.in_hook or self.scc_live or self.cond or self.atomic) and self.exec_full:
            self.in_hook = True
            self.hook()
            self.in_hook = False
        return c

    def __call__(self, text, tag=None):
        for line in text.strip().split('\n'):
            line = line.split(';')[0].strip()
            if line:
                self.I(line, tag)

    def _retire(self, n):
        keep, acc = [], 0
        for t in reversed(self.vm):
            if acc >= n:
                break
            keep.append(t)
            acc += t[1]
        self.vm = list(reversed(keep))

    def vm_n(self, tag):
        idx = [i for i, t in enumerate(self.vm) if t[0] == tag]
        if not idx:
            return None
        return sum(t[1] for t in self.vm[idx[-1] + 1:])

    def wait_vm(self, tag, extra=''):
        assert tag in self.count, ('wait for something never issued', tag)
        if isinstance(tag, tuple) and tag[0] in ('w1', 'w2'):
            assert self.count[tag] >= 4, tag
        n = self.vm_n(tag)
        if n is None:
            if extra:
                self.I('s_waitcnt ' + extra)
            return
        n = min(n, 62)
        self.I(('s_waitcnt vmcnt(%d) %s' % (n, extra)).strip())

    def wait_lg(self, *tags):
        idx = [i for i, t in enumerate(self.lg) if t in tags]
        if idx:
            self.I('s_waitcnt lgkmcnt(%d)' % min(len(self.lg) - 1 - idx[-1], 14))

    def drain(self, n=12):
        self.I('s_nop %d' % (n - 1))

    def text(self):
        return '\n'.join(self.out) + '\n'


def vr(base, n=1, k='v'):
    return '%s%d' % (k, base) if n == 1 else '%s[%d:%d]' % (k, base, base + n - 1)


def ar(base, n=1):
    return vr(base, n, 'a')


def sr(base, n=1):
    return vr(base, n, 's')
```

```python
import sys, struct
from asmlib import Asm, vr, ar, sr

NAME = 'gated_mix__ssm_conv_h3__mixer_token_mlp__prompt'
STAMPS = '--stamps' in sys.argv
OUT = [x for x in sys.argv[1:] if not x.startswith('--')][0]
PROBE = [int(x[8:]) for x in sys.argv if x.startswith('--probe=')]
if PROBE:
    STAMPS = True
P = dict(hrot=0, wrot=0, wrot2=0, urot=0, xrot=2, xrot2=0, arr1=1, arr2=1, outmod='', nost='', dbg='',
         win=10, gat=45, ntail=4, nw=0, pld=52, fsh=5, wstep=2, ewsp=0, w64=1, a2=0, dbl=1, xat=170, xw64=0, mflush=1, urg=8, ccap=12, ffull=1, fsk=5, fsu=6, fsy=5, slp=6, pmask=1, mst='',
         lead=5, ldsr=6.0, vsp=4, t0=20, tlag=2, tdel=4, ndef=4, uflag=40, pollu=150, ulag=35, uw=14,
         yflag=10, ypoll=40, ychk=52, qeat=42,
         wscript='D0 KL K2L VL GW D1 D2 SSL D3 ML T0 T1 D4 D5 D6', t4rate=99,
         script='Q CP D0 SA W:KL R:7 LN SB HF R:12 GATE KC K2C R:8 SL ST HP AD BU T4 D7 T5')
for x in sys.argv:
    if x.startswith('--p:'):
        k, v = x[4:].split('=')
        assert k in P, k
        P[k] = type(P[k])(v)
assert (3 * P['urot'] >> 4) <= 12 and P['arr2'] == 1 and (7 * P['xrot2'] >> 1) <= 12
f2u = lambda x: struct.unpack('<I', struct.pack('<f', x))[0]

WS_EPOCH = 0
WS_DUMMY = 0x800
WS_FKV = 0x1000
WS_FY = 0x9000
WS_FU = 0x9A0000
WS_G = 0x18000
WS_ST = 0x20000
WS_HT8 = 0x40000
WS_KV = 0x2C0000
WS_UF = 0x540000
WS_YT = 0x720000
WS_PX = 0x9C0000
WS_FH = 0xD80000
WS_END = 0xDA0000
OOB = 0x7ff00000
RINGW = 24576
L_T4 = 98304
T4SZ = 16512
L_X = 147840
XSZ = 4608
L_LN = L_X
LNROW = 1344
LDS_BYTES = 163840
SPIN_MAX = 200000

sQ, sK, sV, sSK, sHK, sD, sW1, sB1, sW2, sB2, sGW, sOUT, sWS = 4, 6, 8, 10, 12, 14, 18, 20, 22, 24, 26, 28, 30
rWS, rW, rK, rH = 32, 36, 40, 44
sN = 48
sWave, sR, sDT, sFT, sDT2, sST2, sP0, sNCH, sRot, sRing = 50, 51, 52, 53, 54, 55, 56, 57, 58, 59
sKS = 60
sT0, sT1, sSpin = 16, 17, 3
sWoff = 76
sAct = 77
sStamp = 78
sOOB = 94
sRot2 = 95
sx, sj, t2, t3 = 96, 97, 98, 99
sFU, sC40, sChE, sChM = 6, 7, 12, 13
sW2o = [8, 9, 10, 11, 14, 15, 18, 19, 20, 21, 26, 27]
sUo = [40, 41, 42, 43, 44, 45, 46, 47, 0, 1, 30, 31]

a = Asm()
nstamp = [0]
stamp_names = []


def stamp(name):
    if STAMPS and name not in P['nost'].split(','):
        i = nstamp[0]
        nstamp[0] += 1
        stamp_names.append(name)
        assert i < 16
        a.atomic = True
        a('s_memtime s[100:101]' if '--cyc' in sys.argv else 's_memrealtime s[100:101]')
        a('s_waitcnt lgkmcnt(0)')
        a.atomic = False
        a('s_mov_b32 %s, s100' % sr(sStamp + i))


vLane, vG, vU, vN = 1, 2, 3, 4
vT = 6
vWo = 16
vTr = 20
vHo = 24
vB1 = 28
vPoll = 36
vPo = 38
vXa = 40
vMisc = 44
vAe, vBe, vAm, vBm = 52, 53, 54, 55
vA8 = dict(e=[52, 24, 44, 25, 45, 26, 46, 27], m=[54, 63, 57, 13, 59, 50, 61, 51])
vADe, vADm = 56, 60
t0, t1, t4 = vT + 4, vT + 5, vT + 6
vTr2, vWo2 = 248, 252


def poll_issue(voff):
    a('buffer_load_dwordx2 %s, %s, %s, 0 offen sc1' % (vr(vPoll, 2), vr(voff), sr(rWS, 4)), tag='poll')


def poll_check(name, voff):
    a.wait_vm('poll')
    a('v_cmp_ne_u64 vcc, %s, %s' % (sr(sN, 2), vr(vPoll, 2)))
    a('s_cbranch_vccz %s_ok' % name)
    save, sh = list(a.vm), list(a.hist)
    a('s_mov_b32 %s, 0' % sr(sSpin))
    a.label(name)
    if P['pmask']:
        a('s_mov_b64 exec, vcc')
    if P['slp']:
        a('s_sleep %d' % P['slp'])
    a('buffer_load_dwordx2 %s, %s, %s, 0 offen sc1' % (vr(vPoll, 2), vr(voff), sr(rWS, 4)))
    a('s_waitcnt vmcnt(0)')
    a('v_cmp_ne_u64 vcc, %s, %s' % (sr(sN, 2), vr(vPoll, 2)))
    a('s_add_u32 %s, %s, 1' % (sr(sSpin), sr(sSpin)))
    a('s_cbranch_vccz %s_out' % name)
    a('s_cmp_lt_u32 %s, %d' % (sr(sSpin), SPIN_MAX))
    a('s_cbranch_scc1 %s' % name)
    a.label(name + '_out')
    a('s_mov_b64 exec, -1')
    a.label(name + '_ok')
    a.vm, a.hist = save, sh


vL8 = 47


def flag(soff, lg=3):
    a('s_mov_b64 exec, %d' % ((1 << (1 << (lg - 3))) - 1 if P['ffull'] else 1))
    a('buffer_store_dwordx2 %s, %s, %s, %s offen sc1' % (vr(vN, 2), vr(vL8), sr(rWS, 4), sr(soff)), tag='flag')
    a('s_mov_b64 exec, -1')


def dma_list(which, ks, slot):
    L = []
    if which == 'w1':
        L += [f's_add_u32 s{sWoff}, s{sRot}, {ks}', f's_and_b32 s{sWoff}, s{sWoff}, 7',
              f's_mul_i32 s{sWoff}, s{sWoff}, {32*3072}']
    L.append('s_add_u32 m0, %s, %d' % (sr(sRing), slot * 4096))
    L = [(x, None) for x in L]
    for jj in range(4):
        L.append(('buffer_load_dwordx4 %s, %s, %s offen offset:%d lds' % (
            vr((vWo if which == 'w1' else vWo2) + jj), sr(rW, 4), sr(sWoff if which == 'w1' else sW2o[ks]), 1024 * jj), (which, ks)))
    return L


def D(which, ks, slot):
    for x, t in dma_list(which, ks, slot):
        a(x, tag=t)


def areg(which, ks):
    return 16 * ks if which == 'w1' else (128 + 16 * ks) % 256


def tr_list(which, ks, slot):
    hs = 512 if which == 'w1' else 2048
    return [('ds_read_b64_tr_b16 %s, %s offset:%d' % (
        ar(areg(which, ks) + 4 * n + 2 * hh, 2), vr((vTr if which == 'w1' else vTr2) + n), slot * 4096 + hh * hs), ('tr', which, ks))
        for n in range(4) for hh in range(2)]


def T(which, ks, slot):
    a.wait_vm((which, ks))
    for x, t in tr_list(which, ks, slot):
        a(x, tag=t)


def reduce32(v, tmp):
    for r in (8, 4, 2, 1):
        a('v_add_f32 %s, %s, %s row_ror:%d' % (vr(v), vr(v), vr(v), r))
    a('v_mov_b32 %s, %s' % (vr(tmp), vr(v)))
    a('v_permlane16_swap_b32 %s, %s' % (vr(v), vr(tmp)))
    a('v_add_f32 %s, %s, %s' % (vr(v), vr(v), vr(tmp)))


def chan_of(dst, pos):
    a(f'''
    s_cmp_ge_u32 s{pos}, 320
    s_cselect_b32 s{t3}, 639, 0
    s_lshl_b32 s{dst}, s{pos}, 1
    s_sub_u32 s{dst}, s{dst}, s{t3}
    ''')


a('s_cmp_ge_u32 s2, 256')
a('s_cbranch_scc1 L_end')
a('s_load_dwordx16 s[4:19], s[0:1], 0')
a('s_load_dwordx8 s[20:27], s[0:1], 64')
a('s_load_dwordx2 s[28:29], s[0:1], 96')
a('s_load_dwordx2 s[30:31], s[0:1], 112')
a('v_lshrrev_b32 %s, 6, v0' % vr(vT))
a('v_and_b32 %s, 63, v0' % vr(vLane))
a('v_readfirstlane_b32 %s, %s' % (sr(sWave), vr(vT)))
a('v_lshrrev_b32 %s, 4, %s' % (vr(vG), vr(vLane)))
a('v_and_b32 %s, 15, %s' % (vr(vU), vr(vLane)))
if STAMPS:
    for i in range(16):
        a('s_mov_b32 %s, 0' % sr(sStamp + i))
vQo, vQo2, vL5, vRow = vT, vT + 1, vT + 2, vT + 3
a(f"""
s_and_b32 s{sx}, s2, 7
s_lshr_b32 s{sj}, s2, 3
s_lshl_b32 s{sR}, s{sx}, 5
s_add_u32 s{sR}, s{sR}, s{sj}
v_and_b32 v{vL5}, 31, v0
v_lshrrev_b32 v{vRow}, 5, v0
s_lshl_b32 s{t2}, s{sR}, 3
v_add_u32 v{vQo2}, s{t2}, v{vRow}
v_mul_u32_u24 v{vQo2}, 1280, v{vQo2}
v_lshl_add_u32 v{vQo}, v{vL5}, 4, v{vQo2}
v_lshl_add_u32 v{vQo2}, v{vL5}, 3, v{vQo2}
""")
sKW = 3
a(f"""
s_mul_i32 s{t2}, s{sj}, 52
s_lshr_b32 s{t2}, s{t2}, 8
s_mul_i32 s{t3}, s{t2}, 5
s_sub_u32 s{sDT}, s{sj}, s{t3}
""")
if P['wrot']:
    a(f"""
    s_add_u32 s{sRot}, s{sDT}, s{sWave}
    s_cmp_ge_u32 s{sRot}, 5
    s_cselect_b32 s{t3}, 5, 0
    s_sub_u32 s{sRot}, s{sRot}, s{t3}
    s_mul_i32 s{sRot}, s{sRot}, 13
    """)
else:
    a(f's_mul_i32 s{sRot}, s{sDT}, 13')
a(f"""
s_lshr_b32 s{sRot}, s{sRot}, 3
s_and_b32 s{t3}, s{sx}, 1
s_lshl1_add_u32 s{sDT}, s{sDT}, s{t3}
s_lshl2_add_u32 s{sKW}, s{t3}, s{sWave}
s_lshr_b32 s{t3}, s{sx}, 1
s_mul_i32 s{sFT}, s{t3}, 6
s_add_u32 s{sFT}, s{sFT}, s{t2}
""")
a(f"""
s_cmp_lt_u32 s{sj}, 30
s_cselect_b32 s{sAct}, 1, 0
s_mul_i32 s{sRing}, s{sWave}, {RINGW}
""")
if P['hrot']:
    a(f"""
    s_mul_i32 s{t2}, s{t2}, {P['hrot']}
    s_lshr_b32 s{t2}, s{t2}, 4
    s_add_u32 s{sRot}, s{sRot}, s{t2}
    """)
if P['xrot']:
    a(f"""
    s_lshr_b32 s{t2}, s{sx}, 1
    s_mul_i32 s{t2}, s{t2}, {P['xrot']}
    s_add_u32 s{sRot}, s{sRot}, s{t2}
    """)
a(f"""
v_lshrrev_b32 v{t0}, 3, v{vLane}
v_mul_u32_u24 v{t0}, 3072, v{t0}
s_mul_i32 s{t2}, s{sKW}, {256*3072}
s_lshl_b32 s{t3}, s{sFT}, 7
s_add_u32 s{t2}, s{t2}, s{t3}
v_add_u32 v{t0}, s{t2}, v{t0}
v_and_b32 v{t1}, 7, v{vLane}
v_and_b32 v{t4}, 1, v{vG}
v_lshlrev_b32 v{t4}, 1, v{t4}
v_xor_b32 v{t1}, v{t1}, v{t4}
v_xor_b32 v{t4}, 4, v{t1}
v_lshl_add_u32 v{vWo}, v{t1}, 4, v{t0}
v_lshl_add_u32 v{vWo+1}, v{t4}, 4, v{t0}
v_add_u32 v{vWo+2}, {2*(24576-1024)}, v{vWo}
v_add_u32 v{vWo+3}, {3*(24576-1024)}, v{vWo+1}
v_add_u32 v{vWo+1}, {24576-1024}, v{vWo+1}
""")
vQ = 64
vX = 76
vGWp = 96
vHp = vHt = 108
vKV1, vKV2 = 120, 144
vSS, vSN, vSNew, vK2a = 168, 192, 196, 156
vGa, vGa2, vGs = 236, 237, 238
vK2t, vSa, vSna, vMla, vT4a = 160, 161, 164, 204, 240
vBf = 208
sCh = [96, 97]
vLw, vLw2, vLr, vHs, vHs1, vHs2 = vMisc, vMisc + 1, vMisc + 2, vMisc + 3, vMisc + 4, vMisc + 5
vKo, vKo4, vKoh, vTo, vKs = 240, 241, 242, 243, 234
vDe, vDm = 246, 247
vXg, vXw, vPkv, vUo = vMisc, vMisc + 1, vMisc + 2, vMisc + 4
vUst = 245
vPs, vPr = 243, 244
vPu = 39
vEr, vYe, vYm, vMw, vMr = 6, 8, 9, 14, 15
vXl = 224
step = {}


def script_step(name):
    def deco(f):
        step[name] = f
        return f
    return deco


@script_step('Q')
def _():
    a('s_waitcnt lgkmcnt(0)')
    stamp('start')
    a('global_load_dwordx4 %s, %s, %s' % (vr(vQ, 4), vr(vQo), sr(sQ, 2)), tag='q')
    a('global_load_dwordx4 %s, %s, %s offset:512' % (vr(vQ + 4, 4), vr(vQo), sr(sQ, 2)), tag='q')
    a('global_load_dwordx2 %s, %s, %s offset:1024' % (vr(vQ + 8, 2), vr(vQo2), sr(sQ, 2)), tag='q')
    a(f"""
    s_load_dwordx2 s[{sN}:{sN+1}], s[{sWS}:{sWS+1}], {WS_EPOCH}
    s_mov_b32 s{rW}, s{sW1}
    s_and_b32 s{rW+1}, s{sW1+1}, 0xffff
    s_mul_i32 s{rW+2}, s{sAct}, {2048*3072}
    s_mov_b32 s{rW+3}, 0x20000
    """)


@script_step('SA')
def _():
    if P['arr2'] == 2:
        a(f"""
        s_and_b32 s{t3}, s{sx}, 1
        s_lshl_b32 s{sDT2}, s{t3}, 2
        s_lshl_b32 s{sRot2}, s{t3}, 1
        s_lshr_b32 s{t3}, s{sx}, 1
        s_lshl_b32 s{sST2}, s{t3}, 3
        s_lshr_b32 s{t2}, s{sj}, 2
        s_add_u32 s{sST2}, s{sST2}, s{t2}
        s_and_b32 s{t3}, s{sj}, 3
        s_add_u32 s{sDT2}, s{sDT2}, s{t3}
        s_mul_i32 s{t3}, s{t3}, 3
        s_add_u32 s{sRot2}, s{sRot2}, s{t3}
        """)
    else:
        a(f"""
        s_and_b32 s{sDT2}, s{sj}, 7
        s_lshr_b32 s{t2}, s{sj}, 3
        s_lshl2_add_u32 s{sST2}, s{sx}, s{t2}
        s_mul_i32 s{t3}, s{sWave}, {P['wrot2']}
        s_add_u32 s{sRot2}, s{sDT2}, s{t3}
        s_and_b32 s{sRot2}, s{sRot2}, 7
        s_mul_i32 s{sRot2}, s{sRot2}, 3
        s_lshr_b32 s{sRot2}, s{sRot2}, 1
        """)
    if P['urot']:
        a(f"""
        s_mul_i32 s{t2}, s{t2}, {P['urot']}
        s_lshr_b32 s{t2}, s{t2}, 4
        s_add_u32 s{sRot2}, s{sRot2}, s{t2}
        s_cmp_ge_u32 s{sRot2}, 12
        s_cselect_b32 s{t3}, 12, 0
        s_sub_u32 s{sRot2}, s{sRot2}, s{t3}
        """)
    if P['xrot2']:
        a(f"""
        s_lshr_b32 s{t2}, s{sx}, {P['arr2']-1}
        s_mul_i32 s{t2}, s{t2}, {P['xrot2']}
        s_lshr_b32 s{t2}, s{t2}, 1
        s_add_u32 s{sRot2}, s{sRot2}, s{t2}
        s_cmp_ge_u32 s{sRot2}, 12
        s_cselect_b32 s{t3}, 12, 0
        s_sub_u32 s{sRot2}, s{sRot2}, s{t3}
        """)
    a(f"""
    s_mul_i32 s{sP0}, s{sx}, 80
    s_lshr_b32 s{t3}, s{sj}, 1
    s_mul_i32 s{t3}, s{t3}, 5
    s_add_u32 s{sP0}, s{sP0}, s{t3}
    s_and_b32 s{t3}, s{sj}, 1
    s_sub_u32 s{sNCH}, 3, s{t3}
    s_mul_i32 s{t3}, s{t3}, 3
    s_add_u32 s{sP0}, s{sP0}, s{t3}
    s_mov_b32 s{sOOB}, {OOB}
    s_mov_b32 s{rWS}, s{sWS}
    s_and_b32 s{rWS+1}, s{sWS+1}, 0xffff
    s_mov_b32 s{rWS+2}, {WS_END}
    s_mov_b32 s{rWS+3}, 0x20000
    s_mov_b32 s{rK}, s{sK}
    s_and_b32 s{rK+1}, s{sK+1}, 0xffff
    s_mov_b32 s{rK+2}, {2048*1280}
    s_mov_b32 s{rK+3}, 0x20000
    s_mov_b32 s{rH}, s{sHK}
    s_and_b32 s{rH+1}, s{sHK+1}, 0xffff
    s_mov_b32 s{rH+2}, {640*4096}
    s_mov_b32 s{rH+3}, 0x20000
    """)
    chan_of(sCh[0], sP0)
    a(f"""
    s_add_u32 s{t2}, s{sP0}, s{sNCH}
    s_sub_u32 s{t2}, s{t2}, 1
    """)
    chan_of(sChE, t2)
    a(f"""
    s_lshr_b32 s{t2}, s{sWave}, 1
    s_add_u32 s{t2}, s{t2}, s{sP0}
    """)
    chan_of(sChM, t2)
    a(f"""
    s_mov_b32 s{sC40}, 40960
    v_lshrrev_b32 v{t0}, 2, v{vU}
    v_lshl_add_u32 v{t0}, v{vG}, 3, v{t0}
    v_lshlrev_b32 v{t0}, 7, v{t0}
    v_and_b32 v{t1}, 3, v{vU}
    v_lshl_add_u32 v{t0}, v{t1}, 3, v{t0}
    v_add_u32 v{t0}, s{sRing}, v{t0}
    v_lshrrev_b32 v{t1}, 3, v{vU}
    v_and_b32 v{t4}, 1, v{vG}
    v_lshl_add_u32 v{t1}, v{t4}, 1, v{t1}
    """)
    for n in range(4):
        a(f"""
        v_xor_b32 v{t4}, {n}, v{t1}
        v_lshl_add_u32 v{vTr+n}, v{t4}, 5, v{t0}
        """)
    a(f"""
    v_mul_u32_u24 v{vLw2}, {LNROW}, v{vRow}
    v_add_u32 v{vLw2}, {L_LN}, v{vLw2}
    v_lshl_add_u32 v{vLw}, v{vL5}, 4, v{vLw2}
    v_lshl_add_u32 v{vLw2}, v{vL5}, 3, v{vLw2}
    v_lshrrev_b32 v{t0}, 2, v{vU}
    v_mul_u32_u24 v{t0}, {LNROW}, v{t0}
    v_and_b32 v{t1}, 3, v{vU}
    v_lshl_add_u32 v{t0}, v{t1}, 3, v{t0}
    v_lshl_add_u32 v{t0}, v{vG}, 5, v{t0}
    s_lshl_b32 s{t2}, s{sWave}, 7
    s_add_u32 s{t2}, s{t2}, {L_LN}
    v_add_u32 v{vLr}, s{t2}, v{t0}
    s_mul_i32 s{t3}, s{sR}, 10240
    s_add_u32 s{t2}, s{t3}, {WS_HT8}
    v_lshl_add_u32 v{vHs}, v0, 4, s{t2}
    v_add_u32 v{vHs1}, 4096, v{vHs}
    s_cmp_lt_u32 s{sWave}, 2
    s_cselect_b32 s{t2}, 8192, s{sOOB}
    v_add_u32 v{vHs2}, s{t2}, v{vHs}
    v_lshl_add_u32 v{vKo}, v0, 2, s{t3}
    v_add_u32 v{vKo4}, 5120, v{vKo}
    v_subrev_u32 v{vKoh}, 3840, v{vKo}
    v_lshlrev_b32 v{vTo}, 4, v0
    v_add_u32 v{vKs}, {WS_KV-WS_HT8}, v{vHs}
    v_add_u32 v{vKs+1}, 5120, v{vKs}
    v_lshlrev_b32 v{vGa}, 4, v{vL5}
    v_lshlrev_b32 v{vGa2}, 3, v{vL5}
    s_lshl_b32 s{t2}, s{sR}, 5
    s_add_u32 s{t2}, s{t2}, {WS_G}
    v_lshl_add_u32 v{vGs}, v{vRow}, 2, s{t2}
    v_mul_u32_u24 v{t0}, 2560, v{vG}
    s_lshl_b32 s{t2}, s{sWave}, 6
    v_lshl_add_u32 v{t1}, v{vU}, 2, s{t2}
    s_add_u32 s{t3}, s{t3}, {1024+3840}
    v_sub_u32 v{t0}, v{t1}, v{t0}
    v_add_u32 v{vK2a}, s{t3}, v{t0}
    v_lshlrev_b32 v{t1}, 2, v{t1}
    v_add_u32 v{vK2t}, 4096, v{t1}
    v_add_u32 v{vK2a+1}, 1280, v{vK2a}
    v_add_u32 v{vK2a+2}, 2560, v{vK2a}
    v_add_u32 v{vK2a+3}, 3840, v{vK2a}
    s_lshl_b32 s{t2}, s{sWave}, 10
    v_lshl_add_u32 v{t0}, v{vLane}, 3, s{t2}
    v_lshl_add_u32 v{vSa}, s{sCh[0]}, 12, v{t0}
    v_add_u32 v{vSa+1}, 8192, v{vSa}
    v_lshl_add_u32 v{vSa+2}, s{sChE}, 12, v{t0}
    s_lshl1_add_u32 s{t2}, s{sWave}, s{sCh[0]}
    s_min_u32 s{t2}, s{t2}, s{sChE}
    s_lshl_b32 s{t2}, s{t2}, 12
    """)
    for jj in range(3):
        a(f"""
        v_subrev_u32 v{t0}, {8-jj}, v{vLane}
        v_lshl_add_u32 v{t1}, v{t0}, 2, s{t2}
        v_and_or_b32 v{vSna+jj}, v{t0}, s{sOOB}, v{t1}
        """)
    a(f"""
    v_lshrrev_b32 v{t0}, 2, v{vLane}
    v_lshl_add_u32 v{t0}, v{t0}, 1, s{sCh[0]}
    v_min_u32 v{t0}, s{sChE}, v{t0}
    v_lshlrev_b32 v{vMla}, 1, v{t0}
    v_lshlrev_b32 v{vMla+1}, 12, v{t0}
    s_min_u32 s{t2}, s{sFT}, 23
    s_lshl_b32 s{t2}, s{t2}, 7
    v_lshl_add_u32 v{vMla+2}, v{vG}, 3, s{t2}
    """)


@script_step('CP')
def _():
    a.raw('    s_getpc_b64 s[16:17]')
    a.label('L_pc')
    a(f"""
    s_lshl2_add_u32 s{t2}, s{sj}, s{sWave}
    s_lshl_b32 s{t2}, s{t2}, 8
    v_lshl_add_u32 v{t0}, v{vLane}, 6, s{t2}
    v_min_u32 v{t0}, L_end-L_pc, v{t0}
    s_mov_b64 exec, 15
    global_load_dword v207, v{t0}, s[16:17]
    s_mov_b64 exec, -1
    """)


@script_step('LN')
def _():
    a.wait_vm('q')
    stamp('q')
    for i in range(10):
        a('v_lshlrev_b32 %s, 16, %s' % (vr(vX + 2 * i), vr(vQ + i)))
        a('v_and_b32 %s, 0xffff0000, %s' % (vr(vX + 2 * i + 1), vr(vQ + i)))
    vS = vT + 4
    a('v_pk_add_f32 %s, %s, %s' % (vr(vS, 2), vr(vX, 2), vr(vX + 2, 2)))
    a('v_pk_add_f32 %s, %s, %s' % (vr(vS + 2, 2), vr(vX + 4, 2), vr(vX + 6, 2)))
    for i in range(4, 10):
        d = vS + 2 * (i & 1)
        a('v_pk_add_f32 %s, %s, %s' % (vr(d, 2), vr(d, 2), vr(vX + 2 * i, 2)))
    a('v_pk_add_f32 %s, %s, %s' % (vr(vS, 2), vr(vS, 2), vr(vS + 2, 2)))
    a('v_add_f32 %s, %s, %s' % (vr(vS), vr(vS), vr(vS + 1)))
    reduce32(vS, vS + 1)
    a('v_mul_f32 %s, 0x%08x, %s' % (vr(vS), f2u(-1.0 / 640), vr(vS)))
    for i in range(10):
        a('v_pk_add_f32 %s, %s, %s op_sel_hi:[1,0]' % (vr(vX + 2 * i, 2), vr(vX + 2 * i, 2), vr(vS, 2)))
    a('v_pk_mul_f32 %s, %s, %s' % (vr(vS, 2), vr(vX, 2), vr(vX, 2)))
    a('v_pk_mul_f32 %s, %s, %s' % (vr(vS + 2, 2), vr(vX + 2, 2), vr(vX + 2, 2)))
    for i in range(2, 10):
        d = vS + 2 * (i & 1)
        a('v_pk_fma_f32 %s, %s, %s, %s' % (vr(d, 2), vr(vX + 2 * i, 2), vr(vX + 2 * i, 2), vr(d, 2)))
    a('v_pk_add_f32 %s, %s, %s' % (vr(vS, 2), vr(vS, 2), vr(vS + 2, 2)))
    a('v_add_f32 %s, %s, %s' % (vr(vS), vr(vS), vr(vS + 1)))
    reduce32(vS, vS + 1)
    a('v_mov_b32 %s, 0x%08x' % (vr(vS + 1), f2u(1e-5)))
    a('v_fmac_f32 %s, 0x%08x, %s' % (vr(vS + 1), f2u(1.0 / 640), vr(vS)))
    a('v_rsq_f32 %s, %s' % (vr(vS), vr(vS + 1)))
    for i in range(10):
        a('v_pk_mul_f32 %s, %s, %s op_sel_hi:[1,0]' % (vr(vX + 2 * i, 2), vr(vX + 2 * i, 2), vr(vS, 2)))
    for i in range(10):
        a('v_cvt_pk_bf16_f32 %s, %s, %s' % (vr(vHp + i), vr(vX + 2 * i), vr(vX + 2 * i + 1)))
    a('ds_write_b128 %s, %s' % (vr(vLw), vr(vHp, 4)))
    a('ds_write_b128 %s, %s offset:512' % (vr(vLw), vr(vHp + 4, 4)))
    a('ds_write_b64 %s, %s offset:1024' % (vr(vLw2), vr(vHp + 8, 2)))
    a('s_waitcnt lgkmcnt(0)')
    a('s_barrier')
    for m in range(3):
        for hh in range(2):
            a('ds_read_b64_tr_b16 %s, %s offset:%d' % (
                vr(vHt + 4 * m + 2 * hh, 2), vr(vLr), 512 * m + 4 * LNROW * hh), tag=('ht', m))
    a(f"""
    s_add_u32 s{sN}, s{sN}, 0x9e3779b1
    s_add_u32 s{sN+1}, s{sN+1}, 0x85ebca77
    v_mov_b32 v{vN}, s{sN}
    v_mov_b32 v{vN+1}, s{sN+1}
    """)
    for m, vo in enumerate((vHs, vHs1, vHs2)):
        a.wait_lg(('ht', m))
        a('buffer_store_dwordx4 %s, %s, %s, 0 offen sc1' % (vr(vHt + 4 * m, 4), vr(vo), sr(rWS, 4)), tag='hst')
    stamp('hst')


small = {}
small['GW'] = [('global_load_dwordx4 %s, %s, %s' % (vr(vGWp, 4), vr(vGa), sr(sGW, 2)), 'gw'),
               ('global_load_dwordx4 %s, %s, %s offset:512' % (vr(vGWp + 4, 4), vr(vGa), sr(sGW, 2)), 'gw'),
               ('global_load_dwordx2 %s, %s, %s offset:1024' % (vr(vGWp + 8, 2), vr(vGa2), sr(sGW, 2)), 'gw')]
small['KL'] = []
for r in list(range(3, 11)) + [0, 1, 2]:
    vo, off = ((vKoh, 1280 * r) if r < 3 else (vKo, 1280 * (r - 3)) if r < 7 else (vKo4, 1280 * (r - 7)))
    small['KL'].append(('buffer_load_dword %s, %s, %s, 0 offen offset:%d' % (
        vr(vKV1 + 4 + r), vr(vo), sr(rK, 4), off), 'kv1'))
small['KL'].append(('global_load_dwordx4 %s, %s, %s' % (vr(vKV1, 4), vr(vTo), sr(sSK, 2)), 'kv1'))
small['VL'] = []
for r in range(8):
    vo, off = ((vKo, 1280 * r) if r < 4 else (vKo4, 1280 * (r - 4)))
    small['VL'].append(('global_load_dword %s, %s, %s offset:%d' % (vr(vKV1 + 15 + r), vr(vo), sr(sV, 2), off), 'kv1'))
small['K2L'] = [('buffer_load_dword %s, %s, %s, 0 offen offset:%d' % (
    vr(vKV2 + 4 + m), vr(vK2a + min(m, 3)), sr(rK, 4), 1280 if m == 4 else 0), 'kv2') for m in range(5)]
small['K2L'] += [('global_load_dword %s, %s, %s offset:%d' % (
    vr(vKV2 + 9 + m), vr(vK2a + 3), sr(sV, 2), 1280 * m), 'kv2') for m in range(2)]
small['K2L'].append(('global_load_dwordx4 %s, %s, %s' % (vr(vKV2, 4), vr(vK2t), sr(sSK, 2)), 'kv2'))
small['SSL'] = [('buffer_load_dwordx4 %s, %s, %s, 0 offen offset:%d' % (
    vr(vSS + 8 * t + 4 * c, 4), vr(vSa + t), sr(rH, 4), 512 * c), 'ss') for t in range(3) for c in range(2)]
small['SSL'] += [('buffer_load_dword %s, %s, %s, 0 offen' % (vr(vSN + jj), vr(vSna + jj), sr(rH, 4)), 'ss')
                 for jj in range(3)]
small['ML'] = [('global_load_ushort %s, %s, %s' % (vr(vDe), vr(vMla), sr(sD, 2)), 'dd'),
               ('buffer_load_ushort %s, %s, %s, 0 offen' % (vr(vDm), vr(vMla + 1), sr(rH, 4)), 'dd')]
small['ML'] += [('global_load_dwordx2 %s, %s, %s offset:%d' % (
    vr(vB1 + 2 * n, 2), vr(vMla + 2), sr(sB1, 2), 32 * n), 'b1') for n in range(4)]

W = []


NW = P['nw']
NSTEP = 8 + NW
wk = lambda i: ('w1', i) if i < 8 else ('w2', i - 8)
done_steps = set()


def w2_desc():
    assert NW == 0 or {'ST', 'SL'} <= done_steps
    a(f"""
    s_mov_b32 s{rW}, s{sW2}
    s_and_b32 s{rW+1}, s{sW2+1}, 0xffff
    s_mov_b32 s{rW+2}, {1536*4096}
    """)


def w_dma(i):
    L = dma_list(*wk(i), i % 6)
    pre = [lambda: a.wait_lg(('tr', *wk(i - 6)))] if i >= 6 else []
    if i == 8:
        pre.append(w2_desc)
    W.append(('D', i, False, pre + L[:-3]))
    for k in range(3):
        W.append(('D', i, k == 2, [L[-3 + k]]))


def w_tr(i):
    L = tr_list(*wk(i), i % 6)
    W.append(('T', i, False, [lambda: a.wait_vm(wk(i))] + L[:4]))
    W.append(('T', i, True, L[4:]))


nd = nt = 0
for tok in P['wscript'].replace('_', ' ').split():
    if tok in small:
        for k, it in enumerate(small[tok]):
            W.append(('W', tok, k == len(small[tok]) - 1, [it]))
    elif tok[0] == 'D':
        assert int(tok[1:]) == nd and nd < nt + 6
        w_dma(nd)
        nd += 1
    else:
        assert int(tok[1:]) == nt and nt < nd
        w_tr(nt)
        nt += 1
while nt < NSTEP:
    w_tr(nt)
    nt += 1
    while nd < NSTEP and nd < nt + 5:
        w_dma(nd)
        nd += 1
T4Q = []
wdone = set()


def w_atom():
    kind, i, fin_, items = W.pop(0)
    was = a.in_hook
    a.in_hook = True
    for it in items:
        emit(it)
    a.in_hook = was
    if fin_:
        wdone.add((kind, i))


def w_until(kind, i):
    n = 0
    while (kind, i) not in wdone:
        w_atom()
        n += 1
        if T4Q and n % 2 == 0 and P['t4rate'] < 99:
            was = a.in_hook
            a.in_hook = True
            t4_piece()
            a.in_hook = was


rate, since = [0], [0, 0]


def w_hook():
    since[0] += 1
    if rate[0] and since[0] >= rate[0] and W and not (W[0][:2] == ('D', 8) and 'ST' not in done_steps):
        since[0] = 0
        w_atom()
    since[1] += 1
    if T4Q and since[1] >= P['t4rate']:
        since[1] = 0
        t4_piece()


@script_step('HF')
def _():
    a(f"""
    v_lshlrev_b32 v{vL8}, 3, v{vLane}
    s_lshl_b32 s{t2}, s{sWave}, 8
    s_add_u32 s{t2}, s{t2}, s{sR}
    s_lshl_b32 s{t2}, s{t2}, {P['fsh']}
    s_add_u32 s{t2}, s{t2}, {WS_FH}
    """)
    a.wait_vm('hst')
    flag(t2, P['fsh'])
    stamp('hflag')


@script_step('GATE')
def _():
    w_until('W', 'GW')
    a.wait_vm('gw')
    vZ = vT + 4
    a('v_mov_b32 %s, 0' % vr(vZ))
    for i in range(10):
        a('v_dot2_f32_bf16 %s, %s, %s, %s' % (vr(vZ), vr(vQ + i), vr(vGWp + i), vr(vZ)))
    reduce32(vZ, vZ + 1)
    a(f"""
    v_mul_f32 v{vZ}, 0xbfb8aa3b, v{vZ}
    v_exp_f32 v{vZ}, v{vZ}
    v_add_f32 v{vZ}, 1.0, v{vZ}
    v_rcp_f32 v{vZ}, v{vZ}
    s_mov_b32 exec_lo, 1
    s_mov_b32 exec_hi, 1
    """)
    a('buffer_store_dword %s, %s, %s, 0 offen sc1' % (vr(vZ), vr(vGs), sr(rWS, 4)), tag='kvst')
    a('s_mov_b64 exec, -1')


vP, vKu, vAcc, vVt, vKp = 64, 72, 94, 110, 112


def kv_compute(b):
    for c in range(2):
        for h in range(2):
            a('v_lshlrev_b32 %s, 16, %s' % (vr(vP + 4 * h + c), vr(b + 2 * c + h)))
            a('v_and_b32 %s, 0xffff0000, %s' % (vr(vP + 4 * h + 2 + c), vr(b + 2 * c + h)))
    for r in range(11):
        a('v_lshlrev_b32 %s, 16, %s' % (vr(vKu + 2 * r), vr(b + 4 + r)))
        a('v_and_b32 %s, 0xffff0000, %s' % (vr(vKu + 2 * r + 1), vr(b + 4 + r)))
    for r in range(8):
        d = vr(vAcc + 2 * r, 2)
        a('v_pk_mul_f32 %s, %s, %s' % (d, vr(vP + 6, 2), vr(vKu + 2 * r, 2)))
        a('v_lshlrev_b32 %s, 16, %s' % (vr(vVt), vr(b + 15 + r)))
        for j in (2, 1, 0):
            a('v_pk_fma_f32 %s, %s, %s, %s' % (d, vr(vP + 2 * j, 2), vr(vKu + 2 * (r + 3 - j), 2), d))
        a('v_and_b32 %s, 0xffff0000, %s' % (vr(vVt + 1), vr(b + 15 + r)))
        a('v_pk_mul_f32 %s, %s, %s' % (d, d, vr(vVt, 2)))
    for c in range(2):
        for j in range(4):
            a('v_cvt_pk_bf16_f32 %s, %s, %s' % (
                vr(vKp + 4 * c + j), vr(vAcc + 2 * (7 - 2 * j) + c), vr(vAcc + 2 * (6 - 2 * j) + c)))
    a('buffer_store_dwordx4 %s, %s, %s, 0 offen sc1' % (vr(vKp, 4), vr(vKs), sr(rWS, 4)), tag='kvst')
    a('buffer_store_dwordx4 %s, %s, %s, 0 offen sc1' % (vr(vKp + 4, 4), vr(vKs + 1), sr(rWS, 4)), tag='kvst')


@script_step('KC')
def _():
    w_until('W', 'KL')
    w_until('W', 'VL')
    a.wait_vm('kv1')
    kv_compute(vKV1)


@script_step('K2C')
def _():
    b = vKV2
    w_until('W', 'K2L')
    a.wait_vm('kv2')
    for c in range(2):
        for h in range(2):
            a('v_lshlrev_b32 %s, 16, %s' % (vr(vP + 4 * h + c), vr(b + 2 * c + h)))
            a('v_and_b32 %s, 0xffff0000, %s' % (vr(vP + 4 * h + 2 + c), vr(b + 2 * c + h)))
    for r in range(7):
        a('v_lshlrev_b32 %s, 16, %s' % (vr(vKu + 2 * r), vr(b + 4 + r)))
        a('v_and_b32 %s, 0xffff0000, %s' % (vr(vKu + 2 * r + 1), vr(b + 4 + r)))
    for r in range(2):
        d = vr(vAcc + 2 * r, 2)
        a('v_pk_mul_f32 %s, %s, %s' % (d, vr(vP + 6, 2), vr(vKu + 2 * r, 2)))
        for j in (2, 1, 0):
            a('v_pk_fma_f32 %s, %s, %s, %s' % (d, vr(vP + 2 * j, 2), vr(vKu + 2 * (r + 3 - j), 2), d))
        a('v_pk_mul_f32 %s, %s, %s' % (d, d, vr(vKu + 10 + 2 * r, 2)))
    a(f"""
    s_mul_i32 s{t2}, s{sR}, 10240
    s_add_u32 s{t2}, s{t2}, {WS_KV+4096}
    s_lshl_b32 s{t3}, s{sWave}, 8
    s_add_u32 s{t2}, s{t2}, s{t3}
    v_lshl_add_u32 v{t0}, v{vU}, 4, s{t2}
    v_lshl_add_u32 v{t0}, v{vG}, 2, v{t0}
    v_add_u32 v{t1}, 5120, v{t0}
    """)
    for c in range(2):
        a('v_cvt_pk_bf16_f32 %s, %s, %s' % (vr(vAcc + 4 + c), vr(vAcc + 2 + c), vr(vAcc + c)))
        a('buffer_store_dword %s, %s, %s, 0 offen sc1' % (vr(vAcc + 4 + c), vr((t0, t1)[c]), sr(rWS, 4)), tag='kvst')
    stamp('kvst')


@script_step('T4')
def _():
    w_until('W', 'VL')
    w_until('W', 'SSL')
    a(f"""
    s_min_u32 s{t2}, s{sWave}, 2
    s_mul_i32 s{t2}, s{t2}, {T4SZ}
    s_add_u32 s{t2}, s{t2}, {L_T4}
    v_lshl_add_u32 v{vT4a}, v{vLane}, 4, s{t2}
    s_lshl_b32 s{t2}, s{sWave}, 12
    s_add_u32 s{t2}, s{t2}, {L_T4+128}
    v_lshl_add_u32 v{vT4a+1}, v{vLane}, 5, s{t2}
    """)

    al = lambda d, hi, lo: ('v_alignbit_b32 %s, %s, %s, 16' % (vr(d), vr(hi), vr(lo)), None)
    wr = lambda ad, r, off: ('ds_write_b128 %s, %s offset:%d' % (vr(ad), vr(r, 4), off), 't4')
    q = vSN
    T4Q.append([lambda: a.wait_vm('ss'), al(q + 3, q + 2, q + 1), al(q + 2, q + 1, q), wr(vT4a, q, 0)])
    for t in range(3):
        for c in range(2):
            r, n, off = vSS + 8 * t + 4 * c, vSNew + 4 * c, T4SZ * t + 2048 * c
            T4Q.append([('v_mov_b32 %s, %s' % (vr(n), vr(r + 1)), None), ('v_mov_b32 %s, %s' % (vr(n + 1), vr(r + 2)), None),
                        al(n + 3, r + 3, r + 2), al(n + 2, r + 2, r + 1), wr(vT4a + 1, n, off + 16)])
            T4Q.append([al(r + 3, r + 2, r + 1), al(r + 2, r + 1, r), wr(vT4a + 1, r, off)])


def t4_piece():
    for it in T4Q.pop(0):
        emit(it)


@script_step('KF')
def _():
    a.wait_vm('kvst')
    a('s_barrier')
    a(f"""
    s_lshl_b32 s{t2}, s{sR}, {P['fsk']}
    s_add_u32 s{t2}, s{t2}, {WS_FKV}
    s_cmp_eq_u32 s{sWave}, 0
    s_cbranch_scc0 L_nokvflag
    """)
    a.cond = True
    flag(t2, P['fsk'])
    a.cond = False
    a.label('L_nokvflag')
    stamp('kvflag')
    a(f"""
    s_mul_i32 s{t2}, s{sWave}, {XSZ}
    s_add_u32 s{t2}, s{t2}, {L_X}
    v_lshl_add_u32 v{t0}, v{vLane}, 3, s{t2}
    v_mov_b32 v{t4}, 0
    v_mov_b32 v{t4+1}, 0
    ds_write_b64 v{t0}, v[{t4}:{t4+1}]
    """)


@script_step('SB')
def _():
    assert 'LN' in done_steps
    w_until('W', 'KL')
    a(f's_lshl_b32 s{t3}, s{sDT}, 10')
    for ks in range(8):
        a(f"""
        s_add_u32 s{t2}, s{sRot}, {ks}
        s_and_b32 s{t2}, s{t2}, 7
        s_mul_i32 s{t2}, s{t2}, s{sC40}
        s_add_u32 s{sKS+8+ks}, s{t2}, s{t3}
        s_xor_b32 s{sKS+ks}, s{sKS+8+ks}, 1024
        """)
    a(f"""
    s_lshl_b32 s{t2}, s{sDT}, 2
    s_add_u32 s{t2}, s{t2}, s{sWave}
    s_mul_i32 s{t3}, s{sFT}, 80
    s_add_u32 s{t3}, s{t3}, s{t2}
    s_lshl_b32 s{t3}, s{t3}, 10
    s_add_u32 s{t3}, s{t3}, {WS_UF}
    s_cmp_eq_u32 s{sAct}, 1
    s_cselect_b32 s{t3}, s{t3}, s{sOOB}
    v_lshl_add_u32 v{vUst}, v{vLane}, 4, s{t3}
    s_mul_i32 s{t2}, s{t2}, 24
    s_add_u32 s{t2}, s{t2}, s{sFT}
    s_lshl_b32 s{t3}, s{t2}, 12
    s_add_u32 s{t3}, s{t3}, {WS_PX}
    s_cmp_eq_u32 s{sAct}, 1
    s_cselect_b32 s{t3}, s{t3}, s{sOOB}
    v_lshl_add_u32 v{vPr}, v{vLane}, 4, s{t3}
    s_bitcmp1_b32 s{sDT}, 0
    s_cselect_b32 s{t3}, -1, 1
    s_mul_i32 s{t3}, s{t3}, {96*4096}
    v_add_u32 v{vPs}, s{t3}, v{vPr}
    s_lshl_b32 s{t2}, s{t2}, {P['fsu']}
    s_add_u32 s{t2}, s{t2}, {WS_FU}
    s_cmp_eq_u32 s{sAct}, 1
    s_cselect_b32 s{sFU}, s{t2}, {WS_DUMMY}
    v_lshlrev_b32 v{vPkv}, {P['fsk']}, v0
    v_add_u32 v{vPkv}, {WS_FKV}, v{vPkv}
    s_and_b32 s{t2}, s{sDT}, 2
    s_lshl_b32 s{t2}, s{t2}, 3
    s_add_u32 s{t2}, s{t2}, s{sKW}
    s_lshl_b32 s{t2}, s{t2}, {5+P['fsh']}
    s_add_u32 s{t2}, s{t2}, {WS_FH}
    v_lshrrev_b32 v{t0}, 5, v{vLane}
    v_and_b32 v{t1}, 31, v{vLane}
    v_lshl_add_u32 v{t0}, v{t0}, 8, v{t1}
    v_lshl_add_u32 v{vPo}, v{t0}, {P['fsh']}, s{t2}
    v_mul_u32_u24 v{t0}, 10240, v{vG}
    v_lshl_add_u32 v{t0}, v{vU}, 4, v{t0}
    s_mul_i32 s{t2}, s{sKW}, {32*10240}
    s_add_u32 s{t2}, s{t2}, {WS_HT8}
    s_cmp_eq_u32 s{sAct}, 1
    s_cselect_b32 s{t2}, s{t2}, s{sOOB}
    """)
    for st in range(4):
        a(f"""
        s_add_u32 s{t3}, s{sWave}, {st+1}
        s_and_b32 s{t3}, s{t3}, 3
        s_lshl_b32 s{t3}, s{t3}, 8
        s_add_u32 s{t3}, s{t3}, s{t2}
        v_add_u32 v{vHo+st}, s{t3}, v{t0}
        """)
    a(f'v_lshl_add_u32 v{vXa+3}, v{vLane}, 4, s{sRing}')
    for st in range(3):
        a(f"""
        s_add_u32 s{t3}, s{sWave}, {3-st}
        s_and_b32 s{t3}, s{t3}, 3
        s_mul_i32 s{t3}, s{t3}, {RINGW}
        v_lshl_add_u32 v{vXa+st}, v{vLane}, 4, s{t3}
        """)


step['HP'] = lambda: poll_issue(vPo)


def late_setup():
    L = lines(f"""
    v_lshrrev_b32 v{t0}, 2, v{vLane}
    v_and_b32 v{t1}, 3, v{vLane}
    v_min_u32 v{t1}, 2, v{t1}
    v_mul_u32_u24 v{t4}, 10240, v{t0}
    v_lshl_add_u32 v{t4}, v{t1}, 4, v{t4}
    s_mul_i32 s{t2}, s{sWave}, {64*10240}
    s_lshl_b32 s{t3}, s{sP0}, 4
    s_add_u32 s{t2}, s{t2}, s{t3}
    s_add_u32 s{t2}, s{t2}, {WS_KV}
    v_add_u32 v{t4}, s{t2}, v{t4}
    v_cmp_gt_u32 vcc, s{sNCH}, v{t1}
    v_mov_b32 v{vXg}, s{sOOB}
    v_mul_u32_u24 v{t1}, {XSZ}, v{t1}
    v_cndmask_b32 v{vXg}, v{vXg}, v{t4}, vcc
    v_lshl_add_u32 v{t1}, v{t0}, 4, v{t1}
    s_lshl_b32 s{t2}, s{sWave}, 10
    s_add_u32 s{t2}, s{t2}, {L_X+512}
    v_add_u32 v{vXw}, s{t2}, v{t1}
    v_lshlrev_b32 v{t0}, 7, v{t0}
    v_and_b32 v{t1}, 3, v{vU}
    v_lshl_add_u32 v{t0}, v{t1}, 3, v{t0}
    v_add_u32 v{t0}, s{sRing}, v{t0}
    v_bfe_u32 v{t1}, v{vLane}, 3, 2
    """)
    for n in range(4):
        L += lines(f"""
        s_add_u32 s{t2}, s{sWave}, {n}
        s_and_b32 s{t2}, s{t2}, 3
        v_xor_b32 v{t4}, s{t2}, v{t1}
        v_lshl_add_u32 v{vTr2+n}, v{t4}, 5, v{t0}
        """)
    L += lines(f"""
    v_lshlrev_b32 v{t0}, 3, v{vU}
    v_lshlrev_b32 v{t1}, 6, v{vG}
    v_sub_u32 v{t0}, v{t0}, v{t1}
    s_lshl_b32 s{t2}, s{sWave}, 9
    s_add_u32 s{t2}, s{t2}, {L_T4+2*T4SZ+200}
    v_add_u32 v{vAe}, s{t2}, v{t0}
    s_lshr_b32 s{t2}, s{sWave}, 1
    s_mul_i32 s{t2}, s{t2}, {T4SZ}
    s_and_b32 s{t3}, s{sWave}, 1
    s_lshl_b32 s{t3}, s{t3}, 10
    s_add_u32 s{t2}, s{t2}, s{t3}
    s_add_u32 s{t2}, s{t2}, {L_T4+200}
    v_add_u32 v{vAm}, s{t2}, v{t0}
    v_lshlrev_b32 v{t0}, 5, v{vU}
    v_lshl_add_u32 v{t4}, v{vG}, 4, v{t0}
    s_lshl_b32 s{t2}, s{sWave}, 7
    s_sub_u32 s{t2}, {L_X+2*XSZ+480-64}, s{t2}
    v_add_u32 v{vBe}, s{t2}, v{t4}
    s_lshr_b32 s{t2}, s{sWave}, 1
    s_mul_i32 s{t2}, s{t2}, {XSZ}
    s_lshr_b32 s{t3}, s{t3}, 2
    s_sub_u32 s{t2}, s{t2}, s{t3}
    s_add_u32 s{t2}, s{t2}, {L_X+480-192}
    v_add_u32 v{vBm}, s{t2}, v{t4}
    s_lshl_b32 s{t2}, s{sWave}, 11
    s_add_u32 s{t2}, s{t2}, {4*4096}
    v_lshl_add_u32 v{vEr}, v{vLane}, 4, s{t2}
    v_add_u32 v{vEr+1}, {2*RINGW}, v{vEr}
    v_and_b32 v{t1}, 1, v{vG}
    v_lshl_add_u32 v{t0}, v{t1}, 9, v{t0}
    v_lshrrev_b32 v{t1}, 1, v{vG}
    v_lshl_add_u32 v{t0}, v{t1}, 4, v{t0}
    s_lshl_b32 s{t2}, s{sChE}, 2
    s_add_u32 s{t2}, s{t2}, s{sWave}
    s_lshl_b32 s{t2}, s{t2}, 10
    s_add_u32 s{t2}, s{t2}, {WS_YT}
    s_cmp_eq_u32 s{sNCH}, 3
    s_cselect_b32 s{t2}, s{t2}, s{sOOB}
    v_add_u32 v{vYe}, s{t2}, v{t0}
    s_and_b32 s{t2}, s{sWave}, 1
    s_lshl1_add_u32 s{t2}, s{sChM}, s{t2}
    s_lshl_b32 s{t2}, s{t2}, 11
    s_add_u32 s{t2}, s{t2}, {WS_YT}
    v_add_u32 v{vYm}, s{t2}, v{t0}
    s_lshl_b32 s{t2}, s{sWave}, 12
    s_add_u32 s{t3}, s{t2}, {L_T4+2*T4SZ}
    v_lshl_add_u32 v{vMw}, v{vLane}, 4, s{t3}
    s_xor_b32 s{t2}, s{t2}, 4096
    s_add_u32 s{t3}, s{t2}, {L_T4+2*T4SZ}
    v_lshl_add_u32 v{vMr}, v{vLane}, 4, s{t3}
    s_mul_i32 s{t2}, s{sWave}, {12*40960}
    s_mul_i32 s{t3}, s{sDT2}, 5120
    s_add_u32 s{t2}, s{t2}, s{t3}
    s_add_u32 s{t2}, s{t2}, {WS_UF}
    v_lshl_add_u32 v{vUo}, v{vLane}, 4, s{t2}
    v_add_u32 v{vUo+1}, 4096, v{vUo}
    v_min_u32 v{t0}, 29, v{vLane}
    v_mul_u32_u24 v{t1}, 43, v{t0}
    v_lshrrev_b32 v{t1}, 8, v{t1}
    v_mul_u32_u24 v{t1}, 18, v{t1}
    v_add_u32 v{t0}, v{t0}, v{t1}
    s_mul_i32 s{t2}, s{sDT2}, 120
    s_mul_i32 s{t3}, s{sWave}, 6
    s_add_u32 s{t2}, s{t2}, s{t3}
    s_lshl_b32 s{t2}, s{t2}, {P['fsu']}
    s_add_u32 s{t2}, s{t2}, {WS_FU}
    v_lshl_add_u32 v{vPu}, v{t0}, {P['fsu']}, s{t2}
    v_lshrrev_b32 v{t0}, 3, v{vLane}
    v_lshlrev_b32 v{t0}, 12, v{t0}
    s_mul_i32 s{t2}, s{sWave}, {384*4096}
    s_lshl_b32 s{t3}, s{sST2}, 7
    s_add_u32 s{t2}, s{t2}, s{t3}
    v_add_u32 v{t0}, s{t2}, v{t0}
    v_and_b32 v{t1}, 7, v{vLane}
    v_lshlrev_b32 v{t4}, 1, v{vG}
    v_xor_b32 v{t1}, v{t1}, v{t4}
    v_lshl_add_u32 v{vWo2}, v{t1}, 4, v{t0}
    v_add_u32 v{vWo2+1}, {32768-1024}, v{vWo2}
    v_add_u32 v{vWo2+2}, {2*(32768-1024)}, v{vWo2}
    v_add_u32 v{vWo2+3}, {3*(32768-1024)}, v{vWo2}
    """)
    return L


@script_step('SL')
def _():
    for it in late_setup():
        emit(it)


@script_step('ST')
def _():
    for k in small:
        w_until('W', k)
    for it in table_setup():
        emit(it)


@script_step('AD')
def _():
    w_until('W', 'ML')
    for it in ad_items():
        emit(it)


def ad_items():
    return [lambda: a.wait_vm('dd')] + lines(f"""
    v_lshlrev_b32 v{vDe}, 16, v{vDe}
    v_lshlrev_b32 v{vDm}, 16, v{vDm}
    v_add_f32 v{vDe}, v{vDe}, v{vDm}
    v_cvt_pk_bf16_f32 v{vDe}, v{vDe}, v{vDe}
    v_lshrrev_b32 v{t0}, 2, v{vLane}
    v_min_u32 v{t0}, 2, v{t0}
    v_mul_u32_u24 v{t0}, {T4SZ}, v{t0}
    v_and_b32 v{t1}, 3, v{vLane}
    v_mul_u32_u24 v{t1}, 6, v{t1}
    v_sub_u32 v{t0}, v{t0}, v{t1}
    v_add_u32 v{vDm}, {L_T4+128}, v{t0}
    """)


C0 = -2.0 * 0.7978845608028654 * 1.4426950408889634
C1 = C0 * 0.044715
vC0 = 50


@script_step('BU')
def _():
    w_until('W', 'ML')
    for it in bu_items():
        emit(it)


def bu_items():
    L = [lambda: a.wait_vm('b1')]
    for i in range(8):
        L += [('v_lshlrev_b32 %s, 16, %s' % (vr(vBf + 2 * i), vr(vB1 + i)), None),
              ('v_and_b32 %s, 0xffff0000, %s' % (vr(vBf + 2 * i + 1), vr(vB1 + i)), None)]
    return L + lines(f"""
    s_mov_b32 s{sT0}, 0x{f2u(C1):08x}
    s_mov_b32 s{sT1}, 0x{f2u(C1):08x}
    v_mov_b32 v{vC0}, 0x{f2u(C0):08x}
    v_mov_b32 v{vC0+1}, 0x{f2u(C0):08x}
    """)


def table_setup():
    L = []
    for ks in range(12):
        if ks:
            L += lines(f"""
            s_add_u32 s{sRot2}, s{sRot2}, 1
            s_cmp_eq_u32 s{sRot2}, 12
            s_cselect_b32 s{sRot2}, 0, s{sRot2}
            """)
        L += lines(f"""
        s_lshl_b32 s{sW2o[ks]}, s{sRot2}, 17
        s_mul_i32 s{sUo[ks]}, s{sRot2}, s{sC40}
        """)
    return L


def lines(txt):
    L = []
    for l in txt.strip().split('\n'):
        l = l.strip()
        if not l:
            continue
        if l.startswith('s_cselect'):
            L[-1] = (L[-1][0] + '\n' + l, None)
        else:
            L.append((l, None))
    return L


def emit(it):
    if callable(it):
        it()
    else:
        a(it[0], tag=it[1])


a.hook = w_hook
for tok in P['script'].replace('_', ' ').split():
    if tok.startswith('S:'):
        stamp(tok[2:])
    elif tok.startswith('R:'):
        rate[0] = int(tok[2:])
    elif tok.startswith('W:'):
        w_until('W', tok[2:])
    elif tok != 'T4' and tok[0] in 'DT' and tok[1:].isdigit():
        w_until(tok[0], int(tok[1:]))
    else:
        step[tok]()
        done_steps.add(tok)
a.hook = None
assert ('D', NSTEP - 1) in wdone
if NW == 0:
    w2_desc()


def gather_list():
    return [(f's_mul_i32 s{sWoff}, s{sC40}, {4*m}\n' + 'buffer_load_dwordx4 %s, %s, %s, %s offen sc1' % (
        vr(vXl + 4 * m, 4), vr(vXg), sr(rWS, 4), sr(sWoff)), ('xl', m)) for m in range(4)]


def x_write(m):
    a.wait_vm(('xl', m))
    a('ds_write_b128 %s, %s offset:%d' % (vr(vXw), vr(vXl + 4 * m, 4), 256 * m), tag='xw')


def w2_atoms(ks, slot):
    L = dma_list('w2', ks, slot)
    return [(L[0][0] + '\n' + L[1][0], L[1][1])] + L[2:]


mtime = {}


class Sched:
    def __init__(self):
        self.k = 0
        self.streams = []
        self.credit = 8.0
        self.lastvm = -100

    def stream(self, *items):
        st = dict(q=list(items), wake=0)
        self.streams.append(st)
        return st['q']

    @staticmethod
    def kind(it):
        if callable(it):
            return 'wait', 0
        if it[0] == 'vm':
            return 'vm', 0
        op = it[0].split('\n')[-1].split()[0]
        if op.startswith(('buffer_', 'global_')):
            return 'vm', 0
        if op.startswith('ds_write_b128'):
            return 'lds', 13
        if op.startswith('ds_write'):
            return 'lds', 8
        if op.startswith('ds_read_b128'):
            return 'lds', 4
        if op.startswith('ds_'):
            return 'lds', 2
        if op == 's_waitcnt':
            return 'wait', 0
        if op.startswith('s_'):
            return 'salu', 0
        return 'valu', 0

    def do(self, it):
        if not callable(it) and it[0] == 'vm':
            it[1]()
        else:
            emit(it)

    def head(self, st):
        q = st['q']
        while q:
            it = q[0]
            if callable(it):
                break
            if it[0] == 'at':
                if self.k < it[1]:
                    return None
            elif it[0] == 'delay':
                st['wake'] = self.k + it[1]
            elif it[0] == 'after':
                if it[1]:
                    return None
            elif it[0] == 'since':
                if it[1] not in mtime or self.k < mtime[it[1]] + it[2]:
                    return None
            else:
                break
            q.pop(0)
        if not q or self.k < st['wake']:
            return None
        return q[0]

    def take(self, kinds, ok=None):
        for st in self.streams:
            it = self.head(st)
            if it is None:
                continue
            kind, lds = self.kind(it)
            if kind in kinds and (ok is None or ok(kind)):
                st['q'].pop(0)
                self.do(it)
                self.credit -= lds
                if kind == 'vm':
                    self.lastvm = self.k
                return kind
        return None

    def gap(self, frag=None, forced=None):
        self.k += 1
        self.credit = min(self.credit + P['ldsr'], P['ccap'])
        while self.take(('wait',)):
            pass
        t, lds, vm = 1, 0, False
        if forced:
            forced()
            t, vm = 2, True
        if frag and frag(True):
            t, lds = t + 2, 1
        elif frag and (self.take(('lds',), lambda kd: self.credit > 0) or (self.credit > 0 and frag(False))):
            t, lds = t + 2, 1
        while t <= 3:
            kind = self.take(('lds', 'vm', 'salu'), lambda kd: (
                (kd == 'lds' and self.credit > 0 and (t <= 2 or (P['dbl'] and lds < 2 and t == 3))) or
                (kd == 'vm' and not vm and self.k - self.lastvm >= P['vsp']) or kd == 'salu'))
            if kind is None:
                break
            t += 2 if kind == 'lds' else 1
            lds += kind == 'lds'
            vm = vm or kind == 'vm'
        t = max(t, 3 if vm else 2)
        while t <= 3 and self.take(('valu', 'salu')):
            t += 1

    def flush(self, q, until=None):
        while q and (until is None or until()):
            it = q.pop(0)
            if callable(it) or it[0] not in ('at', 'delay', 'after', 'since'):
                self.do(it)
            elif it[0] == 'after':
                self.flush(it[1])


def lds_w(addr, reg, off, tag, k='v', w64=None):
    if not (P['w64'] if w64 is None else w64):
        return [('ds_write_b128 %s, %s offset:%d' % (vr(addr), vr(reg, 4, k), off), tag)]
    return [('ds_write_b64 %s, %s offset:%d' % (vr(addr), vr(reg + 2 * h, 2, k), off + 8 * h), tag) for h in range(2)]


NT = P['ntail']
assert NT % 4 == 0 and NT <= 16
poll_check('L_pollh', vPo)
stamp('hpoll')
WIN = P['win']
vWin = 96
vAc = 64


def hload(F):
    a('buffer_load_dwordx4 %s, %s, %s, %s offen sc1' % (
        vr(vWin + 4 * (F % WIN), 4), vr(vHo + (F // 8) % 4), sr(rWS, 4), sr(sKS + 8 * (F // 32) + F % 8)), tag=('h', F))


for F in range(WIN):
    hload(F)
    if W:
        w_atom()
while W:
    w_atom()
vSA, vPt, vPx, vMk = 136, 152, 168, 204
sTag, sMk = [96, 97, 22, 23], 58
g1 = Sched()
side = g1.stream()
gq = gather_list()
if 'G' in P['dbg']:
    a(f'v_mov_b32 v{vXg}, s{sOOB}')
if 'P' in P['dbg']:
    a(f'v_mov_b32 v{vPs}, s{sOOB}')
    a(f'v_mov_b32 v{vPr}, s{sOOB}')
    a(f's_mov_b32 s{sAct}, 0')
vGt, vOg, vT0, vB2 = 56, 58, 60, 62
vOo = 16
vQa = 19
vYa, vYr = 32, 35
rQ, rO = 60, 64
STG = 20480
q4 = g1.stream(*[x for p in T4Q for x in p + [('delay', 2)]] if '4' not in P['dbg'] else [])
qS = g1.stream()
qS += lines(f"""
s_and_b32 s{sTag[0]}, s{sN}, 0xff
s_bfe_u32 s{sTag[1]}, s{sN}, 0x80008
s_bfe_u32 s{sTag[2]}, s{sN}, 0x80010
s_lshr_b32 s{sTag[3]}, s{sN}, 24
s_mul_i32 s{sMk}, s{sAct}, 0xff
v_mov_b32 v{vMk}, 0xffffff00
""")
for nm, fn in (('BU', bu_items), ('AD', ad_items), ('SL', late_setup)):
    if nm not in done_steps:
        qS += fn()
qS2 = g1.stream(*(table_setup() if 'ST' not in done_steps else []))
qS += lines(f"""
s_lshl_b32 s{t2}, s{sST2}, 2
s_add_u32 s{t2}, s{t2}, s{sWave}
s_lshl_b32 s{t2}, s{t2}, 4
v_add_u32 v{t0}, s{t2}, v{vU}
v_lshlrev_b32 v{t1}, 1, v{t0}
v_lshlrev_b32 v{vGt}, 2, v{t0}
v_add_u32 v{vGt}, {WS_G}, v{vGt}
""")
qS += [('global_load_ushort %s, %s, %s' % (vr(vB2), vr(t1), sr(sB2, 2)), 'gb')]
qS += lines(f"""
s_mul_i32 s{t2}, s{t2}, 1280
s_mul_i32 s{t3}, s{sDT2}, 160
s_add_u32 s{t2}, s{t2}, s{t3}
v_lshrrev_b32 v{t0}, 3, v{vLane}
v_mul_u32_u24 v{t0}, 1280, v{t0}
v_and_b32 v{t1}, 7, v{vLane}
v_xor_b32 v{t1}, v{t1}, v{vG}
v_add_u32 v{t0}, s{t2}, v{t0}
v_lshl_add_u32 v{vOo}, v{t1}, 4, v{t0}
v_xor_b32 v{t1}, 4, v{t1}
v_lshl_add_u32 v{vOo+1}, v{t1}, 4, v{t0}
v_add_u32 v{vOo+1}, {8*1280}, v{vOo+1}
v_lshrrev_b32 v{t0}, 1, v{vLane}
v_mul_u32_u24 v{t0}, 1280, v{t0}
v_and_b32 v{t1}, 1, v{vLane}
v_lshl_add_u32 v{t0}, v{t1}, 4, v{t0}
s_add_u32 s{t2}, s{t2}, 128
v_lshlrev_b32 v{t1}, 25, v{vLane}
v_add_u32 v{t0}, s{t2}, v{t0}
v_and_or_b32 v{vOo+2}, v{t1}, 2.0, v{t0}
s_add_u32 s{t2}, s{sRing}, {STG}
v_lshrrev_b32 v{t0}, 1, v{vU}
v_lshrrev_b32 v{t1}, 1, v{vG}
v_xor_b32 v{t0}, v{t0}, v{t1}
v_lshlrev_b32 v{t0}, 4, v{t0}
v_lshl_add_u32 v{t0}, v{vU}, 7, v{t0}
v_and_b32 v{t1}, 1, v{vG}
v_lshl_add_u32 v{t0}, v{t1}, 3, v{t0}
v_add_u32 v{vQa}, s{t2}, v{t0}
v_xor_b32 v{vQa+1}, 32, v{vQa}
v_xor_b32 v{vQa+2}, 64, v{vQa}
v_xor_b32 v{vQa+3}, 0x60, v{vQa}
v_lshl_add_u32 v{t0}, v{vU}, 5, s{t2}
v_lshl_add_u32 v{vQa+4}, v{vG}, 3, v{t0}
""")
qeq = [(f's_add_u32 m0, s{sRing}, {STG+1024*i}\n' + 'buffer_load_dwordx4 %s, %s, 0 offen lds' % (
    vr(vOo + i), sr(rQ, 4)), 'qe') for i in range(3)]


def stg(i):
    return (vr(vQa + i), 0) if i < 4 else (vr(vQa + 4), 2048)


qS += lines(f"""
v_bfe_u32 v{t0}, v{vLane}, 4, 1
v_lshlrev_b32 v{t0}, 7, v{t0}
v_add_u32 v{t0}, v{t0}, v{vU}
s_lshl_b32 s{t2}, s{sDT2}, {P['fsy']+4}
s_add_u32 s{t2}, s{t2}, {WS_FY}
v_lshl_add_u32 v{vPo}, v{t0}, {P['fsy']}, s{t2}
v_lshrrev_b32 v{t0}, 3, v0
s_mul_i32 s{t2}, s{sDT2}, 80
v_add_u32 v{t0}, s{t2}, v{t0}
v_lshlrev_b32 v{t0}, 12, v{t0}
v_and_b32 v{t1}, 7, v{vLane}
v_lshlrev_b32 v{t4}, 1, v{vG}
v_xor_b32 v{t1}, v{t1}, v{t4}
v_lshl_add_u32 v{t0}, v{t1}, 4, v{t0}
s_lshl_b32 s{t3}, s{sST2}, 7
s_add_u32 s{t3}, s{t3}, {WS_YT}
v_add_u32 v{vYa}, s{t3}, v{t0}
v_add_u32 v{vYa+1}, {32*4096}, v{vYa}
s_cmp_lt_u32 s{sWave}, 2
s_cselect_b32 s{t3}, {64*4096}, s{sOOB}
v_add_u32 v{vYa+2}, s{t3}, v{vYa}
v_bfe_u32 v{t0}, v{vLane}, 2, 3
v_lshlrev_b32 v{t0}, 7, v{t0}
v_and_b32 v{t1}, 3, v{vU}
v_lshl_add_u32 v{t0}, v{t1}, 3, v{t0}
v_bfe_u32 v{t1}, v{vLane}, 3, 2
v_xor_b32 v{t1}, s{sWave}, v{t1}
v_lshl_add_u32 v{t0}, v{t1}, 5, v{t0}
v_lshrrev_b32 v{t1}, 1, v{vG}
v_mul_u32_u24 v{t1}, {RINGW}, v{t1}
v_add_u32 v{t0}, v{t0}, v{t1}
v_add_u32 v{vYr}, 16384, v{t0}
""")
qR = lines(f"""
s_mov_b32 s{rQ}, s{sQ}
s_and_b32 s{rQ+1}, s{sQ+1}, 0xffff
s_mov_b32 s{rQ+2}, {2048*1280}
s_mov_b32 s{rQ+3}, 0x20000
s_mov_b32 s{rO}, s{sOUT}
s_and_b32 s{rO+1}, s{sOUT+1}, 0xffff
s_mov_b32 s{rO+2}, {2048*1280}
s_mov_b32 s{rO+3}, 0x20000
""")
slot2 = lambda ks: (ks - NW) % 4
tailq = []
for i in range(NW, NW + 4):
    tailq += w2_atoms(i, slot2(i))
GAT = P['gat']
SG = (GAT + 7) // 8 + (GAT <= 32)
XLATE = GAT + WIN + 4 > 59
assert 33 <= GAT <= 56
xw_items = lambda m, w64=None: [lambda: a.wait_vm(('xl', m))] + lds_w(vXw, vXl + 4 * m, 256 * m, 'xw', 'v', w64)
xw_left = list(range(4))
qG = g1.stream()


def pload(n):
    a('buffer_load_dwordx4 %s, %s, %s, 0 offen offset:%d sc1' % (
        vr(vPx + 4 * n, 4), vr(vPr), sr(rWS, 4), 1024 * n), tag='px')


pq = [lambda n=n: pload(n) for n in range(4)]
if 'KF' not in done_steps:
    step['KF']()
a.wait_vm(('h', 0))
a.wait_lg(('tr', 'w1', 0))
nex = 0
for F in range(64):
    S, ks = divmod(F, 8)
    acc = vAc + 16 * (S & 1)
    if ks == 0:
        g1.flush(side, lambda: any(not callable(x) and x[1] == ('acc', S - 2) for x in side))
    for n in range(4):
        d = vr(acc + 4 * n, 4)
        a('v_mfma_f32_16x16x32_bf16 %s, %s, %s, %s' % (
            d, ar(16 * ks + 4 * n, 4), vr(vWin + 4 * (F % WIN), 4), '0' if ks == 0 else d))
        forced = None
        if n == 0 and 1 <= F <= 64 - WIN:
            forced = lambda: hload(F - 1 + WIN)
        elif n in (0, 2) and F >= P['pld'] and pq:
            forced = pq.pop(0)
        elif n == 0 and F > 64 - WIN and len(tailq) > 16 - NT:
            forced = lambda: emit(tailq.pop(0))
        elif n == 2 and F == GAT - WIN - 2:
            forced = lambda: poll_issue(vPkv)
        elif n == 2 and GAT <= F < GAT + 4:
            forced = lambda: emit(gq.pop(0))
        if n == 3 and F < 63:
            a.wait_vm(('h', F + 1))
            if F < 7:
                a.wait_lg(('tr', 'w1', ks + 1))
        g1.gap(forced=forced)
    if 'F%d' % F in P['mst'].split(','):
        stamp('F%d' % F)
    if F == GAT - 1:
        poll_check('L_pollkv', vPkv)
        stamp('kvpoll')
    if F >= GAT + WIN + 1 and xw_left and F < 56:
        qG += xw_items(xw_left.pop(0))
    if F == 33:
        qS += qR
    if S > 0 and ks == 0:
        pa, sp = vAc + 16 * ((S - 1) & 1), (S - 1) % 4
        if S == 7:
            g1.flush(qS)
            g1.flush(qG)
        if S == 4:
            g1.flush(qS, lambda: any(not callable(x) and '0xffffff00' in x[0] for x in qS))
            for n in range(4):
                for j in range(4):
                    r = vSA + 4 * n + j
                    side += [('v_add_f32 %s, %s, %s' % (vr(r), vr(r), vr(pa + 4 * n + j)), ('acc', S - 1)),
                             ('v_and_or_b32 %s, %s, %s, %s' % (vr(r), vr(r), vr(vMk), sr(sTag[j])), None)]
                side.append(('buffer_store_dwordx4 %s, %s, %s, 0 offen offset:%d ' % (
                    vr(vSA + 4 * n, 4), vr(vPs), sr(rWS, 4), 1024 * n) + 'sc1', 'pst'))
        else:
            if S == 5:
                t4left = len(q4)
                g1.flush(q4)
            off = 4096 * (4 + (nex & 1))
            dst = vSA if S == 1 else vPt
            for n in range(4):
                side += lds_w(vXa + 3, pa + 4 * n, off + 1024 * n, ('acc', S - 1))
            if S == 7 and not XLATE:
                while xw_left:
                    side += xw_items(xw_left.pop(0))
            side += [('delay', 2), lambda S=S: a.wait_lg(('acc', S - 1), 'xw'), ('s_barrier', None)]
            if S == 5:
                g1sl = (len(qS), len(qS2))
                g1.flush(qS)
                g1.flush(qS2)
                side.append(('ds_write_b16 %s, %s' % (vr(vDm), vr(vDe)), None))
            if S == SG:
                side.append(('buffer_load_dword %s, %s, %s, 0 offen sc1' % (vr(vGt), vr(vGt), sr(rWS, 4)), 'gb'))
            side += [('ds_read_b128 %s, %s offset:%d' % (vr(dst + 4 * n, 4), vr(vXa + sp), off + 1024 * n), ('pr', S))
                     for n in range(4)]
            if S < 7:
                side += [('delay', 3), lambda S=S: a.wait_lg(('pr', S))]
            if 1 < S < 7:
                tot = vSA if S < 4 else vBf
                side += [('v_add_f32 %s, %s, %s' % (vr(tot + i), vr(tot + i), vr(vPt + i)), None) for i in range(16)]
            nex += 1
g1left = len(side)
g1.flush(side)
while pq:
    pq.pop(0)()
while len(tailq) > 16 - NT:
    emit(tailq.pop(0))
stamp('g1end')
vAccM = 64
aAccE = 64
aOth = 96
UW = P['uw']
NPOOL = 35 - UW
POOL = [96 + 4 * i for i in range(NPOOL)]
vUw = 96 + 4 * NPOOL
vOwn = 236

mf = []
units = [('e', 0), ('e', 1), ('m', 0), ('m', 1), ('m', 2), ('m', 3)]
ustart = []
for ui, (kind, e) in enumerate(units):
    accs = (lambda q: ar(aAccE + 4 * q, 4)) if kind == 'e' else (lambda q: vr(vAccM + 4 * q, 4))
    ustart.append(len(mf))
    rows = range(8) if ui % 2 == 0 else range(7, -1, -1)
    for r in rows:
        for q in range(r, 8):
            mf.append((accs(q), ('A', ui, r), ('B', ui, q - r), '0' if e == 0 and r == 0 else accs(q)))
ustart.append(len(mf))


def frag_loads(key, reg):
    t, ui, i = key
    kind, e = units[ui]
    if t == 'A':
        v = vAe if kind == 'e' else vAm
        if P['a2'] and i % P['a2'] == 0:
            return ['ds_read2_b64 %s, %s offset0:%d offset1:%d' % (
                vr(reg, 4), vr(vA8[kind][i]), 32 * e, 32 * e + 4)]
        return ['ds_read_b64 %s, %s offset:%d' % (vr(reg, 2), vr(v), 256 * e + 2048 * i),
                'ds_read_b64 %s, %s offset:%d' % (vr(reg + 2, 2), vr(v), 256 * e + 2048 * i + 32)]
    v, b = (vBe, 64) if kind == 'e' else (vBm, 192)
    return ['ds_read_b128 %s, %s offset:%d' % (vr(reg, 4), vr(v), b - 64 * e + 512 * i)]


order, last = [], {}
for k, (d, A, B, C) in enumerate(mf):
    for f in (A, B):
        if isinstance(f, tuple):
            if f not in last:
                order.append(f)
            last[f] = k
free, reg_of, pend, issued_at = list(POOL), {}, [], {}
cv = Sched()


def issue_frag(maxn):
    n = 0
    while n < maxn:
        if not pend:
            if not order or not free:
                return n
            f = order.pop(0)
            reg_of[f] = free.pop(0)
            pend.extend((x, f) for x in frag_loads(f, reg_of[f]))
        x, f = pend.pop(0)
        a(x, tag=f)
        cv.credit -= 8 if 'read2' in x else 4 if 'b128' in x else 2
        issued_at[f] = cv.k
        n += 1
    return n


def wait_frags(*fs):
    if not any(t in fs for t in a.lg):
        return 0
    more = [t for t in a.lg if t in issued_at and issued_at[t] <= cv.k - P['lead'] and not any(p[1] == t for p in pend)]
    a.wait_lg(*fs, *more)
    return 1


if XLATE:
    while xw_left:
        for it in xw_items(xw_left.pop(0), 0):
            emit(it)
else:
    issue_frag(10)
a.wait_lg(('pr', 7))
acc = vAc + 16
vE, vEp = 188, 224
assert not gq
for i in range(8):
    a('v_pk_add_f32 %s, %s, %s' % (vr(vBf + 2 * i, 2), vr(vBf + 2 * i, 2), vr(vPt + 2 * i, 2)))
a('s_mov_b32 %s, 0' % sr(sSpin))
a.wait_vm('px')
a.label('L_px')
for i in range(16):
    a('v_xor_b32 %s, %s, %s' % (vr(vPx + i), sr(sTag[i % 4]), vr(vPx + i)))
a('v_or_b32 %s, %s, %s' % (vr(t0), vr(vPx), vr(vPx + 1)))
for i in range(2, 16, 2):
    a('v_or3_b32 %s, %s, %s, %s' % (vr(t0), vr(vPx + i), vr(vPx + i + 1), vr(t0)))
a('v_and_b32 %s, %s, %s' % (vr(t0), sr(sMk), vr(t0)))
a('v_cmp_ne_u32 vcc, 0, %s' % vr(t0))
a('s_cbranch_vccz L_px_ok')
sv, sh = list(a.vm), list(a.hist)
for n in range(4):
    pload(n)
a(f"""
s_add_u32 s{sSpin}, s{sSpin}, 1
s_cmp_lt_u32 s{sSpin}, {SPIN_MAX}
s_waitcnt vmcnt(0)
s_cbranch_scc1 L_px
""")
a.label('L_px_ok')
a.vm, a.hist = sv, sh
stamp('px')
if XLATE:
    a.wait_lg('xw')
    a('s_barrier')
    issue_frag(10)
for i in range(8):
    a('v_pk_add_f32 %s, %s, %s' % (vr(vBf + 2 * i, 2), vr(vBf + 2 * i, 2), vr(vPx + 2 * i, 2)))
for p in range(2):
    rng = range(4 * p, 4 * p + 4)
    for i in rng:
        a('v_pk_add_f32 %s, %s, %s' % (vr(vBf + 2 * i, 2), vr(vBf + 2 * i, 2), vr(acc + 2 * i, 2)))
    for i in rng:
        a('v_pk_mul_f32 %s, %s, %s' % (vr(vE + 2 * i, 2), vr(vBf + 2 * i, 2), vr(vBf + 2 * i, 2)))
    for i in rng:
        a('v_pk_fma_f32 %s, %s, %s, %s' % (vr(vE + 2 * i, 2), vr(vE + 2 * i, 2), sr(sT0, 2), vr(vC0, 2)))
    for i in rng:
        a('v_pk_mul_f32 %s, %s, %s' % (vr(vE + 2 * i, 2), vr(vE + 2 * i, 2), vr(vBf + 2 * i, 2)))
    for i in range(8 * p, 8 * p + 8):
        a('v_exp_f32 %s, %s' % (vr(vE + i), vr(vE + i)))
    for i in rng:
        a('v_pk_add_f32 %s, %s, 1.0 op_sel_hi:[1,0]' % (vr(vE + 2 * i, 2), vr(vE + 2 * i, 2)))
    for i in range(8 * p, 8 * p + 8):
        a('v_rcp_f32 %s, %s' % (vr(vE + i), vr(vE + i)))
    for i in rng:
        a('v_pk_mul_f32 %s, %s, %s' % (vr(vE + 2 * i, 2), vr(vE + 2 * i, 2), vr(vBf + 2 * i, 2)))
    for i in rng:
        a('v_cvt_pk_bf16_f32 %s, %s, %s' % (vr(vEp + i), vr(vE + 2 * i), vr(vE + 2 * i + 1)))
    a('buffer_store_dwordx4 %s, %s, %s, %s offen sc1' % (
        vr(vEp + 4 * p, 4), vr(vUst), sr(rWS, 4), sr(sC40) if p else '0'), tag='ust')
    if p == 0:
        issue_frag(6 if P['a2'] == 1 else 10)
if P['a2'] == 1:
    for i in (5, 7):
        a('v_add_u32 v%d, %d, v%d' % (vA8['m'][i], 2048 * i, vA8['m'][0]))
stamp('conv0')
cv.credit = 8.0
vEx = 120
vYp = 28


def w2T(ks, slot):
    return [lambda: a.wait_vm(('w2', ks))] + tr_list('w2', ks, slot)


def uload(F):
    st, ks = divmod(F, 12)
    a('buffer_load_dwordx4 %s, %s, %s, %s offen offset:%d sc1' % (
        vr(vUw + 4 * (F % UW), 4), vr(vUo + st // 4), sr(rWS, 4), sr(sUo[ks]), 1024 * (st % 4)), tag=('u', F))


def split(x):
    return [(l, x[1]) for l in x[0].split('\n')]


def dbgf(it):
    if 'T' in P['dbg']:
        it = [x for x in it if callable(x) or '_tr_' not in x[0]]
    if 'D' in P['dbg']:
        it = [(('vm', lambda: a('s_nop 0')) if not callable(x) and ' lds' in x[0] else x) for x in it]
    if 'W' in P['dbg']:
        it = [x for x in it if not callable(x)]
    return it


e_end = ustart[2]
qF = cv.stream(('at', P['uflag']), lambda: a.wait_vm('ust'), ('vm', lambda: flag(sFU, P['fsu'])), lambda: stamp('uflag'),
               ('at', P['pollu']), ('vm', lambda: poll_issue(vPu)))
qX = cv.stream(('at', e_end + 6), ('s_barrier', None), ('at', P['xat']))
for q in range(8):
    qX += lds_w(vXa + 3, aAccE + 4 * q, 4 * 4096 + 1024 * q, 'mw', 'a', P['xw64']) + [('delay', P['ewsp'])]
NDEF = P['ndef']
marks = {(c, ks): [1] for c in 'TD' for ks in range(12)}
log = []


def mark(c, ks):
    def f():
        marks[(c, ks)].clear()
        mtime[(c, ks)] = cv.k
        log.append('%s%d@%d' % (c, ks, cv.k))
        if '%s%d' % (c, ks) in P['mst'].split(','):
            stamp('%s%d' % (c, ks))
    return f


qD = cv.stream(*dbgf([y for x in tailq for y in split(x)]), mark('D', NW + 3))
qT = cv.stream(('at', P['t0']))
for ks in range(NW, 12 - NDEF):
    dep = min(ks + P['tlag'], 11)
    if dep >= NW + 3:
        qT.append(('after', marks[('D', dep)]))
    qT += dbgf(w2T(ks, slot2(ks))) + [mark('T', ks)]
    if ks + 4 < 12:
        qD += [('since', ('T', ks), P['tdel']), lambda ks=ks: a.wait_lg(('tr', 'w2', ks))]
        qD += dbgf(dma_list('w2', ks + 4, slot2(ks))) + [mark('D', ks + 4)]
if 'X' in P['dbg']:
    qX.clear()
qX.append(lambda: log.append('X@%d' % cv.k))
qU = cv.stream(('after', qF), ('after', qD), ('at', P['pollu'] + P['ulag']),
               lambda: poll_check('L_pollu', vPu), lambda: stamp('upoll'), lambda: log.append('U@%d' % cv.k))
for F in range(UW):
    qU.append(('vm', lambda F=F: uload(F)))
cv.streams.append(cv.streams.pop(1))

def ready(k):
    d, A, B, C = mf[k]
    for f in (A, B):
        while f not in reg_of or any(p[1] == f for p in pend):
            assert pend or free
            issue_frag(1)
    wait_frags(A, B)


first = {}
for k, (d, A, B, C) in enumerate(mf):
    for f in (A, B):
        first.setdefault(f, k)


def frag_cb(urgent_only):
    if urgent_only:
        j, slack = 0, 999
        for x, f in pend:
            j += 1
            slack = min(slack, first[f] - j)
        for f in order[:14]:
            j += len(frag_loads(f, 0))
            slack = min(slack, first[f] - j)
        if slack - cv.k > P['urg']:
            return 0
    return issue_frag(1)


ready(0)
for k, (d, A, B, C) in enumerate(mf):
    a('v_mfma_f32_16x16x32_bf16 %s, %s, %s, %s' % (d, vr(reg_of[A], 4), vr(reg_of[B], 4), C))
    for f in (A, B):
        if last[f] == k:
            free.append(reg_of[f])
    if k + 1 < len(mf):
        ready(k + 1)
    cv.gap(frag=frag_cb)
left = [len(x['q']) for x in cv.streams]
cv.streams.pop(3)
while qX or qT or qD or qF:
    cv.gap()
vMx = 96
a('s_bitcmp1_b32 %s, 0' % sr(sWave))
a('s_cbranch_scc1 L_mw_odd')
sh = list(a.hist)
sl = list(a.lg)
for par in range(2):
    if par == 1:
        a.label('L_mw_odd')
        a.hist, a.lg = list(sh), list(sl)
    give = 4 if par == 0 else 0
    for q in range(4):
        a('ds_write_b128 %s, %s offset:%d' % (vr(vMw), vr(vAccM + 4 * (give + q), 4), 1024 * q), tag='mw')
        if par == 1:
            for i in (2 * q, 2 * q + 1):
                a('v_mov_b64 %s, %s' % (vr(vAccM + 2 * i, 2), vr(vAccM + 16 + 2 * i, 2)))
    if par == 0:
        a('s_branch L_mw_done')
a.label('L_mw_done')
stamp('convend')
g2 = Sched()
vOl = 104
vQe = 154
vQg = 64
vPp = 120
vYl = 132
vYt = 144
vYu = 96
vOp = 88
assert vQe + 10 <= vUw
qM = g2.stream(lambda: a.wait_lg('mw'), ('s_barrier', None))
qM += [('ds_read_b128 %s, %s offset:%d' % (vr(vMx + 4 * q, 4), vr(vMr), 1024 * q), ('mr', q // 2)) for q in range(4)]
qM += [('ds_read_b128 %s, %s offset:%d' % (
    vr(vEx + 8 * w2 + 4 * h, 4), vr(vEr + w2 // 2), RINGW * (w2 % 2) + 1024 * h), ('er', w2))
    for w2 in range(4) for h in range(2)]
MF = P['mflush']


def addv(d, x, n):
    if MF:
        return [('v_pk_add_f32 %s, %s, %s' % (vr(d + i, 2), vr(d + i, 2), vr(x + i, 2)), None) for i in range(0, n, 2)]
    return [('v_add_f32 %s, %s, %s' % (vr(d + i), vr(d + i), vr(x + i)), None) for i in range(n)]


def ypack(src, o, addr, off):
    return [('v_cvt_pk_bf16_f32 %s, %s, %s' % (vr(o + h), vr(src + 2 * h), vr(src + 2 * h + 1)), None)
            for h in range(4)] + [
        ('v_permlane16_swap_b32 %s, %s' % (vr(o), vr(o + 2)), None),
        ('v_permlane16_swap_b32 %s, %s' % (vr(o + 1), vr(o + 3)), None),
        ('buffer_store_dwordx4 %s, %s, %s, 0 offen offset:%d sc1' % (vr(o, 4), vr(addr), sr(rWS, 4), off), 'yst')]


for qq in range(2):
    qM.append(lambda qq=qq: a.wait_lg(('mr', qq)))
    qM += addv(vMx + 8 * qq, vAccM + 8 * qq, 8) + ypack(vMx + 8 * qq, vMx + 16 + 4 * qq, vYm, 1024 * qq)
for w2 in range(1, 4):
    qM += [lambda w2=w2: a.wait_lg(('er', w2))] + addv(vEx, vEx + 8 * w2, 8)
qM += ypack(vEx, vYp, vYe, 0)
if MF:
    n = 0
    while qM:
        g2.flush(qM, lambda m=len(qM): len(qM) == m)
        n += 1
        if n % 8 == 0 and 0 < len(qU) <= UW:
            cv.flush(qU, lambda m=len(qU): len(qU) == m)
cv.flush(qU)
qT2 = g2.stream()
for ks in range(12 - NDEF, 12):
    qT2 += w2T(ks, slot2(ks))
side = g2.stream()
a.wait_vm('gb')
a(f"""
v_sub_f32 v{vOg}, 1.0, v{vGt}
v_lshlrev_b32 v{vB2}, 16, v{vB2}
v_mul_f32 v{vT0}, v{vOg}, v{vB2}
s_lshl_b32 s{sT0}, s{sR}, {P['fsy']}
s_add_u32 s{sT0}, s{sT0}, {WS_FY}
""")


def xwrite(st):
    if st == 4:
        return [('ds_write_b128 %s, %s offset:%d' % (
            vr(vXa + 3), ar(aOth + 4 * (n - 1), 4), 3072 * st + 1024 * (n - 1)), 'xw') for n in range(1, 4)]
    return [x for n in range(1, 4)
            for x in lds_w(vXa + 3, aOth + 12 * (st & 1) + 4 * (n - 1), 3072 * st + 1024 * (n - 1), 'xw', 'a')]


def xread(st):
    return [('ds_read_b128 %s, %s offset:%d' % (vr(vPp + 4 * (n - 1), 4), vr(vXa + n - 1), 3072 * st + 1024 * (n - 1)),
             ('xr', st)) for n in range(1, 4)]


def xsum(st, pk=False):
    L = [lambda: a.wait_lg(('xr', st))]
    o = vOwn + 4 * st
    if pk:
        for n in range(3):
            L += [('v_pk_add_f32 %s, %s, %s' % (vr(o + 2 * h, 2), vr(o + 2 * h, 2), vr(vPp + 4 * n + 2 * h, 2)), None)
                  for h in range(2)]
    else:
        for n in range(3):
            L += [('v_add_f32 %s, %s, %s' % (vr(o + j), vr(o + j), vr(vPp + 4 * n + j)), None) for j in range(4)]
    return L


def base(i, pk=False):
    o = vOwn + 4 * i
    if pk:
        return [('v_pk_fma_f32 %s, %s, %s, %s op_sel_hi:[1,0,0]' % (
            vr(o + 2 * h, 2), vr(o + 2 * h, 2), vr(vOg, 2), vr(vT0, 2)), None) for h in range(2)]
    return [('v_fma_f32 %s, %s, %s, %s' % (vr(o + j), vr(o + j), vr(vOg), vr(vT0)), None) for j in range(4)]


def fin(i, pk=True):
    o, p, y = vOwn + 4 * i, vOp + 2 * (i & 1), vYu + 4 * (i & 1)
    L = [lambda: a.wait_lg(('yt', i))]
    for h in range(2):
        L += [('v_lshlrev_b32 %s, 16, %s' % (vr(y + 2 * h), vr(vYt + 2 * i + h)), None),
              ('v_and_b32 %s, 0xffff0000, %s' % (vr(y + 2 * h + 1), vr(vYt + 2 * i + h)), None)]
    if pk:
        L += [('v_pk_fma_f32 %s, %s, %s, %s' % (
            vr(o + 2 * h, 2), vr(vQg + 4 * i + 2 * h, 2), vr(y + 2 * h, 2), vr(o + 2 * h, 2)), None) for h in range(2)]
    else:
        L += [('v_fmac_f32 %s, %s, %s' % (vr(o + j), vr(vQg + 4 * i + j), vr(y + j)), None) for j in range(4)]
    L += [('v_cvt_pk_bf16_f32 %s, %s, %s' % (vr(p + h), vr(o + 2 * h), vr(o + 2 * h + 1)), None) for h in range(2)]
    L += [('ds_write_b64 %s, %s offset:%d' % (stg(i)[0], vr(p, 2), stg(i)[1]), None)]
    return L


def oread(ms):
    return [('ds_read_b128 %s, %s offset:%d' % (vr(vOl + 4 * m, 4), vr(vXa + 3), STG + 1024 * m), ('or', m)) for m in ms]


def ostore(ms):
    L = []
    for m in ms:
        L += [lambda m=m: a.wait_lg(('or', m)), ('buffer_store_dwordx4 %s, %s, %s, 0 offen %s' % (
            vr(vOl + 4 * m, 4), vr(vOo + m), sr(rO, 4), P['outmod']), 'out')]
    return L


def qprep(pk):
    L = [lambda: a.wait_vm('qe')]
    L += [('ds_read_b64 %s, %s offset:%d' % (vr(vQe + 2 * i, 2), stg(i)[0], stg(i)[1]), ('qr', i)) for i in range(5)]
    if not pk:
        L.append(('delay', 4))
    for i in range(5):
        L.append(lambda i=i: a.wait_lg(('qr', i)))
        for h in range(2):
            L += [('v_lshlrev_b32 %s, 16, %s' % (vr(vQg + 4 * i + 2 * h), vr(vQe + 2 * i + h)), None),
                  ('v_and_b32 %s, 0xffff0000, %s' % (vr(vQg + 4 * i + 2 * h + 1), vr(vQe + 2 * i + h)), None)]
        if pk:
            L += [('v_pk_mul_f32 %s, %s, %s op_sel_hi:[1,0]' % (
                vr(vQg + 4 * i + 2 * h, 2), vr(vQg + 4 * i + 2 * h, 2), vr(vGt, 2)), None) for h in range(2)]
        else:
            L += [('v_mul_f32 %s, %s, %s' % (vr(vQg + 4 * i + j), vr(vGt), vr(vQg + 4 * i + j)), None) for j in range(4)]
    return L


def yflag():
    a(f"""
    s_cmp_eq_u32 s{sWave}, 0
    s_cbranch_scc0 L_noyflag
    """)
    sh = list(a.hist)
    a.cond = True
    flag(sT0, P['fsy'])
    a.cond = False
    a.label('L_noyflag')
    a.hist = sh
    stamp('yflag')


def ywrite():
    return [lambda: a.wait_vm('yl')] + [('ds_write_b128 %s, %s offset:%d' % (
        vr(vXa + 3), vr(vYl + 4 * m, 4), 16384 + 1024 * m), 'xw') for m in range(3)]


def yread():
    return [('ds_read_b64_tr_b16 %s, %s offset:%d' % (
        vr(vYt + 2 * i, 2), vr(vYr), RINGW * ((2 * i) % 4) + 1024 * (i // 2)), ('yt', i)) for i in range(5)]


YC = P['ychk']
EARLY = YC <= 40
QLATE = P['qeat'] + UW >= 52
assert not (EARLY and QLATE)
yq = [('buffer_load_dwordx4 %s, %s, %s, 0 offen sc1' % (vr(vYl + 4 * m, 4), vr(vYa + m), sr(rWS, 4)), 'yl')
      for m in range(3)]
qE = g2.stream()
g2.streams.insert(0, g2.streams.pop())
def g2ready(F):
    st, ks = divmod(F, 12)
    if st == 0:
        g2.flush(qT2, lambda: any(not callable(x) and x[1] == ('tr', 'w2', ks) for x in qT2))
    if ks == 0:
        g2.flush(qE, lambda: any(not callable(x) and x[1] == 'xw' for x in qE))
    a.wait_vm(('u', F))
    if st == 0:
        a.wait_lg(('tr', 'w2', ks))


g2ready(0)
for F in range(60):
    st, ks = divmod(F, 12)
    for n in range(4):
        d = vr(vOwn + 4 * st, 4) if n == 0 else ar(aOth + 12 * (st & 1) + 4 * (n - 1), 4)
        a('v_mfma_f32_16x16x32_bf16 %s, %s, %s, %s' % (
            d, vr(vUw + 4 * (F % UW), 4), ar(areg('w2', ks) + 4 * n, 4), '0' if ks == 0 else d))
        forced = None
        if n == 0 and 1 <= F <= 60 - UW:
            forced = lambda: uload(F - 1 + UW)
        elif n == 2 and F == P['ypoll']:
            forced = lambda: poll_issue(vPo)
        elif n == 2 and F >= P['qeat'] and qeq:
            assert F >= 20
            forced = lambda: emit(qeq.pop(0))
        elif n == 2 and F > YC and yq:
            forced = lambda: emit(yq.pop(0))
        if n == 3 and F < 59:
            g2ready(F + 1)
        g2.gap(forced=forced)
    if F == P['yflag']:
        g2.flush(qM)
        qE += [lambda: a.wait_vm('yst'), ('s_barrier', None), yflag]
    if st > 0 and ks == 1:
        g2.flush(qM)
        if EARLY and st == 4:
            qE += ywrite()
        qE += xwrite(st - 1) + [('delay', 3), lambda: a.wait_lg('xw'), ('s_barrier', None)] + xread(st - 1)
        if EARLY and st == 4:
            qE += yread()
        qE += [('delay', 3)] + xsum(st - 1) + base(st - 1)
        if EARLY and st == 4:
            for i in range(4):
                qE += fin(i, False)
            qE += oread((0, 1)) + [('delay', 4)] + ostore((0, 1))
    if not QLATE and F == max(P['qeat'] + UW + 2, 28):
        qE += qprep(False)
    if F == YC:
        poll_check('L_polly', vPo)
        stamp('ypoll')
g2left = len(qE)
stamp('g2end')
while yq:
    emit(yq.pop(0))
g2.flush(qE, lambda: any(not callable(x) and x[0] == 's_barrier' for x in qE))
for it in xwrite(4):
    emit(it)
g2.flush(qE)
if QLATE:
    for it in qprep(True):
        emit(it)
stamp('tq')
if not EARLY:
    for it in ywrite():
        emit(it)
a('s_waitcnt lgkmcnt(0)')
stamp('ty')
a('s_barrier')
stamp('tb')
L = xread(4)
if not EARLY:
    L = yread() + L
    for i in range(4):
        L += fin(i)
    L += oread((0, 1))
L += xsum(4, True) + base(4, True) + fin(4) + oread((2,))
L += ostore((2,) if EARLY else (0, 1, 2))
for it in L:
    emit(it)
stamp('tst')
a('s_add_u32 %s, s2, %s' % (sr(t2), sr(sWave)))
a('s_cmp_eq_u32 %s, 0' % sr(t2))
a('s_cbranch_scc0 L_noepoch')
flag(t2)
a.label('L_noepoch')
if STAMPS:
    a('s_waitcnt vmcnt(0)')
    nstamp[0] = min(nstamp[0], 15)
    stamp('end')
    a(f'''
    s_lshl_b32 s{sT0}, s2, 2
    s_add_u32 s{sT0}, s{sT0}, s{sWave}
    s_lshl_b32 s{sT0}, s{sT0}, 7
    s_add_u32 s{sT0}, s{sT0}, {WS_ST}
    s_mov_b64 exec, 1
    ''')
    for i in range(nstamp[0]):
        a('v_mov_b32 v10, %s' % sr(sStamp + i))
        a('buffer_store_dword v10, off, %s, %s offset:%d' % (sr(rWS, 4), sr(sT0), 4 * i))
if PROBE:
    a(f'''
    s_cmp_eq_u32 s{sStamp+PROBE[0]}, 0
    s_cselect_b32 s{sT0}, s{sStamp}, s{sStamp+PROBE[0]}
    s_add_u32 s{sT0}, s{sT0}, 6000
    ''')
    a.label('L_probe')
    a(f'''
    s_memrealtime s[100:101]
    s_waitcnt lgkmcnt(0)
    s_sub_u32 s{sT1}, s100, s{sT0}
    s_cmp_lt_i32 s{sT1}, 0
    s_cbranch_scc1 L_probe
    ''')
a.label('L_end')
a('s_endpgm')

hdr = open('cdna_kernels/%s.s.ref' % NAME).read().split('; Override launch')[0]
txt = hdr + f'''; @launch grid=(256,1,1) block=(256,1,1) lds={LDS_BYTES}
; stamps: {' '.join(stamp_names)}
.amdgcn_target "amdgcn-amd-amdhsa--gfx950"
.text
.globl {NAME}_kernel
.p2align 8
.type {NAME}_kernel,@function
{NAME}_kernel:
''' + a.text() + f'''.section .rodata,"a"
.p2align 6
.amdhsa_kernel {NAME}_kernel
  .amdhsa_next_free_vgpr 512
  .amdhsa_next_free_sgpr 102
  .amdhsa_accum_offset 256
  .amdhsa_group_segment_fixed_size 0
  .amdhsa_kernarg_size 120
  .amdhsa_user_sgpr_count 2
  .amdhsa_user_sgpr_kernarg_segment_ptr 1
  .amdhsa_system_sgpr_workgroup_id_x 1
.end_amdhsa_kernel
'''
open(OUT, 'w').write(txt)
print('left: g1', t4left, g1sl, g1left, 'conv', left, 'g2', g2left, ' '.join(log))
print('wrote', OUT, 'lines', len(a.out), 'nops', a.nops, 'stamps', nstamp[0], stamp_names)
```

```python
import sys, struct
from asmlib import Asm, vr, ar, sr

NAME = 'gated_mix__ssm_conv_h3__mixer_token_mlp__prompt'
STAMPS = '--stamps' in sys.argv
OUT = [x for x in sys.argv[1:] if not x.startswith('--')][0]
PROBE = [int(x[8:]) for x in sys.argv if x.startswith('--probe=')]
if PROBE:
    STAMPS = True
P = dict(hrot=0, wrot=0, wrot2=0, urot=0, xrot=0, xrot2=0, arr1=1, arr2=1, outmod='', nost='', dbg='',
         win=10, gat=45, ntail=4, nw=0, pld=52, fsh=5, wstep=2, ewsp=0, w64=1, a2=0, dbl=1, xat=170, xw64=0, mflush=1, urg=8, ccap=12, ffull=1, fsk=5, fsu=6, fsy=5, slp=6, cp0=2, q0=1, pad=-1, bdel=2, rdel=3, bdel2=3, rdel2=3, pmask=1, mst='',
         lead=5, ldsr=6.0, vsp=4, t0=20, tlag=2, tdel=4, ndef=4, uflag=30, pollu=150, ulag=35, uw=14,
         yflag=10, ypoll=44, ychk=55, qeat=46,
         wscript='D0 KL K2L VL GW D1 SSL D2 D3 ML T0 T1 D4 D5 D6', t4rate=99,
         script='Q CP D0 SA W:KL R:8 LN SB HF R:12 GATE KC K2C R:8 SL ST HP AD BU T4 D7 T5')
for x in sys.argv:
    if x.startswith('--p:'):
        k, v = x[4:].split('=')
        assert k in P, k
        P[k] = type(P[k])(v)
assert (3 * P['urot'] >> 4) <= 12 and P['arr2'] == 1 and (7 * P['xrot2'] >> 1) <= 12
f2u = lambda x: struct.unpack('<I', struct.pack('<f', x))[0]

WS_EPOCH = 0
WS_DUMMY = 0x800
WS_FKV = 0x1000
WS_FY = 0x9000
WS_FU = 0x9A0000
WS_G = 0x18000
WS_ST = 0x20000
WS_HT8 = 0x40000
WS_KV = 0x2C0000
WS_UF = 0x540000
WS_YT = 0x720000
WS_PX = 0x9C0000
WS_FH = 0xD80000
WS_END = 0xDA0000
OOB = 0x7ff00000
RINGW = 24576
L_T4 = 98304
T4SZ = 16512
L_X = 147840
XSZ = 4608
L_LN = L_X
LNROW = 1344
LDS_BYTES = 163840
SPIN_MAX = 200000

sQ, sK, sV, sSK, sHK, sD, sW1, sB1, sW2, sB2, sGW, sOUT, sWS = 4, 6, 8, 10, 12, 14, 18, 20, 22, 24, 26, 28, 30
rWS, rW, rK, rH = 32, 36, 40, 44
sN = 48
sWave, sR, sDT, sFT, sDT2, sST2, sP0, sNCH, sRot, sRing = 50, 51, 52, 53, 54, 55, 56, 57, 58, 59
sKS = 60
sT0, sT1, sSpin = 16, 17, 3
sWoff = 76
sAct = 77
sStamp = 78
sOOB = 94
sRot2 = 95
sx, sj, t2, t3 = 96, 97, 98, 99
sFU, sC40, sChE, sChM = 6, 7, 12, 13
sW2o = [8, 9, 10, 11, 14, 15, 18, 19, 20, 21, 26, 27]
sUo = [40, 41, 42, 43, 44, 45, 46, 47, 0, 1, 30, 31]

a = Asm()
nstamp = [0]
stamp_names = []


def stamp(name):
    only = [x[7:].split(',') for x in sys.argv if x.startswith('--only=')]
    if STAMPS and name not in P['nost'].split(',') and (not only or name in only[0]):
        i = nstamp[0]
        nstamp[0] += 1
        stamp_names.append(name)
        assert i < 16
        a.atomic = True
        a('s_memtime s[100:101]' if '--cyc' in sys.argv else 's_memrealtime s[100:101]')
        a('s_waitcnt lgkmcnt(0)')
        a.atomic = False
        a('s_mov_b32 %s, s100' % sr(sStamp + i))


vLane, vG, vU, vN = 1, 2, 3, 4
vT = 6
vWo = 16
vTr = 20
vHo = 24
vB1 = 28
vPoll = 36
vPo = 38
vXa = 40
vMisc = 44
vAe, vBe, vAm, vBm = 52, 53, 54, 55
vA8 = dict(e=[52, 24, 44, 25, 45, 26, 46, 27], m=[54, 63, 57, 13, 59, 50, 61, 51])
vADe, vADm = 56, 60
t0, t1, t4 = vT + 4, vT + 5, vT + 6
vTr2, vWo2 = 248, 252


def poll_issue(voff):
    a('buffer_load_dwordx2 %s, %s, %s, 0 offen sc1' % (vr(vPoll, 2), vr(voff), sr(rWS, 4)), tag='poll')


def poll_check(name, voff):
    a.wait_vm('poll')
    a('v_cmp_ne_u64 vcc, %s, %s' % (sr(sN, 2), vr(vPoll, 2)))
    a('s_cbranch_vccz %s_ok' % name)
    save, sh = list(a.vm), list(a.hist)
    a('s_mov_b32 %s, 0' % sr(sSpin))
    a.label(name)
    if P['pmask']:
        a('s_mov_b64 exec, vcc')
    if P['slp']:
        a('s_sleep %d' % P['slp'])
    a('buffer_load_dwordx2 %s, %s, %s, 0 offen sc1' % (vr(vPoll, 2), vr(voff), sr(rWS, 4)))
    a('s_waitcnt vmcnt(0)')
    a('v_cmp_ne_u64 vcc, %s, %s' % (sr(sN, 2), vr(vPoll, 2)))
    a('s_add_u32 %s, %s, 1' % (sr(sSpin), sr(sSpin)))
    a('s_cbranch_vccz %s_out' % name)
    a('s_cmp_lt_u32 %s, %d' % (sr(sSpin), SPIN_MAX))
    a('s_cbranch_scc1 %s' % name)
    a.label(name + '_out')
    a('s_mov_b64 exec, -1')
    a.label(name + '_ok')
    a.vm, a.hist = save, sh


vL8 = 47


def flag(soff, lg=3):
    a('s_mov_b64 exec, %d' % ((1 << (1 << (lg - 3))) - 1 if P['ffull'] else 1))
    a('buffer_store_dwordx2 %s, %s, %s, %s offen sc1' % (vr(vN, 2), vr(vL8), sr(rWS, 4), sr(soff)), tag='flag')
    a('s_mov_b64 exec, -1')


def dma_list(which, ks, slot):
    L = []
    if which == 'w1':
        L += [f's_add_u32 s{sWoff}, s{sRot}, {ks}', f's_and_b32 s{sWoff}, s{sWoff}, 7',
              f's_mul_i32 s{sWoff}, s{sWoff}, {32*3072}']
    L.append('s_add_u32 m0, %s, %d' % (sr(sRing), slot * 4096))
    L = [(x, None) for x in L]
    for jj in range(4):
        L.append(('buffer_load_dwordx4 %s, %s, %s offen offset:%d lds' % (
            vr((vWo if which == 'w1' else vWo2) + jj), sr(rW, 4), sr(sWoff if which == 'w1' else sW2o[ks]), 1024 * jj), (which, ks)))
    return L


def D(which, ks, slot):
    for x, t in dma_list(which, ks, slot):
        a(x, tag=t)


def areg(which, ks):
    return 16 * ks if which == 'w1' else (128 + 16 * ks) % 256


def tr_list(which, ks, slot):
    hs = 512 if which == 'w1' else 2048
    return [('ds_read_b64_tr_b16 %s, %s offset:%d' % (
        ar(areg(which, ks) + 4 * n + 2 * hh, 2), vr((vTr if which == 'w1' else vTr2) + n), slot * 4096 + hh * hs), ('tr', which, ks))
        for n in range(4) for hh in range(2)]


def T(which, ks, slot):
    a.wait_vm((which, ks))
    for x, t in tr_list(which, ks, slot):
        a(x, tag=t)


def reduce32(v, tmp):
    for r in (8, 4, 2, 1):
        a('v_add_f32 %s, %s, %s row_ror:%d' % (vr(v), vr(v), vr(v), r))
    a('v_mov_b32 %s, %s' % (vr(tmp), vr(v)))
    a('v_permlane16_swap_b32 %s, %s' % (vr(v), vr(tmp)))
    a('v_add_f32 %s, %s, %s' % (vr(v), vr(v), vr(tmp)))


def chan_of(dst, pos):
    a(f'''
    s_cmp_ge_u32 s{pos}, 320
    s_cselect_b32 s{t3}, 639, 0
    s_lshl_b32 s{dst}, s{pos}, 1
    s_sub_u32 s{dst}, s{dst}, s{t3}
    ''')


if STAMPS:
    a('s_memtime s[100:101]' if '--cyc' in sys.argv else 's_memrealtime s[100:101]')
a('s_load_dwordx16 s[4:19], s[0:1], 0')
a('s_cmp_ge_u32 s2, 256')
a('s_cbranch_scc1 L_end')
a('s_load_dwordx8 s[20:27], s[0:1], 64')
a('s_load_dwordx2 s[28:29], s[0:1], 96')
a('s_load_dwordx2 s[30:31], s[0:1], 112')
vQo, vQo2, vL5, vRow = vT, vT + 1, vT + 2, vT + 3
vQ = 64


def code_prefetch():
    a.raw('    s_getpc_b64 s[48:49]')
    a.label('L_pc')
    a(f"""
    v_lshrrev_b32 v{t0}, 4, v0
    v_and_or_b32 v{t0}, v0, 3, v{t0}
    v_lshl_add_u32 v{t0}, s{sj}, 4, v{t0}
    v_lshlrev_b32 v{t0}, 6, v{t0}
    v_min_u32 v{t0}, L_end-L_pc, v{t0}
    s_mov_b64 exec, 15
    global_load_dword v207, v{t0}, s[48:49]
    s_mov_b64 exec, -1
    """)


def q_loads():
    a('s_waitcnt lgkmcnt(0)')
    a('global_load_dwordx4 %s, %s, %s' % (vr(vQ, 4), vr(vQo), sr(sQ, 2)), tag='q')
    a('global_load_dwordx4 %s, %s, %s offset:512' % (vr(vQ + 4, 4), vr(vQo), sr(sQ, 2)), tag='q')
    a('global_load_dwordx2 %s, %s, %s offset:1024' % (vr(vQ + 8, 2), vr(vQo2), sr(sQ, 2)), tag='q')


a(f's_lshr_b32 s{sj}, s2, 3')
if P['cp0'] == 1:
    code_prefetch()
a(f"""
s_and_b32 s{sx}, s2, 7
s_lshl_b32 s{sR}, s{sx}, 5
s_add_u32 s{sR}, s{sR}, s{sj}
v_and_b32 v{vL5}, 31, v0
v_lshrrev_b32 v{vRow}, 5, v0
v_lshl_add_u32 v{vQo2}, s{sR}, 3, v{vRow}
v_mul_u32_u24 v{vQo2}, 1280, v{vQo2}
v_lshl_add_u32 v{vQo}, v{vL5}, 4, v{vQo2}
v_lshl_add_u32 v{vQo2}, v{vL5}, 3, v{vQo2}
""")
if P['q0']:
    q_loads()
if P['cp0'] == 2:
    code_prefetch()
a('v_lshrrev_b32 %s, 6, v0' % vr(t0))
a('v_and_b32 %s, 63, v0' % vr(vLane))
a('v_readfirstlane_b32 %s, %s' % (sr(sWave), vr(t0)))
a('v_lshrrev_b32 %s, 4, %s' % (vr(vG), vr(vLane)))
a('v_and_b32 %s, 15, %s' % (vr(vU), vr(vLane)))
sKW = 3
a(f"""
s_mul_i32 s{t2}, s{sj}, 52
s_lshr_b32 s{t2}, s{t2}, 8
s_mul_i32 s{t3}, s{t2}, 5
s_sub_u32 s{sDT}, s{sj}, s{t3}
""")
if P['wrot']:
    a(f"""
    s_add_u32 s{sRot}, s{sDT}, s{sWave}
    s_cmp_ge_u32 s{sRot}, 5
    s_cselect_b32 s{t3}, 5, 0
    s_sub_u32 s{sRot}, s{sRot}, s{t3}
    s_mul_i32 s{sRot}, s{sRot}, 13
    """)
else:
    a(f's_mul_i32 s{sRot}, s{sDT}, 13')
a(f"""
s_lshr_b32 s{sRot}, s{sRot}, 3
s_and_b32 s{t3}, s{sx}, 1
s_lshl1_add_u32 s{sDT}, s{sDT}, s{t3}
s_lshl2_add_u32 s{sKW}, s{t3}, s{sWave}
s_lshr_b32 s{t3}, s{sx}, 1
s_mul_i32 s{sFT}, s{t3}, 6
s_add_u32 s{sFT}, s{sFT}, s{t2}
""")
a(f"""
s_cmp_lt_u32 s{sj}, 30
s_cselect_b32 s{sAct}, 1, 0
s_mul_i32 s{sRing}, s{sWave}, {RINGW}
""")
if P['hrot']:
    a(f"""
    s_mul_i32 s{t2}, s{t2}, {P['hrot']}
    s_lshr_b32 s{t2}, s{t2}, 4
    s_add_u32 s{sRot}, s{sRot}, s{t2}
    """)
if P['xrot']:
    a(f"""
    s_lshr_b32 s{t2}, s{sx}, 1
    s_mul_i32 s{t2}, s{t2}, {P['xrot']}
    s_add_u32 s{sRot}, s{sRot}, s{t2}
    """)
a(f"""
v_lshrrev_b32 v{t0}, 3, v{vLane}
v_mul_u32_u24 v{t0}, 3072, v{t0}
s_mul_i32 s{t2}, s{sKW}, {256*3072}
s_lshl_b32 s{t3}, s{sFT}, 7
s_add_u32 s{t2}, s{t2}, s{t3}
v_add_u32 v{t0}, s{t2}, v{t0}
v_and_b32 v{t1}, 7, v{vLane}
v_and_b32 v{t4}, 1, v{vG}
v_lshlrev_b32 v{t4}, 1, v{t4}
v_xor_b32 v{t1}, v{t1}, v{t4}
v_xor_b32 v{t4}, 4, v{t1}
v_lshl_add_u32 v{vWo}, v{t1}, 4, v{t0}
v_lshl_add_u32 v{vWo+1}, v{t4}, 4, v{t0}
v_add_u32 v{vWo+2}, {2*(24576-1024)}, v{vWo}
v_add_u32 v{vWo+3}, {3*(24576-1024)}, v{vWo+1}
v_add_u32 v{vWo+1}, {24576-1024}, v{vWo+1}
""")
vX = 76
vGWp = 96
vHp = vHt = 108
vKV1, vKV2 = 120, 144
vSS, vSN, vSNew, vK2a = 168, 192, 196, 156
vGa, vGa2, vGs = 236, 237, 238
vK2t, vSa, vSna, vMla, vT4a = 160, 161, 164, 204, 240
vBf = 208
sCh = [96, 97]
vLw, vLw2, vLr, vHs, vHs1, vHs2 = vMisc, vMisc + 1, vMisc + 2, vMisc + 3, vMisc + 4, vMisc + 5
vKo, vKo4, vKoh, vTo, vKs = 240, 241, 242, 243, 234
vDe, vDm = 246, 247
vXg, vXw, vPkv, vUo = vMisc, vMisc + 1, vMisc + 2, vMisc + 4
vUst = 245
vPs, vPr = 243, 244
vPu = 39
vEr, vYe, vYm, vMw, vMr = 6, 8, 9, 14, 15
vXl = 224
step = {}


def script_step(name):
    def deco(f):
        step[name] = f
        return f
    return deco


@script_step('Q')
def _():
    if not P['q0']:
        q_loads()
    if P['cp0'] == 0:
        code_prefetch()
    if STAMPS:
        nstamp[0] += 1
        stamp_names.append('start')
        a('s_mov_b32 %s, s100' % sr(sStamp))
    a(f"""
    s_load_dwordx2 s[{sN}:{sN+1}], s[{sWS}:{sWS+1}], {WS_EPOCH}
    s_mov_b32 s{rW}, s{sW1}
    s_and_b32 s{rW+1}, s{sW1+1}, 0xffff
    s_mul_i32 s{rW+2}, s{sAct}, {2048*3072}
    s_mov_b32 s{rW+3}, 0x20000
    """)


@script_step('SA')
def _():
    if P['arr2'] == 2:
        a(f"""
        s_and_b32 s{t3}, s{sx}, 1
        s_lshl_b32 s{sDT2}, s{t3}, 2
        s_lshl_b32 s{sRot2}, s{t3}, 1
        s_lshr_b32 s{t3}, s{sx}, 1
        s_lshl_b32 s{sST2}, s{t3}, 3
        s_lshr_b32 s{t2}, s{sj}, 2
        s_add_u32 s{sST2}, s{sST2}, s{t2}
        s_and_b32 s{t3}, s{sj}, 3
        s_add_u32 s{sDT2}, s{sDT2}, s{t3}
        s_mul_i32 s{t3}, s{t3}, 3
        s_add_u32 s{sRot2}, s{sRot2}, s{t3}
        """)
    else:
        a(f"""
        s_and_b32 s{sDT2}, s{sj}, 7
        s_lshr_b32 s{t2}, s{sj}, 3
        s_lshl2_add_u32 s{sST2}, s{sx}, s{t2}
        s_mul_i32 s{t3}, s{sWave}, {P['wrot2']}
        s_add_u32 s{sRot2}, s{sDT2}, s{t3}
        s_and_b32 s{sRot2}, s{sRot2}, 7
        s_mul_i32 s{sRot2}, s{sRot2}, 3
        s_lshr_b32 s{sRot2}, s{sRot2}, 1
        """)
    if P['urot']:
        a(f"""
        s_mul_i32 s{t2}, s{t2}, {P['urot']}
        s_lshr_b32 s{t2}, s{t2}, 4
        s_add_u32 s{sRot2}, s{sRot2}, s{t2}
        s_cmp_ge_u32 s{sRot2}, 12
        s_cselect_b32 s{t3}, 12, 0
        s_sub_u32 s{sRot2}, s{sRot2}, s{t3}
        """)
    if P['xrot2']:
        a(f"""
        s_lshr_b32 s{t2}, s{sx}, {P['arr2']-1}
        s_mul_i32 s{t2}, s{t2}, {P['xrot2']}
        s_lshr_b32 s{t2}, s{t2}, 1
        s_add_u32 s{sRot2}, s{sRot2}, s{t2}
        s_cmp_ge_u32 s{sRot2}, 12
        s_cselect_b32 s{t3}, 12, 0
        s_sub_u32 s{sRot2}, s{sRot2}, s{t3}
        """)
    a(f"""
    s_mul_i32 s{sP0}, s{sx}, 80
    s_lshr_b32 s{t3}, s{sj}, 1
    s_mul_i32 s{t3}, s{t3}, 5
    s_add_u32 s{sP0}, s{sP0}, s{t3}
    s_and_b32 s{t3}, s{sj}, 1
    s_sub_u32 s{sNCH}, 3, s{t3}
    s_mul_i32 s{t3}, s{t3}, 3
    s_add_u32 s{sP0}, s{sP0}, s{t3}
    s_mov_b32 s{sOOB}, {OOB}
    s_mov_b32 s{rWS}, s{sWS}
    s_and_b32 s{rWS+1}, s{sWS+1}, 0xffff
    s_mov_b32 s{rWS+2}, {WS_END}
    s_mov_b32 s{rWS+3}, 0x20000
    s_mov_b32 s{rK}, s{sK}
    s_and_b32 s{rK+1}, s{sK+1}, 0xffff
    s_mov_b32 s{rK+2}, {2048*1280}
    s_mov_b32 s{rK+3}, 0x20000
    s_mov_b32 s{rH}, s{sHK}
    s_and_b32 s{rH+1}, s{sHK+1}, 0xffff
    s_mov_b32 s{rH+2}, {640*4096}
    s_mov_b32 s{rH+3}, 0x20000
    """)
    chan_of(sCh[0], sP0)
    a(f"""
    s_add_u32 s{t2}, s{sP0}, s{sNCH}
    s_sub_u32 s{t2}, s{t2}, 1
    """)
    chan_of(sChE, t2)
    a(f"""
    s_lshr_b32 s{t2}, s{sWave}, 1
    s_add_u32 s{t2}, s{t2}, s{sP0}
    """)
    chan_of(sChM, t2)
    a(f"""
    s_mov_b32 s{sC40}, 40960
    v_lshrrev_b32 v{t0}, 2, v{vU}
    v_lshl_add_u32 v{t0}, v{vG}, 3, v{t0}
    v_lshlrev_b32 v{t0}, 7, v{t0}
    v_and_b32 v{t1}, 3, v{vU}
    v_lshl_add_u32 v{t0}, v{t1}, 3, v{t0}
    v_add_u32 v{t0}, s{sRing}, v{t0}
    v_lshrrev_b32 v{t1}, 3, v{vU}
    v_and_b32 v{t4}, 1, v{vG}
    v_lshl_add_u32 v{t1}, v{t4}, 1, v{t1}
    """)
    for n in range(4):
        a(f"""
        v_xor_b32 v{t4}, {n}, v{t1}
        v_lshl_add_u32 v{vTr+n}, v{t4}, 5, v{t0}
        """)
    a(f"""
    v_mul_u32_u24 v{vLw2}, {LNROW}, v{vRow}
    v_add_u32 v{vLw2}, {L_LN}, v{vLw2}
    v_lshl_add_u32 v{vLw}, v{vL5}, 4, v{vLw2}
    v_lshl_add_u32 v{vLw2}, v{vL5}, 3, v{vLw2}
    v_lshrrev_b32 v{t0}, 2, v{vU}
    v_mul_u32_u24 v{t0}, {LNROW}, v{t0}
    v_and_b32 v{t1}, 3, v{vU}
    v_lshl_add_u32 v{t0}, v{t1}, 3, v{t0}
    v_lshl_add_u32 v{t0}, v{vG}, 5, v{t0}
    s_lshl_b32 s{t2}, s{sWave}, 7
    s_add_u32 s{t2}, s{t2}, {L_LN}
    v_add_u32 v{vLr}, s{t2}, v{t0}
    s_mul_i32 s{t3}, s{sR}, 10240
    s_add_u32 s{t2}, s{t3}, {WS_HT8}
    v_lshl_add_u32 v{vHs}, v0, 4, s{t2}
    v_add_u32 v{vHs1}, 4096, v{vHs}
    s_cmp_lt_u32 s{sWave}, 2
    s_cselect_b32 s{t2}, 8192, s{sOOB}
    v_add_u32 v{vHs2}, s{t2}, v{vHs}
    v_lshl_add_u32 v{vKo}, v0, 2, s{t3}
    v_add_u32 v{vKo4}, 5120, v{vKo}
    v_subrev_u32 v{vKoh}, 3840, v{vKo}
    v_lshlrev_b32 v{vTo}, 4, v0
    v_add_u32 v{vKs}, {WS_KV-WS_HT8}, v{vHs}
    v_add_u32 v{vKs+1}, 5120, v{vKs}
    v_lshlrev_b32 v{vGa}, 4, v{vL5}
    v_lshlrev_b32 v{vGa2}, 3, v{vL5}
    s_lshl_b32 s{t2}, s{sR}, 5
    s_add_u32 s{t2}, s{t2}, {WS_G}
    v_lshl_add_u32 v{vGs}, v{vRow}, 2, s{t2}
    v_mul_u32_u24 v{t0}, 2560, v{vG}
    s_lshl_b32 s{t2}, s{sWave}, 6
    v_lshl_add_u32 v{t1}, v{vU}, 2, s{t2}
    s_add_u32 s{t3}, s{t3}, {1024+3840}
    v_sub_u32 v{t0}, v{t1}, v{t0}
    v_add_u32 v{vK2a}, s{t3}, v{t0}
    v_lshlrev_b32 v{t1}, 2, v{t1}
    v_add_u32 v{vK2t}, 4096, v{t1}
    v_add_u32 v{vK2a+1}, 1280, v{vK2a}
    v_add_u32 v{vK2a+2}, 2560, v{vK2a}
    v_add_u32 v{vK2a+3}, 3840, v{vK2a}
    s_lshl_b32 s{t2}, s{sWave}, 10
    v_lshl_add_u32 v{t0}, v{vLane}, 3, s{t2}
    v_lshl_add_u32 v{vSa}, s{sCh[0]}, 12, v{t0}
    v_add_u32 v{vSa+1}, 8192, v{vSa}
    v_lshl_add_u32 v{vSa+2}, s{sChE}, 12, v{t0}
    s_lshl1_add_u32 s{t2}, s{sWave}, s{sCh[0]}
    s_min_u32 s{t2}, s{t2}, s{sChE}
    s_lshl_b32 s{t2}, s{t2}, 12
    """)
    for jj in range(3):
        a(f"""
        v_subrev_u32 v{t0}, {8-jj}, v{vLane}
        v_lshl_add_u32 v{t1}, v{t0}, 2, s{t2}
        v_and_or_b32 v{vSna+jj}, v{t0}, s{sOOB}, v{t1}
        """)
    a(f"""
    v_lshrrev_b32 v{t0}, 2, v{vLane}
    v_lshl_add_u32 v{t0}, v{t0}, 1, s{sCh[0]}
    v_min_u32 v{t0}, s{sChE}, v{t0}
    v_lshlrev_b32 v{vMla}, 1, v{t0}
    v_lshlrev_b32 v{vMla+1}, 12, v{t0}
    s_min_u32 s{t2}, s{sFT}, 23
    s_lshl_b32 s{t2}, s{t2}, 7
    v_lshl_add_u32 v{vMla+2}, v{vG}, 3, s{t2}
    """)


step['CP'] = lambda: None


@script_step('LN')
def _():
    a.wait_vm('q')
    stamp('q')
    for i in range(10):
        a('v_lshlrev_b32 %s, 16, %s' % (vr(vX + 2 * i), vr(vQ + i)))
        a('v_and_b32 %s, 0xffff0000, %s' % (vr(vX + 2 * i + 1), vr(vQ + i)))
    vS = vT + 4
    a('v_pk_add_f32 %s, %s, %s' % (vr(vS, 2), vr(vX, 2), vr(vX + 2, 2)))
    a('v_pk_add_f32 %s, %s, %s' % (vr(vS + 2, 2), vr(vX + 4, 2), vr(vX + 6, 2)))
    for i in range(4, 10):
        d = vS + 2 * (i & 1)
        a('v_pk_add_f32 %s, %s, %s' % (vr(d, 2), vr(d, 2), vr(vX + 2 * i, 2)))
    a('v_pk_add_f32 %s, %s, %s' % (vr(vS, 2), vr(vS, 2), vr(vS + 2, 2)))
    a('v_add_f32 %s, %s, %s' % (vr(vS), vr(vS), vr(vS + 1)))
    reduce32(vS, vS + 1)
    a('v_mul_f32 %s, 0x%08x, %s' % (vr(vS), f2u(-1.0 / 640), vr(vS)))
    for i in range(10):
        a('v_pk_add_f32 %s, %s, %s op_sel_hi:[1,0]' % (vr(vX + 2 * i, 2), vr(vX + 2 * i, 2), vr(vS, 2)))
    a('v_pk_mul_f32 %s, %s, %s' % (vr(vS, 2), vr(vX, 2), vr(vX, 2)))
    a('v_pk_mul_f32 %s, %s, %s' % (vr(vS + 2, 2), vr(vX + 2, 2), vr(vX + 2, 2)))
    for i in range(2, 10):
        d = vS + 2 * (i & 1)
        a('v_pk_fma_f32 %s, %s, %s, %s' % (vr(d, 2), vr(vX + 2 * i, 2), vr(vX + 2 * i, 2), vr(d, 2)))
    a('v_pk_add_f32 %s, %s, %s' % (vr(vS, 2), vr(vS, 2), vr(vS + 2, 2)))
    a('v_add_f32 %s, %s, %s' % (vr(vS), vr(vS), vr(vS + 1)))
    reduce32(vS, vS + 1)
    a('v_mov_b32 %s, 0x%08x' % (vr(vS + 1), f2u(1e-5)))
    a('v_fmac_f32 %s, 0x%08x, %s' % (vr(vS + 1), f2u(1.0 / 640), vr(vS)))
    a('v_rsq_f32 %s, %s' % (vr(vS), vr(vS + 1)))
    for i in range(10):
        a('v_pk_mul_f32 %s, %s, %s op_sel_hi:[1,0]' % (vr(vX + 2 * i, 2), vr(vX + 2 * i, 2), vr(vS, 2)))
    for i in range(10):
        a('v_cvt_pk_bf16_f32 %s, %s, %s' % (vr(vHp + i), vr(vX + 2 * i), vr(vX + 2 * i + 1)))
    a('ds_write_b128 %s, %s' % (vr(vLw), vr(vHp, 4)))
    a('ds_write_b128 %s, %s offset:512' % (vr(vLw), vr(vHp + 4, 4)))
    a('ds_write_b64 %s, %s offset:1024' % (vr(vLw2), vr(vHp + 8, 2)))
    a('s_waitcnt lgkmcnt(0)')
    a('s_barrier')
    for m in range(3):
        for hh in range(2):
            a('ds_read_b64_tr_b16 %s, %s offset:%d' % (
                vr(vHt + 4 * m + 2 * hh, 2), vr(vLr), 512 * m + 4 * LNROW * hh), tag=('ht', m))
    a(f"""
    s_add_u32 s{sN}, s{sN}, 0x9e3779b1
    s_add_u32 s{sN+1}, s{sN+1}, 0x85ebca77
    v_mov_b32 v{vN}, s{sN}
    v_mov_b32 v{vN+1}, s{sN+1}
    """)
    for m, vo in enumerate((vHs, vHs1, vHs2)):
        a.wait_lg(('ht', m))
        a('buffer_store_dwordx4 %s, %s, %s, 0 offen sc1' % (vr(vHt + 4 * m, 4), vr(vo), sr(rWS, 4)), tag='hst')
    stamp('hst')


small = {}
small['GW'] = [('global_load_dwordx4 %s, %s, %s' % (vr(vGWp, 4), vr(vGa), sr(sGW, 2)), 'gw'),
               ('global_load_dwordx4 %s, %s, %s offset:512' % (vr(vGWp + 4, 4), vr(vGa), sr(sGW, 2)), 'gw'),
               ('global_load_dwordx2 %s, %s, %s offset:1024' % (vr(vGWp + 8, 2), vr(vGa2), sr(sGW, 2)), 'gw')]
small['KL'] = []
for r in list(range(3, 11)) + [0, 1, 2]:
    vo, off = ((vKoh, 1280 * r) if r < 3 else (vKo, 1280 * (r - 3)) if r < 7 else (vKo4, 1280 * (r - 7)))
    small['KL'].append(('buffer_load_dword %s, %s, %s, 0 offen offset:%d' % (
        vr(vKV1 + 4 + r), vr(vo), sr(rK, 4), off), 'kv1'))
small['KL'].append(('global_load_dwordx4 %s, %s, %s' % (vr(vKV1, 4), vr(vTo), sr(sSK, 2)), 'kv1'))
small['VL'] = []
for r in range(8):
    vo, off = ((vKo, 1280 * r) if r < 4 else (vKo4, 1280 * (r - 4)))
    small['VL'].append(('global_load_dword %s, %s, %s offset:%d' % (vr(vKV1 + 15 + r), vr(vo), sr(sV, 2), off), 'kv1'))
small['K2L'] = [('buffer_load_dword %s, %s, %s, 0 offen offset:%d' % (
    vr(vKV2 + 4 + m), vr(vK2a + min(m, 3)), sr(rK, 4), 1280 if m == 4 else 0), 'kv2') for m in range(5)]
small['K2L'] += [('global_load_dword %s, %s, %s offset:%d' % (
    vr(vKV2 + 9 + m), vr(vK2a + 3), sr(sV, 2), 1280 * m), 'kv2') for m in range(2)]
small['K2L'].append(('global_load_dwordx4 %s, %s, %s' % (vr(vKV2, 4), vr(vK2t), sr(sSK, 2)), 'kv2'))
small['SSL'] = [('buffer_load_dwordx4 %s, %s, %s, 0 offen offset:%d' % (
    vr(vSS + 8 * t + 4 * c, 4), vr(vSa + t), sr(rH, 4), 512 * c), 'ss') for t in range(3) for c in range(2)]
small['SSL'] += [('buffer_load_dword %s, %s, %s, 0 offen' % (vr(vSN + jj), vr(vSna + jj), sr(rH, 4)), 'ss')
                 for jj in range(3)]
small['ML'] = [('global_load_ushort %s, %s, %s' % (vr(vDe), vr(vMla), sr(sD, 2)), 'dd'),
               ('buffer_load_ushort %s, %s, %s, 0 offen' % (vr(vDm), vr(vMla + 1), sr(rH, 4)), 'dd')]
small['ML'] += [('global_load_dwordx2 %s, %s, %s offset:%d' % (
    vr(vB1 + 2 * n, 2), vr(vMla + 2), sr(sB1, 2), 32 * n), 'b1') for n in range(4)]

W = []


NW = P['nw']
NSTEP = 8 + NW
wk = lambda i: ('w1', i) if i < 8 else ('w2', i - 8)
done_steps = set()


def w2_desc():
    assert NW == 0 or {'ST', 'SL'} <= done_steps
    a(f"""
    s_mov_b32 s{rW}, s{sW2}
    s_and_b32 s{rW+1}, s{sW2+1}, 0xffff
    s_mov_b32 s{rW+2}, {1536*4096}
    """)


def w_dma(i):
    L = dma_list(*wk(i), i % 6)
    pre = [lambda: a.wait_lg(('tr', *wk(i - 6)))] if i >= 6 else []
    if i == 8:
        pre.append(w2_desc)
    W.append(('D', i, False, pre + L[:-3]))
    for k in range(3):
        W.append(('D', i, k == 2, [L[-3 + k]]))


def w_tr(i):
    L = tr_list(*wk(i), i % 6)
    W.append(('T', i, False, [lambda: a.wait_vm(wk(i))] + L[:4]))
    W.append(('T', i, True, L[4:]))


nd = nt = 0
for tok in P['wscript'].replace('_', ' ').split():
    if tok in small:
        for k, it in enumerate(small[tok]):
            W.append(('W', tok, k == len(small[tok]) - 1, [it]))
    elif tok[0] == 'D':
        assert int(tok[1:]) == nd and nd < nt + 6
        w_dma(nd)
        nd += 1
    else:
        assert int(tok[1:]) == nt and nt < nd
        w_tr(nt)
        nt += 1
while nt < NSTEP:
    w_tr(nt)
    nt += 1
    while nd < NSTEP and nd < nt + 5:
        w_dma(nd)
        nd += 1
T4Q = []
wdone = set()


def w_atom():
    kind, i, fin_, items = W.pop(0)
    was = a.in_hook
    a.in_hook = True
    for it in items:
        emit(it)
    a.in_hook = was
    if fin_:
        wdone.add((kind, i))


def w_until(kind, i):
    n = 0
    while (kind, i) not in wdone:
        w_atom()
        n += 1
        if T4Q and n % 2 == 0 and P['t4rate'] < 99:
            was = a.in_hook
            a.in_hook = True
            t4_piece()
            a.in_hook = was


rate, since = [0], [0, 0]


def w_hook():
    since[0] += 1
    if rate[0] and since[0] >= rate[0] and W and not (W[0][:2] == ('D', 8) and 'ST' not in done_steps):
        since[0] = 0
        w_atom()
    since[1] += 1
    if T4Q and since[1] >= P['t4rate']:
        since[1] = 0
        t4_piece()


@script_step('HF')
def _():
    a(f"""
    v_lshlrev_b32 v{vL8}, 3, v{vLane}
    s_lshl_b32 s{t2}, s{sWave}, 8
    s_add_u32 s{t2}, s{t2}, s{sR}
    s_lshl_b32 s{t2}, s{t2}, {P['fsh']}
    s_add_u32 s{t2}, s{t2}, {WS_FH}
    """)
    a.wait_vm('hst')
    flag(t2, P['fsh'])
    stamp('hflag')


@script_step('GATE')
def _():
    w_until('W', 'GW')
    a.wait_vm('gw')
    vZ = vT + 4
    a('v_mov_b32 %s, 0' % vr(vZ))
    for i in range(10):
        a('v_dot2_f32_bf16 %s, %s, %s, %s' % (vr(vZ), vr(vQ + i), vr(vGWp + i), vr(vZ)))
    reduce32(vZ, vZ + 1)
    a(f"""
    v_mul_f32 v{vZ}, 0xbfb8aa3b, v{vZ}
    v_exp_f32 v{vZ}, v{vZ}
    v_add_f32 v{vZ}, 1.0, v{vZ}
    v_rcp_f32 v{vZ}, v{vZ}
    s_mov_b32 exec_lo, 1
    s_mov_b32 exec_hi, 1
    """)
    a('buffer_store_dword %s, %s, %s, 0 offen sc1' % (vr(vZ), vr(vGs), sr(rWS, 4)), tag='kvst')
    a('s_mov_b64 exec, -1')


vP, vKu, vAcc, vVt, vKp = 64, 72, 94, 110, 112


def kv_compute(b):
    for c in range(2):
        for h in range(2):
            a('v_lshlrev_b32 %s, 16, %s' % (vr(vP + 4 * h + c), vr(b + 2 * c + h)))
            a('v_and_b32 %s, 0xffff0000, %s' % (vr(vP + 4 * h + 2 + c), vr(b + 2 * c + h)))
    for r in range(11):
        a('v_lshlrev_b32 %s, 16, %s' % (vr(vKu + 2 * r), vr(b + 4 + r)))
        a('v_and_b32 %s, 0xffff0000, %s' % (vr(vKu + 2 * r + 1), vr(b + 4 + r)))
    for r in range(8):
        d = vr(vAcc + 2 * r, 2)
        a('v_pk_mul_f32 %s, %s, %s' % (d, vr(vP + 6, 2), vr(vKu + 2 * r, 2)))
        a('v_lshlrev_b32 %s, 16, %s' % (vr(vVt), vr(b + 15 + r)))
        for j in (2, 1, 0):
            a('v_pk_fma_f32 %s, %s, %s, %s' % (d, vr(vP + 2 * j, 2), vr(vKu + 2 * (r + 3 - j), 2), d))
        a('v_and_b32 %s, 0xffff0000, %s' % (vr(vVt + 1), vr(b + 15 + r)))
        a('v_pk_mul_f32 %s, %s, %s' % (d, d, vr(vVt, 2)))
    for c in range(2):
        for j in range(4):
            a('v_cvt_pk_bf16_f32 %s, %s, %s' % (
                vr(vKp + 4 * c + j), vr(vAcc + 2 * (7 - 2 * j) + c), vr(vAcc + 2 * (6 - 2 * j) + c)))
    a('buffer_store_dwordx4 %s, %s, %s, 0 offen sc1' % (vr(vKp, 4), vr(vKs), sr(rWS, 4)), tag='kvst')
    a('buffer_store_dwordx4 %s, %s, %s, 0 offen sc1' % (vr(vKp + 4, 4), vr(vKs + 1), sr(rWS, 4)), tag='kvst')


@script_step('KC')
def _():
    w_until('W', 'KL')
    w_until('W', 'VL')
    a.wait_vm('kv1')
    kv_compute(vKV1)


@script_step('K2C')
def _():
    b = vKV2
    w_until('W', 'K2L')
    a.wait_vm('kv2')
    for c in range(2):
        for h in range(2):
            a('v_lshlrev_b32 %s, 16, %s' % (vr(vP + 4 * h + c), vr(b + 2 * c + h)))
            a('v_and_b32 %s, 0xffff0000, %s' % (vr(vP + 4 * h + 2 + c), vr(b + 2 * c + h)))
    for r in range(7):
        a('v_lshlrev_b32 %s, 16, %s' % (vr(vKu + 2 * r), vr(b + 4 + r)))
        a('v_and_b32 %s, 0xffff0000, %s' % (vr(vKu + 2 * r + 1), vr(b + 4 + r)))
    for r in range(2):
        d = vr(vAcc + 2 * r, 2)
        a('v_pk_mul_f32 %s, %s, %s' % (d, vr(vP + 6, 2), vr(vKu + 2 * r, 2)))
        for j in (2, 1, 0):
            a('v_pk_fma_f32 %s, %s, %s, %s' % (d, vr(vP + 2 * j, 2), vr(vKu + 2 * (r + 3 - j), 2), d))
        a('v_pk_mul_f32 %s, %s, %s' % (d, d, vr(vKu + 10 + 2 * r, 2)))
    a(f"""
    s_mul_i32 s{t2}, s{sR}, 10240
    s_add_u32 s{t2}, s{t2}, {WS_KV+4096}
    s_lshl_b32 s{t3}, s{sWave}, 8
    s_add_u32 s{t2}, s{t2}, s{t3}
    v_lshl_add_u32 v{t0}, v{vU}, 4, s{t2}
    v_lshl_add_u32 v{t0}, v{vG}, 2, v{t0}
    v_add_u32 v{t1}, 5120, v{t0}
    """)
    for c in range(2):
        a('v_cvt_pk_bf16_f32 %s, %s, %s' % (vr(vAcc + 4 + c), vr(vAcc + 2 + c), vr(vAcc + c)))
        a('buffer_store_dword %s, %s, %s, 0 offen sc1' % (vr(vAcc + 4 + c), vr((t0, t1)[c]), sr(rWS, 4)), tag='kvst')
    stamp('kvst')


@script_step('T4')
def _():
    w_until('W', 'VL')
    w_until('W', 'SSL')
    a(f"""
    s_min_u32 s{t2}, s{sWave}, 2
    s_mul_i32 s{t2}, s{t2}, {T4SZ}
    s_add_u32 s{t2}, s{t2}, {L_T4}
    v_lshl_add_u32 v{vT4a}, v{vLane}, 4, s{t2}
    s_lshl_b32 s{t2}, s{sWave}, 12
    s_add_u32 s{t2}, s{t2}, {L_T4+128}
    v_lshl_add_u32 v{vT4a+1}, v{vLane}, 5, s{t2}
    """)

    al = lambda d, hi, lo: ('v_alignbit_b32 %s, %s, %s, 16' % (vr(d), vr(hi), vr(lo)), None)
    wr = lambda ad, r, off: ('ds_write_b128 %s, %s offset:%d' % (vr(ad), vr(r, 4), off), 't4')
    q = vSN
    T4Q.append([lambda: a.wait_vm('ss'), al(q + 3, q + 2, q + 1), al(q + 2, q + 1, q), wr(vT4a, q, 0)])
    for t in range(3):
        for c in range(2):
            r, n, off = vSS + 8 * t + 4 * c, vSNew + 4 * c, T4SZ * t + 2048 * c
            T4Q.append([('v_mov_b32 %s, %s' % (vr(n), vr(r + 1)), None), ('v_mov_b32 %s, %s' % (vr(n + 1), vr(r + 2)), None),
                        al(n + 3, r + 3, r + 2), al(n + 2, r + 2, r + 1), wr(vT4a + 1, n, off + 16)])
            T4Q.append([al(r + 3, r + 2, r + 1), al(r + 2, r + 1, r), wr(vT4a + 1, r, off)])


def t4_piece():
    for it in T4Q.pop(0):
        emit(it)


@script_step('KF')
def _():
    a.wait_vm('kvst')
    a('s_barrier')
    a(f"""
    s_lshl_b32 s{t2}, s{sR}, {P['fsk']}
    s_add_u32 s{t2}, s{t2}, {WS_FKV}
    s_cmp_eq_u32 s{sWave}, 0
    s_cbranch_scc0 L_nokvflag
    """)
    a.cond = True
    if 'K' not in P['dbg']:
        flag(t2, P['fsk'])
    a.cond = False
    a.label('L_nokvflag')
    stamp('kvflag')
    a(f"""
    s_mul_i32 s{t2}, s{sWave}, {XSZ}
    s_add_u32 s{t2}, s{t2}, {L_X}
    v_lshl_add_u32 v{t0}, v{vLane}, 3, s{t2}
    v_mov_b32 v{t4}, 0
    v_mov_b32 v{t4+1}, 0
    ds_write_b64 v{t0}, v[{t4}:{t4+1}]
    """)


@script_step('SB')
def _():
    assert 'LN' in done_steps
    w_until('W', 'KL')
    a(f's_lshl_b32 s{t3}, s{sDT}, 10')
    for ks in range(8):
        a(f"""
        s_add_u32 s{t2}, s{sRot}, {ks}
        s_and_b32 s{t2}, s{t2}, 7
        s_mul_i32 s{t2}, s{t2}, s{sC40}
        s_add_u32 s{sKS+8+ks}, s{t2}, s{t3}
        s_xor_b32 s{sKS+ks}, s{sKS+8+ks}, 1024
        """)
    a(f"""
    s_lshl_b32 s{t2}, s{sDT}, 2
    s_add_u32 s{t2}, s{t2}, s{sWave}
    s_mul_i32 s{t3}, s{sFT}, 80
    s_add_u32 s{t3}, s{t3}, s{t2}
    s_lshl_b32 s{t3}, s{t3}, 10
    s_add_u32 s{t3}, s{t3}, {WS_UF}
    s_cmp_eq_u32 s{sAct}, 1
    s_cselect_b32 s{t3}, s{t3}, s{sOOB}
    v_lshl_add_u32 v{vUst}, v{vLane}, 4, s{t3}
    s_mul_i32 s{t2}, s{t2}, 24
    s_add_u32 s{t2}, s{t2}, s{sFT}
    s_lshl_b32 s{t3}, s{t2}, 12
    s_add_u32 s{t3}, s{t3}, {WS_PX}
    s_cmp_eq_u32 s{sAct}, 1
    s_cselect_b32 s{t3}, s{t3}, s{sOOB}
    v_lshl_add_u32 v{vPr}, v{vLane}, 4, s{t3}
    s_bitcmp1_b32 s{sDT}, 0
    s_cselect_b32 s{t3}, -1, 1
    s_mul_i32 s{t3}, s{t3}, {96*4096}
    v_add_u32 v{vPs}, s{t3}, v{vPr}
    s_lshl_b32 s{t2}, s{t2}, {P['fsu']}
    s_add_u32 s{t2}, s{t2}, {WS_FU}
    s_cmp_eq_u32 s{sAct}, 1
    s_cselect_b32 s{sFU}, s{t2}, {WS_DUMMY}
    v_lshlrev_b32 v{vPkv}, {P['fsk']}, v0
    v_add_u32 v{vPkv}, {WS_FKV}, v{vPkv}
    s_and_b32 s{t2}, s{sDT}, 2
    s_lshl_b32 s{t2}, s{t2}, 3
    s_add_u32 s{t2}, s{t2}, s{sKW}
    s_lshl_b32 s{t2}, s{t2}, {5+P['fsh']}
    s_add_u32 s{t2}, s{t2}, {WS_FH}
    v_lshrrev_b32 v{t0}, 5, v{vLane}
    v_and_b32 v{t1}, 31, v{vLane}
    v_lshl_add_u32 v{t0}, v{t0}, 8, v{t1}
    v_lshl_add_u32 v{vPo}, v{t0}, {P['fsh']}, s{t2}
    v_mul_u32_u24 v{t0}, 10240, v{vG}
    v_lshl_add_u32 v{t0}, v{vU}, 4, v{t0}
    s_mul_i32 s{t2}, s{sKW}, {32*10240}
    s_add_u32 s{t2}, s{t2}, {WS_HT8}
    s_cmp_eq_u32 s{sAct}, 1
    s_cselect_b32 s{t2}, s{t2}, s{sOOB}
    """)
    for st in range(4):
        a(f"""
        s_add_u32 s{t3}, s{sWave}, {st+1}
        s_and_b32 s{t3}, s{t3}, 3
        s_lshl_b32 s{t3}, s{t3}, 8
        s_add_u32 s{t3}, s{t3}, s{t2}
        v_add_u32 v{vHo+st}, s{t3}, v{t0}
        """)
    a(f'v_lshl_add_u32 v{vXa+3}, v{vLane}, 4, s{sRing}')
    for st in range(3):
        a(f"""
        s_add_u32 s{t3}, s{sWave}, {3-st}
        s_and_b32 s{t3}, s{t3}, 3
        s_mul_i32 s{t3}, s{t3}, {RINGW}
        v_lshl_add_u32 v{vXa+st}, v{vLane}, 4, s{t3}
        """)


step['HP'] = lambda: poll_issue(vPo)


def late_setup():
    L = lines(f"""
    v_lshrrev_b32 v{t0}, 2, v{vLane}
    v_and_b32 v{t1}, 3, v{vLane}
    v_min_u32 v{t1}, 2, v{t1}
    v_mul_u32_u24 v{t4}, 10240, v{t0}
    v_lshl_add_u32 v{t4}, v{t1}, 4, v{t4}
    s_mul_i32 s{t2}, s{sWave}, {64*10240}
    s_lshl_b32 s{t3}, s{sP0}, 4
    s_add_u32 s{t2}, s{t2}, s{t3}
    s_add_u32 s{t2}, s{t2}, {WS_KV}
    v_add_u32 v{t4}, s{t2}, v{t4}
    v_cmp_gt_u32 vcc, s{sNCH}, v{t1}
    v_mov_b32 v{vXg}, s{sOOB}
    v_mul_u32_u24 v{t1}, {XSZ}, v{t1}
    v_cndmask_b32 v{vXg}, v{vXg}, v{t4}, vcc
    v_lshl_add_u32 v{t1}, v{t0}, 4, v{t1}
    s_lshl_b32 s{t2}, s{sWave}, 10
    s_add_u32 s{t2}, s{t2}, {L_X+512}
    v_add_u32 v{vXw}, s{t2}, v{t1}
    v_lshlrev_b32 v{t0}, 7, v{t0}
    v_and_b32 v{t1}, 3, v{vU}
    v_lshl_add_u32 v{t0}, v{t1}, 3, v{t0}
    v_add_u32 v{t0}, s{sRing}, v{t0}
    v_bfe_u32 v{t1}, v{vLane}, 3, 2
    """)
    for n in range(4):
        L += lines(f"""
        s_add_u32 s{t2}, s{sWave}, {n}
        s_and_b32 s{t2}, s{t2}, 3
        v_xor_b32 v{t4}, s{t2}, v{t1}
        v_lshl_add_u32 v{vTr2+n}, v{t4}, 5, v{t0}
        """)
    L += lines(f"""
    v_lshlrev_b32 v{t0}, 3, v{vU}
    v_lshlrev_b32 v{t1}, 6, v{vG}
    v_sub_u32 v{t0}, v{t0}, v{t1}
    s_lshl_b32 s{t2}, s{sWave}, 9
    s_add_u32 s{t2}, s{t2}, {L_T4+2*T4SZ+200}
    v_add_u32 v{vAe}, s{t2}, v{t0}
    s_lshr_b32 s{t2}, s{sWave}, 1
    s_mul_i32 s{t2}, s{t2}, {T4SZ}
    s_and_b32 s{t3}, s{sWave}, 1
    s_lshl_b32 s{t3}, s{t3}, 10
    s_add_u32 s{t2}, s{t2}, s{t3}
    s_add_u32 s{t2}, s{t2}, {L_T4+200}
    v_add_u32 v{vAm}, s{t2}, v{t0}
    v_lshlrev_b32 v{t0}, 5, v{vU}
    v_lshl_add_u32 v{t4}, v{vG}, 4, v{t0}
    s_lshl_b32 s{t2}, s{sWave}, 7
    s_sub_u32 s{t2}, {L_X+2*XSZ+480-64}, s{t2}
    v_add_u32 v{vBe}, s{t2}, v{t4}
    s_lshr_b32 s{t2}, s{sWave}, 1
    s_mul_i32 s{t2}, s{t2}, {XSZ}
    s_lshr_b32 s{t3}, s{t3}, 2
    s_sub_u32 s{t2}, s{t2}, s{t3}
    s_add_u32 s{t2}, s{t2}, {L_X+480-192}
    v_add_u32 v{vBm}, s{t2}, v{t4}
    s_lshl_b32 s{t2}, s{sWave}, 11
    s_add_u32 s{t2}, s{t2}, {4*4096}
    v_lshl_add_u32 v{vEr}, v{vLane}, 4, s{t2}
    v_add_u32 v{vEr+1}, {2*RINGW}, v{vEr}
    v_and_b32 v{t1}, 1, v{vG}
    v_lshl_add_u32 v{t0}, v{t1}, 9, v{t0}
    v_lshrrev_b32 v{t1}, 1, v{vG}
    v_lshl_add_u32 v{t0}, v{t1}, 4, v{t0}
    s_lshl_b32 s{t2}, s{sChE}, 2
    s_add_u32 s{t2}, s{t2}, s{sWave}
    s_lshl_b32 s{t2}, s{t2}, 10
    s_add_u32 s{t2}, s{t2}, {WS_YT}
    s_cmp_eq_u32 s{sNCH}, 3
    s_cselect_b32 s{t2}, s{t2}, s{sOOB}
    v_add_u32 v{vYe}, s{t2}, v{t0}
    s_and_b32 s{t2}, s{sWave}, 1
    s_lshl1_add_u32 s{t2}, s{sChM}, s{t2}
    s_lshl_b32 s{t2}, s{t2}, 11
    s_add_u32 s{t2}, s{t2}, {WS_YT}
    v_add_u32 v{vYm}, s{t2}, v{t0}
    s_lshl_b32 s{t2}, s{sWave}, 12
    s_add_u32 s{t3}, s{t2}, {L_T4+2*T4SZ}
    v_lshl_add_u32 v{vMw}, v{vLane}, 4, s{t3}
    s_xor_b32 s{t2}, s{t2}, 4096
    s_add_u32 s{t3}, s{t2}, {L_T4+2*T4SZ}
    v_lshl_add_u32 v{vMr}, v{vLane}, 4, s{t3}
    s_mul_i32 s{t2}, s{sWave}, {12*40960}
    s_mul_i32 s{t3}, s{sDT2}, 5120
    s_add_u32 s{t2}, s{t2}, s{t3}
    s_add_u32 s{t2}, s{t2}, {WS_UF}
    v_lshl_add_u32 v{vUo}, v{vLane}, 4, s{t2}
    v_add_u32 v{vUo+1}, 4096, v{vUo}
    v_min_u32 v{t0}, 29, v{vLane}
    v_mul_u32_u24 v{t1}, 43, v{t0}
    v_lshrrev_b32 v{t1}, 8, v{t1}
    v_mul_u32_u24 v{t1}, 18, v{t1}
    v_add_u32 v{t0}, v{t0}, v{t1}
    s_mul_i32 s{t2}, s{sDT2}, 120
    s_mul_i32 s{t3}, s{sWave}, 6
    s_add_u32 s{t2}, s{t2}, s{t3}
    s_lshl_b32 s{t2}, s{t2}, {P['fsu']}
    s_add_u32 s{t2}, s{t2}, {WS_FU}
    v_lshl_add_u32 v{vPu}, v{t0}, {P['fsu']}, s{t2}
    v_lshrrev_b32 v{t0}, 3, v{vLane}
    v_lshlrev_b32 v{t0}, 12, v{t0}
    s_mul_i32 s{t2}, s{sWave}, {384*4096}
    s_lshl_b32 s{t3}, s{sST2}, 7
    s_add_u32 s{t2}, s{t2}, s{t3}
    v_add_u32 v{t0}, s{t2}, v{t0}
    v_and_b32 v{t1}, 7, v{vLane}
    v_lshlrev_b32 v{t4}, 1, v{vG}
    v_xor_b32 v{t1}, v{t1}, v{t4}
    v_lshl_add_u32 v{vWo2}, v{t1}, 4, v{t0}
    v_add_u32 v{vWo2+1}, {32768-1024}, v{vWo2}
    v_add_u32 v{vWo2+2}, {2*(32768-1024)}, v{vWo2}
    v_add_u32 v{vWo2+3}, {3*(32768-1024)}, v{vWo2}
    """)
    return L


@script_step('SL')
def _():
    for it in late_setup():
        emit(it)


@script_step('ST')
def _():
    for k in small:
        w_until('W', k)
    for it in table_setup():
        emit(it)


@script_step('AD')
def _():
    w_until('W', 'ML')
    for it in ad_items():
        emit(it)


def ad_items():
    return [lambda: a.wait_vm('dd')] + lines(f"""
    v_lshlrev_b32 v{vDe}, 16, v{vDe}
    v_lshlrev_b32 v{vDm}, 16, v{vDm}
    v_add_f32 v{vDe}, v{vDe}, v{vDm}
    v_cvt_pk_bf16_f32 v{vDe}, v{vDe}, v{vDe}
    v_lshrrev_b32 v{t0}, 2, v{vLane}
    v_min_u32 v{t0}, 2, v{t0}
    v_mul_u32_u24 v{t0}, {T4SZ}, v{t0}
    v_and_b32 v{t1}, 3, v{vLane}
    v_mul_u32_u24 v{t1}, 6, v{t1}
    v_sub_u32 v{t0}, v{t0}, v{t1}
    v_add_u32 v{vDm}, {L_T4+128}, v{t0}
    """)


C0 = -2.0 * 0.7978845608028654 * 1.4426950408889634
C1 = C0 * 0.044715
vC0 = 50


@script_step('BU')
def _():
    w_until('W', 'ML')
    for it in bu_items():
        emit(it)


def bu_items():
    L = [lambda: a.wait_vm('b1')]
    for i in range(8):
        L += [('v_lshlrev_b32 %s, 16, %s' % (vr(vBf + 2 * i), vr(vB1 + i)), None),
              ('v_and_b32 %s, 0xffff0000, %s' % (vr(vBf + 2 * i + 1), vr(vB1 + i)), None)]
    return L + lines(f"""
    s_mov_b32 s{sT0}, 0x{f2u(C1):08x}
    s_mov_b32 s{sT1}, 0x{f2u(C1):08x}
    v_mov_b32 v{vC0}, 0x{f2u(C0):08x}
    v_mov_b32 v{vC0+1}, 0x{f2u(C0):08x}
    """)


def table_setup():
    L = []
    for ks in range(12):
        if ks:
            L += lines(f"""
            s_add_u32 s{sRot2}, s{sRot2}, 1
            s_cmp_eq_u32 s{sRot2}, 12
            s_cselect_b32 s{sRot2}, 0, s{sRot2}
            """)
        L += lines(f"""
        s_lshl_b32 s{sW2o[ks]}, s{sRot2}, 17
        s_mul_i32 s{sUo[ks]}, s{sRot2}, s{sC40}
        """)
    return L


def lines(txt):
    L = []
    for l in txt.strip().split('\n'):
        l = l.strip()
        if not l:
            continue
        if l.startswith('s_cselect'):
            L[-1] = (L[-1][0] + '\n' + l, None)
        else:
            L.append((l, None))
    return L


def emit(it):
    if callable(it):
        it()
    else:
        a(it[0], tag=it[1])


warm_pages = set()


def warm(spec):
    uid = len(a.out)
    a.atomic = True
    a('s_mov_b64 exec, 0')
    for w, c in enumerate(spec):
        if c == 'x':
            continue
        warm_pages.add(int(c))
        a(f's_cmp_eq_u32 s{sWave}, {w}')
        a(f's_cbranch_scc0 L_wm{uid}_{w}')
        a.raw(f'    s_call_b64 s[100:101], L_page{c}')
        a.label(f'L_wm{uid}_{w}')
    if not warm.ret:
        warm.ret = True
        a(f's_branch L_wm{uid}_x')
        a.label('L_wmret')
        a.raw('    s_setpc_b64 s[100:101]')
        a.label(f'L_wm{uid}_x')
    a.atomic = False
    a('s_mov_b64 exec, -1')


warm.ret = False
a.hook = w_hook
for tok in P['script'].replace('_', ' ').split():
    if tok.startswith('S:'):
        stamp(tok[2:])
    elif tok.startswith('R:'):
        rate[0] = int(tok[2:])
    elif tok.startswith('WM:'):
        warm(tok[3:])
    elif tok.startswith('W:'):
        w_until('W', tok[2:])
    elif tok != 'T4' and tok[0] in 'DT' and tok[1:].isdigit():
        w_until(tok[0], int(tok[1:]))
    else:
        step[tok]()
        done_steps.add(tok)
a.hook = None
assert ('D', NSTEP - 1) in wdone
if NW == 0:
    w2_desc()


def gather_list():
    return [(f's_mul_i32 s{sWoff}, s{sC40}, {4*m}\n' + 'buffer_load_dwordx4 %s, %s, %s, %s offen sc1' % (
        vr(vXl + 4 * m, 4), vr(vXg), sr(rWS, 4), sr(sWoff)), ('xl', m)) for m in range(4)]


def x_write(m):
    a.wait_vm(('xl', m))
    a('ds_write_b128 %s, %s offset:%d' % (vr(vXw), vr(vXl + 4 * m, 4), 256 * m), tag='xw')


def w2_atoms(ks, slot):
    L = dma_list('w2', ks, slot)
    return [(L[0][0] + '\n' + L[1][0], L[1][1])] + L[2:]


mtime = {}


class Sched:
    def __init__(self):
        self.k = 0
        self.streams = []
        self.credit = 8.0
        self.lastvm = -100

    def stream(self, *items):
        st = dict(q=list(items), wake=0)
        self.streams.append(st)
        return st['q']

    @staticmethod
    def kind(it):
        if callable(it):
            return 'wait', 0
        if it[0] == 'vm':
            return 'vm', 0
        op = it[0].split('\n')[-1].split()[0]
        if op.startswith(('buffer_', 'global_')):
            return 'vm', 0
        if op.startswith('ds_write_b128'):
            return 'lds', 13
        if op.startswith('ds_write'):
            return 'lds', 8
        if op.startswith('ds_read_b128'):
            return 'lds', 4
        if op.startswith('ds_'):
            return 'lds', 2
        if op == 's_waitcnt':
            return 'wait', 0
        if op.startswith('s_'):
            return 'salu', 0
        return 'valu', 0

    def do(self, it):
        if not callable(it) and it[0] == 'vm':
            it[1]()
        else:
            emit(it)

    def head(self, st):
        q = st['q']
        while q:
            it = q[0]
            if callable(it):
                break
            if it[0] == 'at':
                if self.k < it[1]:
                    return None
            elif it[0] == 'delay':
                st['wake'] = self.k + it[1]
            elif it[0] == 'after':
                if it[1]:
                    return None
            elif it[0] == 'since':
                if it[1] not in mtime or self.k < mtime[it[1]] + it[2]:
                    return None
            else:
                break
            q.pop(0)
        if not q or self.k < st['wake']:
            return None
        return q[0]

    def take(self, kinds, ok=None):
        for st in self.streams:
            it = self.head(st)
            if it is None:
                continue
            kind, lds = self.kind(it)
            if kind in kinds and (ok is None or ok(kind)):
                st['q'].pop(0)
                self.do(it)
                self.credit -= lds
                if kind == 'vm':
                    self.lastvm = self.k
                return kind
        return None

    def gap(self, frag=None, forced=None):
        self.k += 1
        self.credit = min(self.credit + P['ldsr'], P['ccap'])
        while self.take(('wait',)):
            pass
        t, lds, vm = 1, 0, False
        if forced:
            forced()
            t, vm = 2, True
        if frag and frag(True):
            t, lds = t + 2, 1
        elif frag and (self.take(('lds',), lambda kd: self.credit > 0) or (self.credit > 0 and frag(False))):
            t, lds = t + 2, 1
        while t <= 3:
            kind = self.take(('lds', 'vm', 'salu'), lambda kd: (
                (kd == 'lds' and self.credit > 0 and (t <= 2 or (P['dbl'] and lds < 2 and t == 3))) or
                (kd == 'vm' and not vm and self.k - self.lastvm >= P['vsp']) or kd == 'salu'))
            if kind is None:
                break
            t += 2 if kind == 'lds' else 1
            lds += kind == 'lds'
            vm = vm or kind == 'vm'
        t = max(t, 3 if vm else 2)
        while t <= 3 and self.take(('valu', 'salu')):
            t += 1

    def flush(self, q, until=None):
        while q and (until is None or until()):
            it = q.pop(0)
            if callable(it) or it[0] not in ('at', 'delay', 'after', 'since'):
                self.do(it)
            elif it[0] == 'after':
                self.flush(it[1])


def lds_w(addr, reg, off, tag, k='v', w64=None):
    if not (P['w64'] if w64 is None else w64):
        return [('ds_write_b128 %s, %s offset:%d' % (vr(addr), vr(reg, 4, k), off), tag)]
    return [('ds_write_b64 %s, %s offset:%d' % (vr(addr), vr(reg + 2 * h, 2, k), off + 8 * h), tag) for h in range(2)]


NT = P['ntail']
assert NT % 4 == 0 and NT <= 16
poll_check('L_pollh', vPo)
stamp('hpoll')
WIN = P['win']
vWin = 96
vAc = 64


def hload(F):
    a('buffer_load_dwordx4 %s, %s, %s, %s offen sc1' % (
        vr(vWin + 4 * (F % WIN), 4), vr(vHo + (F // 8) % 4), sr(rWS, 4), sr(sKS + 8 * (F // 32) + F % 8)), tag=('h', F))


for F in range(WIN):
    hload(F)
    if W:
        w_atom()
while W:
    w_atom()
vSA, vPt, vPx, vMk = 136, 152, 168, 204
sTag, sMk = [96, 97, 22, 23], 58
g1 = Sched()
side = g1.stream()
gq = gather_list()
if 'G' in P['dbg']:
    a(f'v_mov_b32 v{vXg}, s{sOOB}')
if 'P' in P['dbg'] or 'L' in P['dbg']:
    if 'P' in P['dbg']:
        a(f'v_mov_b32 v{vPs}, s{sOOB}')
    a(f'v_mov_b32 v{vPr}, s{sOOB}')
    a(f's_mov_b32 s{sAct}, 0')
vGt, vOg, vT0, vB2 = 56, 58, 60, 62
vOo = 16
vQa = 19
vYa, vYr = 32, 35
rQ, rO = 60, 64
STG = 20480
q4 = g1.stream(*[x for p in T4Q for x in p + [('delay', 2)]] if '4' not in P['dbg'] else [])
qS = g1.stream()
qS += lines(f"""
s_and_b32 s{sTag[0]}, s{sN}, 0xff
s_bfe_u32 s{sTag[1]}, s{sN}, 0x80008
s_bfe_u32 s{sTag[2]}, s{sN}, 0x80010
s_lshr_b32 s{sTag[3]}, s{sN}, 24
s_mul_i32 s{sMk}, s{sAct}, 0xff
v_mov_b32 v{vMk}, 0xffffff00
""")
for nm, fn in (('BU', bu_items), ('AD', ad_items), ('SL', late_setup)):
    if nm not in done_steps:
        qS += fn()
qS2 = g1.stream(*(table_setup() if 'ST' not in done_steps else []))
qS += lines(f"""
s_lshl_b32 s{t2}, s{sST2}, 2
s_add_u32 s{t2}, s{t2}, s{sWave}
s_lshl_b32 s{t2}, s{t2}, 4
v_add_u32 v{t0}, s{t2}, v{vU}
v_lshlrev_b32 v{t1}, 1, v{t0}
v_lshlrev_b32 v{vGt}, 2, v{t0}
v_add_u32 v{vGt}, {WS_G}, v{vGt}
""")
qS += [('global_load_ushort %s, %s, %s' % (vr(vB2), vr(t1), sr(sB2, 2)), 'gb')]
qS += lines(f"""
s_mul_i32 s{t2}, s{t2}, 1280
s_mul_i32 s{t3}, s{sDT2}, 160
s_add_u32 s{t2}, s{t2}, s{t3}
v_lshrrev_b32 v{t0}, 3, v{vLane}
v_mul_u32_u24 v{t0}, 1280, v{t0}
v_and_b32 v{t1}, 7, v{vLane}
v_xor_b32 v{t1}, v{t1}, v{vG}
v_add_u32 v{t0}, s{t2}, v{t0}
v_lshl_add_u32 v{vOo}, v{t1}, 4, v{t0}
v_xor_b32 v{t1}, 4, v{t1}
v_lshl_add_u32 v{vOo+1}, v{t1}, 4, v{t0}
v_add_u32 v{vOo+1}, {8*1280}, v{vOo+1}
v_lshrrev_b32 v{t0}, 1, v{vLane}
v_mul_u32_u24 v{t0}, 1280, v{t0}
v_and_b32 v{t1}, 1, v{vLane}
v_lshl_add_u32 v{t0}, v{t1}, 4, v{t0}
s_add_u32 s{t2}, s{t2}, 128
v_lshlrev_b32 v{t1}, 25, v{vLane}
v_add_u32 v{t0}, s{t2}, v{t0}
v_and_or_b32 v{vOo+2}, v{t1}, 2.0, v{t0}
s_add_u32 s{t2}, s{sRing}, {STG}
v_lshrrev_b32 v{t0}, 1, v{vU}
v_lshrrev_b32 v{t1}, 1, v{vG}
v_xor_b32 v{t0}, v{t0}, v{t1}
v_lshlrev_b32 v{t0}, 4, v{t0}
v_lshl_add_u32 v{t0}, v{vU}, 7, v{t0}
v_and_b32 v{t1}, 1, v{vG}
v_lshl_add_u32 v{t0}, v{t1}, 3, v{t0}
v_add_u32 v{vQa}, s{t2}, v{t0}
v_xor_b32 v{vQa+1}, 32, v{vQa}
v_xor_b32 v{vQa+2}, 64, v{vQa}
v_xor_b32 v{vQa+3}, 0x60, v{vQa}
v_lshl_add_u32 v{t0}, v{vU}, 5, s{t2}
v_lshl_add_u32 v{vQa+4}, v{vG}, 3, v{t0}
""")
qeq = [(f's_add_u32 m0, s{sRing}, {STG+1024*i}\n' + 'buffer_load_dwordx4 %s, %s, 0 offen lds' % (
    vr(vOo + i), sr(rQ, 4)), 'qe') for i in range(3)]


def stg(i):
    return (vr(vQa + i), 0) if i < 4 else (vr(vQa + 4), 2048)


qS += lines(f"""
v_bfe_u32 v{t0}, v{vLane}, 4, 1
v_lshlrev_b32 v{t0}, 7, v{t0}
v_add_u32 v{t0}, v{t0}, v{vU}
s_lshl_b32 s{t2}, s{sDT2}, {P['fsy']+4}
s_add_u32 s{t2}, s{t2}, {WS_FY}
v_lshl_add_u32 v{vPo}, v{t0}, {P['fsy']}, s{t2}
v_lshrrev_b32 v{t0}, 3, v0
s_mul_i32 s{t2}, s{sDT2}, 80
v_add_u32 v{t0}, s{t2}, v{t0}
v_lshlrev_b32 v{t0}, 12, v{t0}
v_and_b32 v{t1}, 7, v{vLane}
v_lshlrev_b32 v{t4}, 1, v{vG}
v_xor_b32 v{t1}, v{t1}, v{t4}
v_lshl_add_u32 v{t0}, v{t1}, 4, v{t0}
s_lshl_b32 s{t3}, s{sST2}, 7
s_add_u32 s{t3}, s{t3}, {WS_YT}
v_add_u32 v{vYa}, s{t3}, v{t0}
v_add_u32 v{vYa+1}, {32*4096}, v{vYa}
s_cmp_lt_u32 s{sWave}, 2
s_cselect_b32 s{t3}, {64*4096}, s{sOOB}
v_add_u32 v{vYa+2}, s{t3}, v{vYa}
v_bfe_u32 v{t0}, v{vLane}, 2, 3
v_lshlrev_b32 v{t0}, 7, v{t0}
v_and_b32 v{t1}, 3, v{vU}
v_lshl_add_u32 v{t0}, v{t1}, 3, v{t0}
v_bfe_u32 v{t1}, v{vLane}, 3, 2
v_xor_b32 v{t1}, s{sWave}, v{t1}
v_lshl_add_u32 v{t0}, v{t1}, 5, v{t0}
v_lshrrev_b32 v{t1}, 1, v{vG}
v_mul_u32_u24 v{t1}, {RINGW}, v{t1}
v_add_u32 v{t0}, v{t0}, v{t1}
v_add_u32 v{vYr}, 16384, v{t0}
""")
qR = lines(f"""
s_mov_b32 s{rQ}, s{sQ}
s_and_b32 s{rQ+1}, s{sQ+1}, 0xffff
s_mov_b32 s{rQ+2}, {2048*1280}
s_mov_b32 s{rQ+3}, 0x20000
s_mov_b32 s{rO}, s{sOUT}
s_and_b32 s{rO+1}, s{sOUT+1}, 0xffff
s_mov_b32 s{rO+2}, {2048*1280}
s_mov_b32 s{rO+3}, 0x20000
""")
slot2 = lambda ks: (ks - NW) % 4
tailq = []
for i in range(NW, NW + 4):
    tailq += w2_atoms(i, slot2(i))
GAT = P['gat']
SG = max((GAT + 7) // 8, 5)
XLATE = GAT + WIN + 4 > 59
assert WIN + 2 <= GAT <= 56 and ('SL' in done_steps or GAT > 41)
xw_items = lambda m, w64=None: [lambda: a.wait_vm(('xl', m))] + lds_w(vXw, vXl + 4 * m, 256 * m, 'xw', 'v', w64)
xw_left = list(range(4))
qG = g1.stream()


def pload(n):
    a('buffer_load_dwordx4 %s, %s, %s, 0 offen offset:%d sc1' % (
        vr(vPx + 4 * n, 4), vr(vPr), sr(rWS, 4), 1024 * n), tag='px')


pq = [lambda n=n: pload(n) for n in range(4)]
if 'KF' not in done_steps:
    step['KF']()
a.wait_vm(('h', 0))
a.wait_lg(('tr', 'w1', 0))
nex = 0
for F in range(64):
    S, ks = divmod(F, 8)
    acc = vAc + 16 * (S & 1)
    if ks == 0:
        g1.flush(side, lambda: any(not callable(x) and x[1] == ('acc', S - 2) for x in side))
    for n in range(4):
        d = vr(acc + 4 * n, 4)
        a('v_mfma_f32_16x16x32_bf16 %s, %s, %s, %s' % (
            d, ar(16 * ks + 4 * n, 4), vr(vWin + 4 * (F % WIN), 4), '0' if ks == 0 else d))
        forced = None
        if n == 0 and 1 <= F <= 64 - WIN:
            forced = lambda: hload(F - 1 + WIN)
        elif n in (0, 2) and F >= P['pld'] and pq:
            forced = pq.pop(0)
        elif n == 0 and F > 64 - WIN and len(tailq) > 16 - NT:
            forced = lambda: emit(tailq.pop(0))
        elif n == 2 and F == GAT - WIN - 2 and 'K' not in P['dbg']:
            forced = lambda: poll_issue(vPkv)
        elif n == 2 and GAT <= F < GAT + 4:
            forced = lambda: emit(gq.pop(0))
        if n == 3 and F < 63:
            a.wait_vm(('h', F + 1))
            if F < 7:
                a.wait_lg(('tr', 'w1', ks + 1))
        g1.gap(forced=forced)
    if 'F%d' % F in P['mst'].split(','):
        stamp('F%d' % F)
    if F == GAT - 1:
        if 'K' not in P['dbg']:
            poll_check('L_pollkv', vPkv)
        stamp('kvpoll')
    if F >= GAT + WIN + 1 and xw_left and F < 56:
        qG += xw_items(xw_left.pop(0))
    if F == 33:
        qS += qR
    if S > 0 and ks == 0:
        pa, sp = vAc + 16 * ((S - 1) & 1), (S - 1) % 4
        if S == 7:
            g1.flush(qS)
            g1.flush(qG)
        if S == 4:
            g1.flush(qS, lambda: any(not callable(x) and '0xffffff00' in x[0] for x in qS))
            for n in range(4):
                for j in range(4):
                    r = vSA + 4 * n + j
                    side += [('v_add_f32 %s, %s, %s' % (vr(r), vr(r), vr(pa + 4 * n + j)), ('acc', S - 1)),
                             ('v_and_or_b32 %s, %s, %s, %s' % (vr(r), vr(r), vr(vMk), sr(sTag[j])), None)]
                side.append(('buffer_store_dwordx4 %s, %s, %s, 0 offen offset:%d ' % (
                    vr(vSA + 4 * n, 4), vr(vPs), sr(rWS, 4), 1024 * n) + 'sc1', 'pst'))
        else:
            if S == 5:
                t4left = len(q4)
                g1.flush(q4)
            off = 4096 * (4 + (nex & 1))
            dst = vSA if S == 1 else vPt
            for n in range(4):
                side += lds_w(vXa + 3, pa + 4 * n, off + 1024 * n, ('acc', S - 1))
            if S == 7 and not XLATE:
                while xw_left:
                    side += xw_items(xw_left.pop(0))
            side += [('delay', P['bdel']), lambda S=S: a.wait_lg(('acc', S - 1), 'xw'), ('s_barrier', None)]
            if 'B' in P['dbg'] and S not in (3, 7):
                side.pop()
            if S == 5:
                g1sl = (len(qS), len(qS2))
                g1.flush(qS)
                g1.flush(qS2)
                side.append(('ds_write_b16 %s, %s' % (vr(vDm), vr(vDe)), None))
            if S == SG:
                side.append(('buffer_load_dword %s, %s, %s, 0 offen sc1' % (vr(vGt), vr(vGt), sr(rWS, 4)), 'gb'))
            side += [('ds_read_b128 %s, %s offset:%d' % (vr(dst + 4 * n, 4), vr(vXa + sp), off + 1024 * n), ('pr', S))
                     for n in range(4)]
            if S < 7:
                side += [('delay', P['rdel']), lambda S=S: a.wait_lg(('pr', S))]
            if 1 < S < 7:
                tot = vSA if S < 4 else vBf
                side += [('v_add_f32 %s, %s, %s' % (vr(tot + i), vr(tot + i), vr(vPt + i)), None) for i in range(16)]
            nex += 1
            if 'E' in P['dbg'] and S != SG:
                side.clear()
g1left = len(side)
g1.flush(side)
while pq:
    pq.pop(0)()
while len(tailq) > 16 - NT:
    emit(tailq.pop(0))
stamp('g1end')
vAccM = 64
aAccE = 64
aOth = 96
UW = P['uw']
NPOOL = 35 - UW
POOL = [96 + 4 * i for i in range(NPOOL)]
vUw = 96 + 4 * NPOOL
vOwn = 236

mf = []
units = [('e', 0), ('e', 1), ('m', 0), ('m', 1), ('m', 2), ('m', 3)]
ustart = []
for ui, (kind, e) in enumerate(units):
    accs = (lambda q: ar(aAccE + 4 * q, 4)) if kind == 'e' else (lambda q: vr(vAccM + 4 * q, 4))
    ustart.append(len(mf))
    rows = range(8) if ui % 2 == 0 else range(7, -1, -1)
    for r in rows:
        for q in range(r, 8):
            mf.append((accs(q), ('A', ui, r), ('B', ui, q - r), '0' if e == 0 and r == 0 else accs(q)))
ustart.append(len(mf))


def frag_loads(key, reg):
    t, ui, i = key
    kind, e = units[ui]
    if t == 'A':
        v = vAe if kind == 'e' else vAm
        if P['a2'] and i % P['a2'] == 0:
            return ['ds_read2_b64 %s, %s offset0:%d offset1:%d' % (
                vr(reg, 4), vr(vA8[kind][i]), 32 * e, 32 * e + 4)]
        return ['ds_read_b64 %s, %s offset:%d' % (vr(reg, 2), vr(v), 256 * e + 2048 * i),
                'ds_read_b64 %s, %s offset:%d' % (vr(reg + 2, 2), vr(v), 256 * e + 2048 * i + 32)]
    v, b = (vBe, 64) if kind == 'e' else (vBm, 192)
    return ['ds_read_b128 %s, %s offset:%d' % (vr(reg, 4), vr(v), b - 64 * e + 512 * i)]


order, last = [], {}
for k, (d, A, B, C) in enumerate(mf):
    for f in (A, B):
        if isinstance(f, tuple):
            if f not in last:
                order.append(f)
            last[f] = k
free, reg_of, pend, issued_at = list(POOL), {}, [], {}
cv = Sched()


def issue_frag(maxn):
    n = 0
    while n < maxn:
        if not pend:
            if not order or not free:
                return n
            f = order.pop(0)
            reg_of[f] = free.pop(0)
            pend.extend((x, f) for x in frag_loads(f, reg_of[f]))
        x, f = pend.pop(0)
        a(x, tag=f)
        cv.credit -= 8 if 'read2' in x else 4 if 'b128' in x else 2
        issued_at[f] = cv.k
        n += 1
    return n


def wait_frags(*fs):
    if not any(t in fs for t in a.lg):
        return 0
    more = [t for t in a.lg if t in issued_at and issued_at[t] <= cv.k - P['lead'] and not any(p[1] == t for p in pend)]
    a.wait_lg(*fs, *more)
    return 1


if XLATE:
    while xw_left:
        for it in xw_items(xw_left.pop(0), 0):
            emit(it)
else:
    issue_frag(10)
a.wait_lg(('pr', 7))
acc = vAc + 16
vE, vEp = 188, 224
assert not gq
for i in range(8):
    a('v_pk_add_f32 %s, %s, %s' % (vr(vBf + 2 * i, 2), vr(vBf + 2 * i, 2), vr(vPt + 2 * i, 2)))
a('s_mov_b32 %s, 0' % sr(sSpin))
a.wait_vm('px')
a.label('L_px')
for i in range(16):
    a('v_xor_b32 %s, %s, %s' % (vr(vPx + i), sr(sTag[i % 4]), vr(vPx + i)))
a('v_or_b32 %s, %s, %s' % (vr(t0), vr(vPx), vr(vPx + 1)))
for i in range(2, 16, 2):
    a('v_or3_b32 %s, %s, %s, %s' % (vr(t0), vr(vPx + i), vr(vPx + i + 1), vr(t0)))
a('v_and_b32 %s, %s, %s' % (vr(t0), sr(sMk), vr(t0)))
a('v_cmp_ne_u32 vcc, 0, %s' % vr(t0))
a('s_cbranch_vccz L_px_ok')
sv, sh = list(a.vm), list(a.hist)
for n in range(4):
    pload(n)
a(f"""
s_add_u32 s{sSpin}, s{sSpin}, 1
s_cmp_lt_u32 s{sSpin}, {SPIN_MAX}
s_waitcnt vmcnt(0)
s_cbranch_scc1 L_px
""")
a.label('L_px_ok')
a.vm, a.hist = sv, sh
stamp('px')
if XLATE:
    a.wait_lg('xw')
    a('s_barrier')
    issue_frag(10)
for i in range(8):
    a('v_pk_add_f32 %s, %s, %s' % (vr(vBf + 2 * i, 2), vr(vBf + 2 * i, 2), vr(vPx + 2 * i, 2)))
for p in range(2):
    rng = range(4 * p, 4 * p + 4)
    for i in rng:
        a('v_pk_add_f32 %s, %s, %s' % (vr(vBf + 2 * i, 2), vr(vBf + 2 * i, 2), vr(acc + 2 * i, 2)))
    for i in rng:
        a('v_pk_mul_f32 %s, %s, %s' % (vr(vE + 2 * i, 2), vr(vBf + 2 * i, 2), vr(vBf + 2 * i, 2)))
    for i in rng:
        a('v_pk_fma_f32 %s, %s, %s, %s' % (vr(vE + 2 * i, 2), vr(vE + 2 * i, 2), sr(sT0, 2), vr(vC0, 2)))
    for i in rng:
        a('v_pk_mul_f32 %s, %s, %s' % (vr(vE + 2 * i, 2), vr(vE + 2 * i, 2), vr(vBf + 2 * i, 2)))
    for i in range(8 * p, 8 * p + 8):
        a('v_exp_f32 %s, %s' % (vr(vE + i), vr(vE + i)))
    for i in rng:
        a('v_pk_add_f32 %s, %s, 1.0 op_sel_hi:[1,0]' % (vr(vE + 2 * i, 2), vr(vE + 2 * i, 2)))
    for i in range(8 * p, 8 * p + 8):
        a('v_rcp_f32 %s, %s' % (vr(vE + i), vr(vE + i)))
    for i in rng:
        a('v_pk_mul_f32 %s, %s, %s' % (vr(vE + 2 * i, 2), vr(vE + 2 * i, 2), vr(vBf + 2 * i, 2)))
    for i in rng:
        a('v_cvt_pk_bf16_f32 %s, %s, %s' % (vr(vEp + i), vr(vE + 2 * i), vr(vE + 2 * i + 1)))
    a('buffer_store_dwordx4 %s, %s, %s, %s offen sc1' % (
        vr(vEp + 4 * p, 4), vr(vUst), sr(rWS, 4), sr(sC40) if p else '0'), tag='ust')
    if p == 0:
        issue_frag(6 if P['a2'] == 1 else 10)
if P['a2'] == 1:
    for i in (5, 7):
        a('v_add_u32 v%d, %d, v%d' % (vA8['m'][i], 2048 * i, vA8['m'][0]))
stamp('conv0')
cv.credit = 8.0
vEx = 120
vYp = 28


def w2T(ks, slot):
    return [lambda: a.wait_vm(('w2', ks))] + tr_list('w2', ks, slot)


def uload(F):
    st, ks = divmod(F, 12)
    a('buffer_load_dwordx4 %s, %s, %s, %s offen offset:%d sc1' % (
        vr(vUw + 4 * (F % UW), 4), vr(vUo + st // 4), sr(rWS, 4), sr(sUo[ks]), 1024 * (st % 4)), tag=('u', F))


def split(x):
    return [(l, x[1]) for l in x[0].split('\n')]


def dbgf(it):
    if 'T' in P['dbg']:
        it = [x for x in it if callable(x) or '_tr_' not in x[0]]
    if 'D' in P['dbg']:
        it = [(('vm', lambda: a('s_nop 0')) if not callable(x) and ' lds' in x[0] else x) for x in it]
    if 'W' in P['dbg']:
        it = [x for x in it if not callable(x)]
    return it


e_end = ustart[2]
qF = cv.stream(('at', P['uflag']), lambda: a.wait_vm('ust'), ('vm', lambda: flag(sFU, P['fsu'])), lambda: stamp('uflag'),
               ('at', P['pollu']), ('vm', lambda: poll_issue(vPu)))
qX = cv.stream(('at', e_end + 6), ('s_barrier', None), ('at', P['xat']))
for q in range(8):
    qX += lds_w(vXa + 3, aAccE + 4 * q, 4 * 4096 + 1024 * q, 'mw', 'a', P['xw64']) + [('delay', P['ewsp'])]
NDEF = P['ndef']
marks = {(c, ks): [1] for c in 'TD' for ks in range(12)}
log = []


def mark(c, ks):
    def f():
        marks[(c, ks)].clear()
        mtime[(c, ks)] = cv.k
        log.append('%s%d@%d' % (c, ks, cv.k))
        if '%s%d' % (c, ks) in P['mst'].split(','):
            stamp('%s%d' % (c, ks))
    return f


qD = cv.stream(*dbgf([y for x in tailq for y in split(x)]), mark('D', NW + 3))
qT = cv.stream(('at', P['t0']))
for ks in range(NW, 12 - NDEF):
    dep = min(ks + P['tlag'], 11)
    if dep >= NW + 3:
        qT.append(('after', marks[('D', dep)]))
    qT += dbgf(w2T(ks, slot2(ks))) + [mark('T', ks)]
    if ks + 4 < 12:
        qD += [('since', ('T', ks), P['tdel']), lambda ks=ks: a.wait_lg(('tr', 'w2', ks))]
        qD += dbgf(dma_list('w2', ks + 4, slot2(ks))) + [mark('D', ks + 4)]
if 'X' in P['dbg']:
    qX.clear()
qX.append(lambda: log.append('X@%d' % cv.k))
qU = cv.stream(('after', qF), ('after', qD), ('at', P['pollu'] + P['ulag']),
               lambda: poll_check('L_pollu', vPu), lambda: stamp('upoll'), lambda: log.append('U@%d' % cv.k))
for F in range(UW):
    qU.append(('vm', lambda F=F: uload(F)))
cv.streams.append(cv.streams.pop(1))

def ready(k):
    d, A, B, C = mf[k]
    for f in (A, B):
        while f not in reg_of or any(p[1] == f for p in pend):
            assert pend or free
            issue_frag(1)
    wait_frags(A, B)


first = {}
for k, (d, A, B, C) in enumerate(mf):
    for f in (A, B):
        first.setdefault(f, k)


def frag_cb(urgent_only):
    if urgent_only:
        j, slack = 0, 999
        for x, f in pend:
            j += 1
            slack = min(slack, first[f] - j)
        for f in order[:14]:
            j += len(frag_loads(f, 0))
            slack = min(slack, first[f] - j)
        if slack - cv.k > P['urg']:
            return 0
    return issue_frag(1)


ready(0)
for k, (d, A, B, C) in enumerate(mf):
    a('v_mfma_f32_16x16x32_bf16 %s, %s, %s, %s' % (d, vr(reg_of[A], 4), vr(reg_of[B], 4), C))
    for f in (A, B):
        if last[f] == k:
            free.append(reg_of[f])
    if k + 1 < len(mf):
        ready(k + 1)
    cv.gap(frag=frag_cb)
left = [len(x['q']) for x in cv.streams]
cv.streams.pop(3)
while qX or qT or qD or qF:
    cv.gap()
vMx = 96
a('s_bitcmp1_b32 %s, 0' % sr(sWave))
a('s_cbranch_scc1 L_mw_odd')
sh = list(a.hist)
sl = list(a.lg)
for par in range(2):
    if par == 1:
        a.label('L_mw_odd')
        a.hist, a.lg = list(sh), list(sl)
    give = 4 if par == 0 else 0
    for q in range(4):
        a('ds_write_b128 %s, %s offset:%d' % (vr(vMw), vr(vAccM + 4 * (give + q), 4), 1024 * q), tag='mw')
        if par == 1:
            for i in (2 * q, 2 * q + 1):
                a('v_mov_b64 %s, %s' % (vr(vAccM + 2 * i, 2), vr(vAccM + 16 + 2 * i, 2)))
    if par == 0:
        a('s_branch L_mw_done')
a.label('L_mw_done')
stamp('convend')
g2 = Sched()
vOl = 104
vQe = 154
vQg = 64
vPp = 120
vYl = 132
vYt = 144
vYu = 96
vOp = 88
assert vQe + 10 <= vUw
qM = g2.stream(lambda: a.wait_lg('mw'), ('s_barrier', None))
qM += [('ds_read_b128 %s, %s offset:%d' % (vr(vMx + 4 * q, 4), vr(vMr), 1024 * q), ('mr', q // 2)) for q in range(4)]
qM += [('ds_read_b128 %s, %s offset:%d' % (
    vr(vEx + 8 * w2 + 4 * h, 4), vr(vEr + w2 // 2), RINGW * (w2 % 2) + 1024 * h), ('er', w2))
    for w2 in range(4) for h in range(2)]
MF = P['mflush']


def addv(d, x, n):
    if MF:
        return [('v_pk_add_f32 %s, %s, %s' % (vr(d + i, 2), vr(d + i, 2), vr(x + i, 2)), None) for i in range(0, n, 2)]
    return [('v_add_f32 %s, %s, %s' % (vr(d + i), vr(d + i), vr(x + i)), None) for i in range(n)]


def ypack(src, o, addr, off):
    return [('v_cvt_pk_bf16_f32 %s, %s, %s' % (vr(o + h), vr(src + 2 * h), vr(src + 2 * h + 1)), None)
            for h in range(4)] + [
        ('v_permlane16_swap_b32 %s, %s' % (vr(o), vr(o + 2)), None),
        ('v_permlane16_swap_b32 %s, %s' % (vr(o + 1), vr(o + 3)), None),
        ('buffer_store_dwordx4 %s, %s, %s, 0 offen offset:%d sc1' % (vr(o, 4), vr(addr), sr(rWS, 4), off), 'yst')]


for qq in range(2):
    qM.append(lambda qq=qq: a.wait_lg(('mr', qq)))
    qM += addv(vMx + 8 * qq, vAccM + 8 * qq, 8) + ypack(vMx + 8 * qq, vMx + 16 + 4 * qq, vYm, 1024 * qq)
for w2 in range(1, 4):
    qM += [lambda w2=w2: a.wait_lg(('er', w2))] + addv(vEx, vEx + 8 * w2, 8)
qM += ypack(vEx, vYp, vYe, 0)
if MF:
    n = 0
    while qM:
        g2.flush(qM, lambda m=len(qM): len(qM) == m)
        n += 1
        if n % 8 == 0 and 0 < len(qU) <= UW:
            cv.flush(qU, lambda m=len(qU): len(qU) == m)
cv.flush(qU)
qT2 = g2.stream()
for ks in range(12 - NDEF, 12):
    qT2 += w2T(ks, slot2(ks))
side = g2.stream()
a.wait_vm('gb')
a(f"""
v_sub_f32 v{vOg}, 1.0, v{vGt}
v_lshlrev_b32 v{vB2}, 16, v{vB2}
v_mul_f32 v{vT0}, v{vOg}, v{vB2}
s_lshl_b32 s{sT0}, s{sR}, {P['fsy']}
s_add_u32 s{sT0}, s{sT0}, {WS_FY}
""")


def xwrite(st):
    if st == 4:
        return [('ds_write_b128 %s, %s offset:%d' % (
            vr(vXa + 3), ar(aOth + 4 * (n - 1), 4), 3072 * st + 1024 * (n - 1)), 'xw') for n in range(1, 4)]
    return [x for n in range(1, 4)
            for x in lds_w(vXa + 3, aOth + 12 * (st & 1) + 4 * (n - 1), 3072 * st + 1024 * (n - 1), 'xw', 'a')]


def xread(st):
    return [('ds_read_b128 %s, %s offset:%d' % (vr(vPp + 4 * (n - 1), 4), vr(vXa + n - 1), 3072 * st + 1024 * (n - 1)),
             ('xr', st)) for n in range(1, 4)]


def xsum(st, pk=False):
    L = [lambda: a.wait_lg(('xr', st))]
    o = vOwn + 4 * st
    if pk:
        for n in range(3):
            L += [('v_pk_add_f32 %s, %s, %s' % (vr(o + 2 * h, 2), vr(o + 2 * h, 2), vr(vPp + 4 * n + 2 * h, 2)), None)
                  for h in range(2)]
    else:
        for n in range(3):
            L += [('v_add_f32 %s, %s, %s' % (vr(o + j), vr(o + j), vr(vPp + 4 * n + j)), None) for j in range(4)]
    return L


def base(i, pk=False):
    o = vOwn + 4 * i
    if pk:
        return [('v_pk_fma_f32 %s, %s, %s, %s op_sel_hi:[1,0,0]' % (
            vr(o + 2 * h, 2), vr(o + 2 * h, 2), vr(vOg, 2), vr(vT0, 2)), None) for h in range(2)]
    return [('v_fma_f32 %s, %s, %s, %s' % (vr(o + j), vr(o + j), vr(vOg), vr(vT0)), None) for j in range(4)]


def fin(i, pk=True):
    o, p, y = vOwn + 4 * i, vOp + 2 * (i & 1), vYu + 4 * (i & 1)
    L = [lambda: a.wait_lg(('yt', i))]
    for h in range(2):
        L += [('v_lshlrev_b32 %s, 16, %s' % (vr(y + 2 * h), vr(vYt + 2 * i + h)), None),
              ('v_and_b32 %s, 0xffff0000, %s' % (vr(y + 2 * h + 1), vr(vYt + 2 * i + h)), None)]
    if pk:
        L += [('v_pk_fma_f32 %s, %s, %s, %s' % (
            vr(o + 2 * h, 2), vr(vQg + 4 * i + 2 * h, 2), vr(y + 2 * h, 2), vr(o + 2 * h, 2)), None) for h in range(2)]
    else:
        L += [('v_fmac_f32 %s, %s, %s' % (vr(o + j), vr(vQg + 4 * i + j), vr(y + j)), None) for j in range(4)]
    L += [('v_cvt_pk_bf16_f32 %s, %s, %s' % (vr(p + h), vr(o + 2 * h), vr(o + 2 * h + 1)), None) for h in range(2)]
    L += [('ds_write_b64 %s, %s offset:%d' % (stg(i)[0], vr(p, 2), stg(i)[1]), None)]
    return L


def oread(ms):
    return [('ds_read_b128 %s, %s offset:%d' % (vr(vOl + 4 * m, 4), vr(vXa + 3), STG + 1024 * m), ('or', m)) for m in ms]


def ostore(ms):
    L = []
    for m in ms:
        L += [lambda m=m: a.wait_lg(('or', m)), ('buffer_store_dwordx4 %s, %s, %s, 0 offen %s' % (
            vr(vOl + 4 * m, 4), vr(vOo + m), sr(rO, 4), P['outmod']), 'out')]
    return L


def qprep(pk):
    L = [lambda: a.wait_vm('qe')]
    L += [('ds_read_b64 %s, %s offset:%d' % (vr(vQe + 2 * i, 2), stg(i)[0], stg(i)[1]), ('qr', i)) for i in range(5)]
    if not pk:
        L.append(('delay', 4))
    for i in range(5):
        L.append(lambda i=i: a.wait_lg(('qr', i)))
        for h in range(2):
            L += [('v_lshlrev_b32 %s, 16, %s' % (vr(vQg + 4 * i + 2 * h), vr(vQe + 2 * i + h)), None),
                  ('v_and_b32 %s, 0xffff0000, %s' % (vr(vQg + 4 * i + 2 * h + 1), vr(vQe + 2 * i + h)), None)]
        if pk:
            L += [('v_pk_mul_f32 %s, %s, %s op_sel_hi:[1,0]' % (
                vr(vQg + 4 * i + 2 * h, 2), vr(vQg + 4 * i + 2 * h, 2), vr(vGt, 2)), None) for h in range(2)]
        else:
            L += [('v_mul_f32 %s, %s, %s' % (vr(vQg + 4 * i + j), vr(vGt), vr(vQg + 4 * i + j)), None) for j in range(4)]
    return L


def yflag():
    a(f"""
    s_cmp_eq_u32 s{sWave}, 0
    s_cbranch_scc0 L_noyflag
    """)
    sh = list(a.hist)
    a.cond = True
    flag(sT0, P['fsy'])
    a.cond = False
    a.label('L_noyflag')
    a.hist = sh
    stamp('yflag')


def ywrite():
    return [lambda: a.wait_vm('yl')] + [('ds_write_b128 %s, %s offset:%d' % (
        vr(vXa + 3), vr(vYl + 4 * m, 4), 16384 + 1024 * m), 'xw') for m in range(3)]


def yread():
    return [('ds_read_b64_tr_b16 %s, %s offset:%d' % (
        vr(vYt + 2 * i, 2), vr(vYr), RINGW * ((2 * i) % 4) + 1024 * (i // 2)), ('yt', i)) for i in range(5)]


YC = P['ychk']
EARLY = YC <= 40
QLATE = P['qeat'] + UW >= 52
assert not (EARLY and QLATE)
yq = [('buffer_load_dwordx4 %s, %s, %s, 0 offen sc1' % (vr(vYl + 4 * m, 4), vr(vYa + m), sr(rWS, 4)), 'yl')
      for m in range(3)]
qE = g2.stream()
g2.streams.insert(0, g2.streams.pop())
def g2ready(F):
    st, ks = divmod(F, 12)
    if st == 0:
        g2.flush(qT2, lambda: any(not callable(x) and x[1] == ('tr', 'w2', ks) for x in qT2))
    if ks == 0:
        g2.flush(qE, lambda: any(not callable(x) and x[1] == 'xw' for x in qE))
    a.wait_vm(('u', F))
    if st == 0:
        a.wait_lg(('tr', 'w2', ks))


g2ready(0)
for F in range(60):
    st, ks = divmod(F, 12)
    for n in range(4):
        d = vr(vOwn + 4 * st, 4) if n == 0 else ar(aOth + 12 * (st & 1) + 4 * (n - 1), 4)
        a('v_mfma_f32_16x16x32_bf16 %s, %s, %s, %s' % (
            d, vr(vUw + 4 * (F % UW), 4), ar(areg('w2', ks) + 4 * n, 4), '0' if ks == 0 else d))
        forced = None
        if n == 0 and 1 <= F <= 60 - UW:
            forced = lambda: uload(F - 1 + UW)
        elif n == 2 and F == P['ypoll']:
            forced = lambda: poll_issue(vPo)
        elif n == 2 and F >= P['qeat'] and qeq:
            assert F >= 20
            forced = lambda: emit(qeq.pop(0))
        elif n == 2 and F > YC and yq:
            forced = lambda: emit(yq.pop(0))
        if n == 3 and F < 59:
            g2ready(F + 1)
        g2.gap(forced=forced)
    if F == P['yflag']:
        g2.flush(qM)
        qE += [lambda: a.wait_vm('yst'), ('s_barrier', None), yflag]
    if st > 0 and ks == 1:
        g2.flush(qM)
        if EARLY and st == 4:
            qE += ywrite()
        qE += xwrite(st - 1) + [('delay', P['bdel2']), lambda: a.wait_lg('xw')] + ([('s_barrier', None)] if 'C' not in P['dbg'] else []) + xread(st - 1)
        if EARLY and st == 4:
            qE += yread()
        qE += [('delay', P['rdel2'])] + xsum(st - 1) + base(st - 1)
        if EARLY and st == 4:
            for i in range(4):
                qE += fin(i, False)
            qE += oread((0, 1)) + [('delay', 4)] + ostore((0, 1))
    if not QLATE and F == max(P['qeat'] + UW + 2, 28):
        qE += qprep(False)
    if F == YC:
        poll_check('L_polly', vPo)
        stamp('ypoll')
g2left = len(qE)
stamp('g2end')
while yq:
    emit(yq.pop(0))
g2.flush(qE, lambda: any(not callable(x) and x[0] == 's_barrier' for x in qE))
for it in xwrite(4):
    emit(it)
g2.flush(qE)
if QLATE:
    for it in qprep(True):
        emit(it)
stamp('tq')
if not EARLY:
    for it in ywrite():
        emit(it)
a('s_waitcnt lgkmcnt(0)')
stamp('ty')
a('s_barrier')
stamp('tb')
L = xread(4)
if not EARLY:
    L = yread() + L
    for i in range(4):
        L += fin(i)
    L += oread((0, 1))
L += xsum(4, True) + base(4, True) + fin(4) + oread((2,))
L += ostore((2,) if EARLY else (0, 1, 2))
for it in L:
    emit(it)
stamp('tst')
a('s_add_u32 %s, s2, %s' % (sr(t2), sr(sWave)))
a('s_cmp_eq_u32 %s, 0' % sr(t2))
a('s_cbranch_scc0 L_noepoch')
flag(t2)
a.label('L_noepoch')
if STAMPS:
    a('s_waitcnt vmcnt(0)')
    nstamp[0] = min(nstamp[0], 15)
    stamp('end')
    a(f'''
    s_lshl_b32 s{sT0}, s2, 2
    s_add_u32 s{sT0}, s{sT0}, s{sWave}
    s_lshl_b32 s{sT0}, s{sT0}, 7
    s_add_u32 s{sT0}, s{sT0}, {WS_ST}
    s_mov_b64 exec, 1
    ''')
    for i in range(nstamp[0]):
        a('v_mov_b32 v10, %s' % sr(sStamp + i))
        a('buffer_store_dword v10, off, %s, %s offset:%d' % (sr(rWS, 4), sr(sT0), 4 * i))
if PROBE:
    a(f'''
    s_cmp_eq_u32 s{sStamp+PROBE[0]}, 0
    s_cselect_b32 s{sT0}, s{sStamp}, s{sStamp+PROBE[0]}
    s_add_u32 s{sT0}, s{sT0}, 6000
    ''')
    a.label('L_probe')
    a(f'''
    s_memrealtime s[100:101]
    s_waitcnt lgkmcnt(0)
    s_sub_u32 s{sT1}, s100, s{sT0}
    s_cmp_lt_i32 s{sT1}, 0
    s_cbranch_scc1 L_probe
    ''')
a.label('L_end')
a('s_endpgm')

PADTXT = '' if P['pad'] < 0 else '.p2align 12\n' + ('.fill %d, 4, 0xbf800000\n' % (64 * P['pad']) if P['pad'] else '')
hdr = open('cdna_kernels/%s.s.ref' % NAME).read().split('; Override launch')[0]
def render():
    return hdr + f'''; @launch grid=(256,1,1) block=(256,1,1) lds={LDS_BYTES}
; stamps: {' '.join(stamp_names)}
.amdgcn_target "amdgcn-amd-amdhsa--gfx950"
.text
.globl {NAME}_kernel
{PADTXT}.p2align 8
.type {NAME}_kernel,@function
{NAME}_kernel:
''' + a.text() + f'''.section .rodata,"a"
.p2align 6
.amdhsa_kernel {NAME}_kernel
  .amdhsa_next_free_vgpr 512
  .amdhsa_next_free_sgpr 102
  .amdhsa_accum_offset 256
  .amdhsa_group_segment_fixed_size 0
  .amdhsa_kernarg_size 120
  .amdhsa_user_sgpr_count 2
  .amdhsa_user_sgpr_kernarg_segment_ptr 1
  .amdhsa_system_sgpr_workgroup_id_x 1
.end_amdhsa_kernel
'''


if warm_pages:
    import subprocess, re, tempfile, os
    assert P['pad'] >= 0
    real = list(a.out)
    a.out = real + ['L_page%d:' % p for p in warm_pages] + ['    s_endpgm']
    d = tempfile.mkdtemp()
    open(d + '/t.s', 'w').write(render())
    subprocess.check_call(['clang', '-x', 'assembler', '-target', 'amdgcn-amd-amdhsa', '-mcpu=gfx950',
                           '-c', d + '/t.s', '-o', d + '/t.o'])
    dis = subprocess.check_output(['llvm-objdump', '-d', '--mcpu=gfx950', d + '/t.o'], text=True)
    dis = dis[dis.index('<%s_kernel>:' % NAME):]
    addrs = [int(m, 16) for m in re.findall(r'// ([0-9A-F]{12}):', dis)]
    off0 = ((P['pad'] + 3) * 256) % 4096
    res, k, shift, todo, full = [], 0, 0, sorted(warm_pages), True
    for line in real:
        if line.startswith('    ') and not line.strip().startswith(';'):
            pos = addrs[k] - addrs[0] + off0 + shift
            if todo and pos >= 4096 * todo[0] and full:
                res += ['L_page%d:' % todo.pop(0), '    s_cbranch_execz L_wmret']
                shift += 4
            if ' exec' in line and line.split()[1].startswith('exec'):
                full = line.replace(' ', '') == 's_mov_b64exec,-1'
            k += 1
        res.append(line)
    assert not todo
    a.out = res
txt = render()
open(OUT, 'w').write(txt)
print('left: g1', t4left, g1sl, g1left, 'conv', left, 'g2', g2left, ' '.join(log))
print('wrote', OUT, 'lines', len(a.out), 'nops', a.nops, 'stamps', nstamp[0], stamp_names)
```

```python
import sys, struct
from asmlib import Asm, vr, ar, sr

NAME = 'gated_mix__ssm_conv_h3__mixer_token_mlp__prompt'
STAMPS = '--stamps' in sys.argv
OUT = [x for x in sys.argv[1:] if not x.startswith('--')][0]
PROBE = [int(x[8:]) for x in sys.argv if x.startswith('--probe=')]
if PROBE:
    STAMPS = True
P = dict(hrot=0, wrot=0, wrot2=0, urot=0, xrot=0, xrot2=0, arr1=1, arr2=1, outmod='', nost='', dbg='',
         win=10, gat=45, ntail=4, nw=0, nm=0, xl=0, mat=33, pld=52, fsh=5, wstep=2, ewsp=0, w64=1, a2=0, dbl=1, xat=170, xw64=0, mflush=1, urg=8, ccap=12, ffull=1, fsk=5, fsu=6, fsy=5, slp=0, cp0=2, q0=1, pad=5, bdel=2, rdel=3, bdel2=3, rdel2=3, pmask=1, mst='',
         lead=5, ldsr=6.0, vsp=4, t0=20, tlag=2, tdel=4, ndef=4, uflag=30, pollu=150, ulag=35, uw=14,
         yflag=10, ypoll=44, ychk=55, qeat=46,
         wscript='D0 KL K2L VL GW D1 SSL D2 D3 ML T0 T1 D4 D5 D6', t4rate=99,
         script='Q CP D0 SA W:KL R:8 LN SB HF R:12 GATE KC K2C R:8 SL ST HP AD BU T4 D7 T5')
BEST = '''script=Q_CP_D0_SA_W:KL_R:9_LN_SB_HF_R:12_GATE_KC_K2C_R:8_SL_ST_HP_AD_BU_T4_D7_T3 wscript=D0_KL_VL_GW_K2L_D1_SSL_ML_D2_D3_T0_T1_D4_D5_D6 win=9 gat=45 pld=53 ntail=4 xl=0 uflag=30 pollu=160 ulag=30 uw=13 vsp=4 t0=20 tdel=4 tlag=2 ndef=4 xat=160 ewsp=0 ldsr=6.0 ccap=8 urg=8 lead=5 dbl=1 w64=0 xw64=0 mflush=1 yflag=10 ypoll=44 ychk=55 qeat=46 bdel=4 rdel=5 bdel2=3 rdel2=3 fsh=4 fsk=4 fsu=6 fsy=4 xrot=0 hrot=0 urot=0 xrot2=0 wrot=0 wrot2=0 cp0=0 pad=5'''
for x in ['--p:' + y for y in BEST.split()] + sys.argv:
    if x.startswith('--p:'):
        k, v = x[4:].split('=')
        assert k in P, k
        P[k] = type(P[k])(v)
assert (3 * P['urot'] >> 4) <= 12 and P['arr2'] == 1 and (7 * P['xrot2'] >> 1) <= 12
f2u = lambda x: struct.unpack('<I', struct.pack('<f', x))[0]

WS_EPOCH = 0
WS_DUMMY = 0x800
WS_FKV = 0x1000
WS_FY = 0x9000
WS_FU = 0x9A0000
WS_G = 0x18000
WS_ST = 0x20000
WS_HT8 = 0x40000
WS_KV = 0x2C0000
WS_UF = 0x540000
WS_YT = 0x720000
WS_PX = 0x9C0000
WS_FH = 0xD80000
WS_END = 0xDA0000
OOB = 0x7ff00000
RINGW = 24576
L_T4 = 98304
T4SZ = 16512
L_X = 147840
XSZ = 4608
L_LN = L_X
LNROW = 1344
LDS_BYTES = 163840
SPIN_MAX = 200000

sQ, sK, sV, sSK, sHK, sD, sW1, sB1, sW2, sB2, sGW, sOUT, sWS = 4, 6, 8, 10, 12, 14, 18, 20, 22, 24, 26, 28, 30
rWS, rW, rK, rH = 32, 36, 40, 44
sN = 48
sWave, sR, sDT, sFT, sDT2, sST2, sP0, sNCH, sRot, sRing = 50, 51, 52, 53, 54, 55, 56, 57, 58, 59
sKS = 60
sT0, sT1, sSpin = 16, 17, 3
sWoff = 76
sAct = 77
sStamp = 78
sOOB = 94
sRot2 = 95
sx, sj, t2, t3 = 96, 97, 98, 99
sFU, sC40, sChE, sChM = 6, 7, 12, 13
sW2o = [8, 9, 10, 11, 14, 15, 18, 19, 20, 21, 26, 27]
sUo = [40, 41, 42, 43, 44, 45, 46, 47, 0, 1, 30, 31]

a = Asm()
nstamp = [0]
stamp_names = []


def stamp(name):
    only = [x[7:].split(',') for x in sys.argv if x.startswith('--only=')]
    if STAMPS and name not in P['nost'].split(',') and (not only or name in only[0]):
        i = nstamp[0]
        nstamp[0] += 1
        stamp_names.append(name)
        assert i < 16
        a.atomic = True
        a('s_memtime s[100:101]' if '--cyc' in sys.argv else 's_memrealtime s[100:101]')
        a('s_waitcnt lgkmcnt(0)')
        a.atomic = False
        a('s_mov_b32 %s, s100' % sr(sStamp + i))


vLane, vG, vU, vN = 1, 2, 3, 4
vT = 6
vWo = 16
vTr = 20
vHo = 24
vB1 = 28
vPoll = 36
vPo = 38
vXa = 40
vMisc = 44
vAe, vBe, vAm, vBm = 52, 53, 54, 55
vA8 = dict(e=[52, 24, 44, 25, 45, 26, 46, 27], m=[54, 63, 57, 13, 59, 50, 61, 51])
vADe, vADm = 56, 60
t0, t1, t4 = vT + 4, vT + 5, vT + 6
vTr2, vWo2 = 248, 252


def poll_issue(voff):
    a('buffer_load_dwordx2 %s, %s, %s, 0 offen sc1' % (vr(vPoll, 2), vr(voff), sr(rWS, 4)), tag='poll')


def poll_check(name, voff):
    a.wait_vm('poll')
    a('v_cmp_ne_u64 vcc, %s, %s' % (sr(sN, 2), vr(vPoll, 2)))
    a('s_cbranch_vccz %s_ok' % name)
    save, sh = list(a.vm), list(a.hist)
    a('s_mov_b32 %s, 0' % sr(sSpin))
    a.label(name)
    if P['pmask']:
        a('s_mov_b64 exec, vcc')
    if P['slp']:
        a('s_sleep %d' % P['slp'])
    a('buffer_load_dwordx2 %s, %s, %s, 0 offen sc1' % (vr(vPoll, 2), vr(voff), sr(rWS, 4)))
    a('s_waitcnt vmcnt(0)')
    a('v_cmp_ne_u64 vcc, %s, %s' % (sr(sN, 2), vr(vPoll, 2)))
    a('s_add_u32 %s, %s, 1' % (sr(sSpin), sr(sSpin)))
    a('s_cbranch_vccz %s_out' % name)
    a('s_cmp_lt_u32 %s, %d' % (sr(sSpin), SPIN_MAX))
    a('s_cbranch_scc1 %s' % name)
    a.label(name + '_out')
    a('s_mov_b64 exec, -1')
    a.label(name + '_ok')
    a.vm, a.hist = save, sh


vL8 = 47


def flag(soff, lg=3):
    a('s_mov_b64 exec, %d' % ((1 << (1 << (lg - 3))) - 1 if P['ffull'] else 1))
    a('buffer_store_dwordx2 %s, %s, %s, %s offen sc1' % (vr(vN, 2), vr(vL8), sr(rWS, 4), sr(soff)), tag='flag')
    a('s_mov_b64 exec, -1')


def dma_list(which, ks, slot):
    L = []
    if which == 'w1':
        L += [f's_add_u32 s{sWoff}, s{sRot}, {ks}', f's_and_b32 s{sWoff}, s{sWoff}, 7',
              f's_mul_i32 s{sWoff}, s{sWoff}, {32*3072}']
    L.append('s_add_u32 m0, %s, %d' % (sr(sRing), slot * 4096))
    L = [(x, None) for x in L]
    for jj in range(4):
        L.append(('buffer_load_dwordx4 %s, %s, %s offen offset:%d lds' % (
            vr((vWo if which == 'w1' else vWo2) + jj), sr(rW, 4), sr(sWoff if which == 'w1' else sW2o[ks]), 1024 * jj), (which, ks)))
    return L


def D(which, ks, slot):
    for x, t in dma_list(which, ks, slot):
        a(x, tag=t)


def areg(which, ks):
    return 16 * ks if which == 'w1' else (128 + 16 * ks) % 256


def tr_list(which, ks, slot):
    hs = 512 if which == 'w1' else 2048
    return [('ds_read_b64_tr_b16 %s, %s offset:%d' % (
        ar(areg(which, ks) + 4 * n + 2 * hh, 2), vr((vTr if which == 'w1' else vTr2) + n), slot * 4096 + hh * hs), ('tr', which, ks))
        for n in range(4) for hh in range(2)]


def T(which, ks, slot):
    a.wait_vm((which, ks))
    for x, t in tr_list(which, ks, slot):
        a(x, tag=t)


def reduce32(v, tmp):
    for r in (8, 4, 2, 1):
        a('v_add_f32 %s, %s, %s row_ror:%d' % (vr(v), vr(v), vr(v), r))
    a('v_mov_b32 %s, %s' % (vr(tmp), vr(v)))
    a('v_permlane16_swap_b32 %s, %s' % (vr(v), vr(tmp)))
    a('v_add_f32 %s, %s, %s' % (vr(v), vr(v), vr(tmp)))


def chan_of(dst, pos):
    a(f'''
    s_cmp_ge_u32 s{pos}, 320
    s_cselect_b32 s{t3}, 639, 0
    s_lshl_b32 s{dst}, s{pos}, 1
    s_sub_u32 s{dst}, s{dst}, s{t3}
    ''')


if STAMPS:
    a('s_memtime s[100:101]' if '--cyc' in sys.argv else 's_memrealtime s[100:101]')
a('s_load_dwordx16 s[4:19], s[0:1], 0')
a('s_cmp_ge_u32 s2, 256')
a('s_cbranch_scc1 L_end')
a('s_load_dwordx8 s[20:27], s[0:1], 64')
a('s_load_dwordx2 s[28:29], s[0:1], 96')
a('s_load_dwordx2 s[30:31], s[0:1], 112')
vQo, vQo2, vL5, vRow = vT, vT + 1, vT + 2, vT + 3
vQ = 64


def code_prefetch():
    a.raw('    s_getpc_b64 s[48:49]')
    a.label('L_pc')
    a(f"""
    v_lshrrev_b32 v{t0}, 4, v0
    v_and_or_b32 v{t0}, v0, 3, v{t0}
    v_lshl_add_u32 v{t0}, s{sj}, 4, v{t0}
    v_lshlrev_b32 v{t0}, 6, v{t0}
    v_min_u32 v{t0}, L_end-L_pc, v{t0}
    s_mov_b64 exec, 15
    global_load_dword v207, v{t0}, s[48:49]
    s_mov_b64 exec, -1
    """)


def q_loads():
    a('s_waitcnt lgkmcnt(0)')
    a('global_load_dwordx4 %s, %s, %s' % (vr(vQ, 4), vr(vQo), sr(sQ, 2)), tag='q')
    a('global_load_dwordx4 %s, %s, %s offset:512' % (vr(vQ + 4, 4), vr(vQo), sr(sQ, 2)), tag='q')
    a('global_load_dwordx2 %s, %s, %s offset:1024' % (vr(vQ + 8, 2), vr(vQo2), sr(sQ, 2)), tag='q')


a(f's_lshr_b32 s{sj}, s2, 3')
if P['cp0'] == 1:
    code_prefetch()
a(f"""
s_and_b32 s{sx}, s2, 7
s_lshl_b32 s{sR}, s{sx}, 5
s_add_u32 s{sR}, s{sR}, s{sj}
v_and_b32 v{vL5}, 31, v0
v_lshrrev_b32 v{vRow}, 5, v0
v_lshl_add_u32 v{vQo2}, s{sR}, 3, v{vRow}
v_mul_u32_u24 v{vQo2}, 1280, v{vQo2}
v_lshl_add_u32 v{vQo}, v{vL5}, 4, v{vQo2}
v_lshl_add_u32 v{vQo2}, v{vL5}, 3, v{vQo2}
""")
if P['q0']:
    q_loads()
if P['cp0'] == 2:
    code_prefetch()
a('v_lshrrev_b32 %s, 6, v0' % vr(t0))
a('v_and_b32 %s, 63, v0' % vr(vLane))
a('v_readfirstlane_b32 %s, %s' % (sr(sWave), vr(t0)))
a('v_lshrrev_b32 %s, 4, %s' % (vr(vG), vr(vLane)))
a('v_and_b32 %s, 15, %s' % (vr(vU), vr(vLane)))
sKW = 3
a(f"""
s_mul_i32 s{t2}, s{sj}, 52
s_lshr_b32 s{t2}, s{t2}, 8
s_mul_i32 s{t3}, s{t2}, 5
s_sub_u32 s{sDT}, s{sj}, s{t3}
""")
if P['wrot']:
    a(f"""
    s_add_u32 s{sRot}, s{sDT}, s{sWave}
    s_cmp_ge_u32 s{sRot}, 5
    s_cselect_b32 s{t3}, 5, 0
    s_sub_u32 s{sRot}, s{sRot}, s{t3}
    s_mul_i32 s{sRot}, s{sRot}, 13
    """)
else:
    a(f's_mul_i32 s{sRot}, s{sDT}, 13')
a(f"""
s_lshr_b32 s{sRot}, s{sRot}, 3
s_and_b32 s{t3}, s{sx}, 1
s_lshl1_add_u32 s{sDT}, s{sDT}, s{t3}
s_lshl2_add_u32 s{sKW}, s{t3}, s{sWave}
s_lshr_b32 s{t3}, s{sx}, 1
s_mul_i32 s{sFT}, s{t3}, 6
s_add_u32 s{sFT}, s{sFT}, s{t2}
""")
a(f"""
s_cmp_lt_u32 s{sj}, 30
s_cselect_b32 s{sAct}, 1, 0
s_mul_i32 s{sRing}, s{sWave}, {RINGW}
""")
if P['hrot']:
    a(f"""
    s_mul_i32 s{t2}, s{t2}, {P['hrot']}
    s_lshr_b32 s{t2}, s{t2}, 4
    s_add_u32 s{sRot}, s{sRot}, s{t2}
    """)
if P['xrot']:
    a(f"""
    s_lshr_b32 s{t2}, s{sx}, 1
    s_mul_i32 s{t2}, s{t2}, {P['xrot']}
    s_add_u32 s{sRot}, s{sRot}, s{t2}
    """)
a(f"""
v_lshrrev_b32 v{t0}, 3, v{vLane}
v_mul_u32_u24 v{t0}, 3072, v{t0}
s_mul_i32 s{t2}, s{sKW}, {256*3072}
s_lshl_b32 s{t3}, s{sFT}, 7
s_add_u32 s{t2}, s{t2}, s{t3}
v_add_u32 v{t0}, s{t2}, v{t0}
v_and_b32 v{t1}, 7, v{vLane}
v_and_b32 v{t4}, 1, v{vG}
v_lshlrev_b32 v{t4}, 1, v{t4}
v_xor_b32 v{t1}, v{t1}, v{t4}
v_xor_b32 v{t4}, 4, v{t1}
v_lshl_add_u32 v{vWo}, v{t1}, 4, v{t0}
v_lshl_add_u32 v{vWo+1}, v{t4}, 4, v{t0}
v_add_u32 v{vWo+2}, {2*(24576-1024)}, v{vWo}
v_add_u32 v{vWo+3}, {3*(24576-1024)}, v{vWo+1}
v_add_u32 v{vWo+1}, {24576-1024}, v{vWo+1}
""")
vX = 76
vGWp = 96
vHp = vHt = 108
vKV1, vKV2 = 120, 144
vSS, vSN, vSNew, vK2a = 168, 192, 196, 156
vGa, vGa2, vGs = 236, 237, 238
vK2t, vSa, vSna, vMla, vT4a = 160, 161, 164, 204, 240
vBf = 208
sCh = [96, 97]
vLw, vLw2, vLr, vHs, vHs1, vHs2 = vMisc, vMisc + 1, vMisc + 2, vMisc + 3, vMisc + 4, vMisc + 5
vKo, vKo4, vKoh, vTo, vKs = 240, 241, 242, 243, 234
vDe, vDm = 246, 247
vXg, vXw, vPkv, vUo = vMisc, vMisc + 1, vMisc + 2, vMisc + 4
vUst = 245
vPs, vPr = 243, 244
vPu = 39
vEr, vYe, vYm, vMw, vMr = 6, 8, 9, 14, 15
vXl = 224
step = {}


def script_step(name):
    def deco(f):
        step[name] = f
        return f
    return deco


@script_step('Q')
def _():
    if not P['q0']:
        q_loads()
    if P['cp0'] == 0:
        code_prefetch()
    if STAMPS:
        nstamp[0] += 1
        stamp_names.append('start')
        a('s_mov_b32 %s, s100' % sr(sStamp))
    a(f"""
    s_load_dwordx2 s[{sN}:{sN+1}], s[{sWS}:{sWS+1}], {WS_EPOCH}
    s_mov_b32 s{rW}, s{sW1}
    s_and_b32 s{rW+1}, s{sW1+1}, 0xffff
    s_mul_i32 s{rW+2}, s{sAct}, {2048*3072}
    s_mov_b32 s{rW+3}, 0x20000
    """)


@script_step('SA')
def _():
    if P['arr2'] == 2:
        a(f"""
        s_and_b32 s{t3}, s{sx}, 1
        s_lshl_b32 s{sDT2}, s{t3}, 2
        s_lshl_b32 s{sRot2}, s{t3}, 1
        s_lshr_b32 s{t3}, s{sx}, 1
        s_lshl_b32 s{sST2}, s{t3}, 3
        s_lshr_b32 s{t2}, s{sj}, 2
        s_add_u32 s{sST2}, s{sST2}, s{t2}
        s_and_b32 s{t3}, s{sj}, 3
        s_add_u32 s{sDT2}, s{sDT2}, s{t3}
        s_mul_i32 s{t3}, s{t3}, 3
        s_add_u32 s{sRot2}, s{sRot2}, s{t3}
        """)
    else:
        a(f"""
        s_and_b32 s{sDT2}, s{sj}, 7
        s_lshr_b32 s{t2}, s{sj}, 3
        s_lshl2_add_u32 s{sST2}, s{sx}, s{t2}
        s_mul_i32 s{t3}, s{sWave}, {P['wrot2']}
        s_add_u32 s{sRot2}, s{sDT2}, s{t3}
        s_and_b32 s{sRot2}, s{sRot2}, 7
        s_mul_i32 s{sRot2}, s{sRot2}, 3
        s_lshr_b32 s{sRot2}, s{sRot2}, 1
        """)
    if P['urot']:
        a(f"""
        s_mul_i32 s{t2}, s{t2}, {P['urot']}
        s_lshr_b32 s{t2}, s{t2}, 4
        s_add_u32 s{sRot2}, s{sRot2}, s{t2}
        s_cmp_ge_u32 s{sRot2}, 12
        s_cselect_b32 s{t3}, 12, 0
        s_sub_u32 s{sRot2}, s{sRot2}, s{t3}
        """)
    if P['xrot2']:
        a(f"""
        s_lshr_b32 s{t2}, s{sx}, {P['arr2']-1}
        s_mul_i32 s{t2}, s{t2}, {P['xrot2']}
        s_lshr_b32 s{t2}, s{t2}, 1
        s_add_u32 s{sRot2}, s{sRot2}, s{t2}
        s_cmp_ge_u32 s{sRot2}, 12
        s_cselect_b32 s{t3}, 12, 0
        s_sub_u32 s{sRot2}, s{sRot2}, s{t3}
        """)
    a(f"""
    s_mul_i32 s{sP0}, s{sx}, 80
    s_lshr_b32 s{t3}, s{sj}, 1
    s_mul_i32 s{t3}, s{t3}, 5
    s_add_u32 s{sP0}, s{sP0}, s{t3}
    s_and_b32 s{t3}, s{sj}, 1
    s_sub_u32 s{sNCH}, 3, s{t3}
    s_mul_i32 s{t3}, s{t3}, 3
    s_add_u32 s{sP0}, s{sP0}, s{t3}
    s_mov_b32 s{sOOB}, {OOB}
    s_mov_b32 s{rWS}, s{sWS}
    s_and_b32 s{rWS+1}, s{sWS+1}, 0xffff
    s_mov_b32 s{rWS+2}, {WS_END}
    s_mov_b32 s{rWS+3}, 0x20000
    s_mov_b32 s{rK}, s{sK}
    s_and_b32 s{rK+1}, s{sK+1}, 0xffff
    s_mov_b32 s{rK+2}, {2048*1280}
    s_mov_b32 s{rK+3}, 0x20000
    s_mov_b32 s{rH}, s{sHK}
    s_and_b32 s{rH+1}, s{sHK+1}, 0xffff
    s_mov_b32 s{rH+2}, {640*4096}
    s_mov_b32 s{rH+3}, 0x20000
    """)
    chan_of(sCh[0], sP0)
    a(f"""
    s_add_u32 s{t2}, s{sP0}, s{sNCH}
    s_sub_u32 s{t2}, s{t2}, 1
    """)
    chan_of(sChE, t2)
    a(f"""
    s_lshr_b32 s{t2}, s{sWave}, 1
    s_add_u32 s{t2}, s{t2}, s{sP0}
    """)
    chan_of(sChM, t2)
    a(f"""
    s_mov_b32 s{sC40}, 40960
    v_lshrrev_b32 v{t0}, 2, v{vU}
    v_lshl_add_u32 v{t0}, v{vG}, 3, v{t0}
    v_lshlrev_b32 v{t0}, 7, v{t0}
    v_and_b32 v{t1}, 3, v{vU}
    v_lshl_add_u32 v{t0}, v{t1}, 3, v{t0}
    v_add_u32 v{t0}, s{sRing}, v{t0}
    v_lshrrev_b32 v{t1}, 3, v{vU}
    v_and_b32 v{t4}, 1, v{vG}
    v_lshl_add_u32 v{t1}, v{t4}, 1, v{t1}
    """)
    for n in range(4):
        a(f"""
        v_xor_b32 v{t4}, {n}, v{t1}
        v_lshl_add_u32 v{vTr+n}, v{t4}, 5, v{t0}
        """)
    a(f"""
    v_mul_u32_u24 v{vLw2}, {LNROW}, v{vRow}
    v_add_u32 v{vLw2}, {L_LN}, v{vLw2}
    v_lshl_add_u32 v{vLw}, v{vL5}, 4, v{vLw2}
    v_lshl_add_u32 v{vLw2}, v{vL5}, 3, v{vLw2}
    v_lshrrev_b32 v{t0}, 2, v{vU}
    v_mul_u32_u24 v{t0}, {LNROW}, v{t0}
    v_and_b32 v{t1}, 3, v{vU}
    v_lshl_add_u32 v{t0}, v{t1}, 3, v{t0}
    v_lshl_add_u32 v{t0}, v{vG}, 5, v{t0}
    s_lshl_b32 s{t2}, s{sWave}, 7
    s_add_u32 s{t2}, s{t2}, {L_LN}
    v_add_u32 v{vLr}, s{t2}, v{t0}
    s_mul_i32 s{t3}, s{sR}, 10240
    s_add_u32 s{t2}, s{t3}, {WS_HT8}
    v_lshl_add_u32 v{vHs}, v0, 4, s{t2}
    v_add_u32 v{vHs1}, 4096, v{vHs}
    s_cmp_lt_u32 s{sWave}, 2
    s_cselect_b32 s{t2}, 8192, s{sOOB}
    v_add_u32 v{vHs2}, s{t2}, v{vHs}
    v_lshl_add_u32 v{vKo}, v0, 2, s{t3}
    v_add_u32 v{vKo4}, 5120, v{vKo}
    v_subrev_u32 v{vKoh}, 3840, v{vKo}
    v_lshlrev_b32 v{vTo}, 4, v0
    v_add_u32 v{vKs}, {WS_KV-WS_HT8}, v{vHs}
    v_add_u32 v{vKs+1}, 5120, v{vKs}
    v_lshlrev_b32 v{vGa}, 4, v{vL5}
    v_lshlrev_b32 v{vGa2}, 3, v{vL5}
    s_lshl_b32 s{t2}, s{sR}, 5
    s_add_u32 s{t2}, s{t2}, {WS_G}
    v_lshl_add_u32 v{vGs}, v{vRow}, 2, s{t2}
    v_mul_u32_u24 v{t0}, 2560, v{vG}
    s_lshl_b32 s{t2}, s{sWave}, 6
    v_lshl_add_u32 v{t1}, v{vU}, 2, s{t2}
    s_add_u32 s{t3}, s{t3}, {1024+3840}
    v_sub_u32 v{t0}, v{t1}, v{t0}
    v_add_u32 v{vK2a}, s{t3}, v{t0}
    v_lshlrev_b32 v{t1}, 2, v{t1}
    v_add_u32 v{vK2t}, 4096, v{t1}
    v_add_u32 v{vK2a+1}, 1280, v{vK2a}
    v_add_u32 v{vK2a+2}, 2560, v{vK2a}
    v_add_u32 v{vK2a+3}, 3840, v{vK2a}
    s_lshl_b32 s{t2}, s{sWave}, 10
    v_lshl_add_u32 v{t0}, v{vLane}, 3, s{t2}
    v_lshl_add_u32 v{vSa}, s{sCh[0]}, 12, v{t0}
    v_add_u32 v{vSa+1}, 8192, v{vSa}
    v_lshl_add_u32 v{vSa+2}, s{sChE}, 12, v{t0}
    s_lshl1_add_u32 s{t2}, s{sWave}, s{sCh[0]}
    s_min_u32 s{t2}, s{t2}, s{sChE}
    s_lshl_b32 s{t2}, s{t2}, 12
    """)
    for jj in range(3):
        a(f"""
        v_subrev_u32 v{t0}, {8-jj}, v{vLane}
        v_lshl_add_u32 v{t1}, v{t0}, 2, s{t2}
        v_and_or_b32 v{vSna+jj}, v{t0}, s{sOOB}, v{t1}
        """)
    a(f"""
    v_lshrrev_b32 v{t0}, 2, v{vLane}
    v_lshl_add_u32 v{t0}, v{t0}, 1, s{sCh[0]}
    v_min_u32 v{t0}, s{sChE}, v{t0}
    v_lshlrev_b32 v{vMla}, 1, v{t0}
    v_lshlrev_b32 v{vMla+1}, 12, v{t0}
    s_min_u32 s{t2}, s{sFT}, 23
    s_lshl_b32 s{t2}, s{t2}, 7
    v_lshl_add_u32 v{vMla+2}, v{vG}, 3, s{t2}
    """)


step['CP'] = lambda: None


@script_step('LN')
def _():
    a.wait_vm('q')
    stamp('q')
    for i in range(10):
        a('v_lshlrev_b32 %s, 16, %s' % (vr(vX + 2 * i), vr(vQ + i)))
        a('v_and_b32 %s, 0xffff0000, %s' % (vr(vX + 2 * i + 1), vr(vQ + i)))
    vS = vT + 4
    a('v_pk_add_f32 %s, %s, %s' % (vr(vS, 2), vr(vX, 2), vr(vX + 2, 2)))
    a('v_pk_add_f32 %s, %s, %s' % (vr(vS + 2, 2), vr(vX + 4, 2), vr(vX + 6, 2)))
    for i in range(4, 10):
        d = vS + 2 * (i & 1)
        a('v_pk_add_f32 %s, %s, %s' % (vr(d, 2), vr(d, 2), vr(vX + 2 * i, 2)))
    a('v_pk_add_f32 %s, %s, %s' % (vr(vS, 2), vr(vS, 2), vr(vS + 2, 2)))
    a('v_add_f32 %s, %s, %s' % (vr(vS), vr(vS), vr(vS + 1)))
    reduce32(vS, vS + 1)
    a('v_mul_f32 %s, 0x%08x, %s' % (vr(vS), f2u(-1.0 / 640), vr(vS)))
    for i in range(10):
        a('v_pk_add_f32 %s, %s, %s op_sel_hi:[1,0]' % (vr(vX + 2 * i, 2), vr(vX + 2 * i, 2), vr(vS, 2)))
    a('v_pk_mul_f32 %s, %s, %s' % (vr(vS, 2), vr(vX, 2), vr(vX, 2)))
    a('v_pk_mul_f32 %s, %s, %s' % (vr(vS + 2, 2), vr(vX + 2, 2), vr(vX + 2, 2)))
    for i in range(2, 10):
        d = vS + 2 * (i & 1)
        a('v_pk_fma_f32 %s, %s, %s, %s' % (vr(d, 2), vr(vX + 2 * i, 2), vr(vX + 2 * i, 2), vr(d, 2)))
    a('v_pk_add_f32 %s, %s, %s' % (vr(vS, 2), vr(vS, 2), vr(vS + 2, 2)))
    a('v_add_f32 %s, %s, %s' % (vr(vS), vr(vS), vr(vS + 1)))
    reduce32(vS, vS + 1)
    a('v_mov_b32 %s, 0x%08x' % (vr(vS + 1), f2u(1e-5)))
    a('v_fmac_f32 %s, 0x%08x, %s' % (vr(vS + 1), f2u(1.0 / 640), vr(vS)))
    a('v_rsq_f32 %s, %s' % (vr(vS), vr(vS + 1)))
    for i in range(10):
        a('v_pk_mul_f32 %s, %s, %s op_sel_hi:[1,0]' % (vr(vX + 2 * i, 2), vr(vX + 2 * i, 2), vr(vS, 2)))
    for i in range(10):
        a('v_cvt_pk_bf16_f32 %s, %s, %s' % (vr(vHp + i), vr(vX + 2 * i), vr(vX + 2 * i + 1)))
    a('ds_write_b128 %s, %s' % (vr(vLw), vr(vHp, 4)))
    a('ds_write_b128 %s, %s offset:512' % (vr(vLw), vr(vHp + 4, 4)))
    a('ds_write_b64 %s, %s offset:1024' % (vr(vLw2), vr(vHp + 8, 2)))
    a('s_waitcnt lgkmcnt(0)')
    a('s_barrier')
    for m in range(3):
        for hh in range(2):
            a('ds_read_b64_tr_b16 %s, %s offset:%d' % (
                vr(vHt + 4 * m + 2 * hh, 2), vr(vLr), 512 * m + 4 * LNROW * hh), tag=('ht', m))
    a(f"""
    s_add_u32 s{sN}, s{sN}, 0x9e3779b1
    s_add_u32 s{sN+1}, s{sN+1}, 0x85ebca77
    v_mov_b32 v{vN}, s{sN}
    v_mov_b32 v{vN+1}, s{sN+1}
    """)
    for m, vo in enumerate((vHs, vHs1, vHs2)):
        a.wait_lg(('ht', m))
        a('buffer_store_dwordx4 %s, %s, %s, 0 offen sc1' % (vr(vHt + 4 * m, 4), vr(vo), sr(rWS, 4)), tag='hst')
    stamp('hst')


small = {}
small['GW'] = [('global_load_dwordx4 %s, %s, %s' % (vr(vGWp, 4), vr(vGa), sr(sGW, 2)), 'gw'),
               ('global_load_dwordx4 %s, %s, %s offset:512' % (vr(vGWp + 4, 4), vr(vGa), sr(sGW, 2)), 'gw'),
               ('global_load_dwordx2 %s, %s, %s offset:1024' % (vr(vGWp + 8, 2), vr(vGa2), sr(sGW, 2)), 'gw')]
small['KL'] = []
for r in list(range(3, 11)) + [0, 1, 2]:
    vo, off = ((vKoh, 1280 * r) if r < 3 else (vKo, 1280 * (r - 3)) if r < 7 else (vKo4, 1280 * (r - 7)))
    small['KL'].append(('buffer_load_dword %s, %s, %s, 0 offen offset:%d' % (
        vr(vKV1 + 4 + r), vr(vo), sr(rK, 4), off), 'kv1'))
small['KL'].append(('global_load_dwordx4 %s, %s, %s' % (vr(vKV1, 4), vr(vTo), sr(sSK, 2)), 'kv1'))
small['VL'] = []
for r in range(8):
    vo, off = ((vKo, 1280 * r) if r < 4 else (vKo4, 1280 * (r - 4)))
    small['VL'].append(('global_load_dword %s, %s, %s offset:%d' % (vr(vKV1 + 15 + r), vr(vo), sr(sV, 2), off), 'kv1'))
small['K2L'] = [('buffer_load_dword %s, %s, %s, 0 offen offset:%d' % (
    vr(vKV2 + 4 + m), vr(vK2a + min(m, 3)), sr(rK, 4), 1280 if m == 4 else 0), 'kv2') for m in range(5)]
small['K2L'] += [('global_load_dword %s, %s, %s offset:%d' % (
    vr(vKV2 + 9 + m), vr(vK2a + 3), sr(sV, 2), 1280 * m), 'kv2') for m in range(2)]
small['K2L'].append(('global_load_dwordx4 %s, %s, %s' % (vr(vKV2, 4), vr(vK2t), sr(sSK, 2)), 'kv2'))
small['SSL'] = [('buffer_load_dwordx4 %s, %s, %s, 0 offen offset:%d' % (
    vr(vSS + 8 * t + 4 * c, 4), vr(vSa + t), sr(rH, 4), 512 * c), 'ss') for t in range(3) for c in range(2)]
small['SSL'] += [('buffer_load_dword %s, %s, %s, 0 offen' % (vr(vSN + jj), vr(vSna + jj), sr(rH, 4)), 'ss')
                 for jj in range(3)]
small['ML'] = [('global_load_ushort %s, %s, %s' % (vr(vDe), vr(vMla), sr(sD, 2)), 'dd'),
               ('buffer_load_ushort %s, %s, %s, 0 offen' % (vr(vDm), vr(vMla + 1), sr(rH, 4)), 'dd')]
small['ML'] += [('global_load_dwordx2 %s, %s, %s offset:%d' % (
    vr(vB1 + 2 * n, 2), vr(vMla + 2), sr(sB1, 2), 32 * n), 'b1') for n in range(4 if 'M' not in P['dbg'] else 1)]

W = []


NW = P['nw']
NSTEP = 8 + NW
wk = lambda i: ('w1', i) if i < 8 else ('w2', i - 8)
done_steps = set()


def w2_desc():
    assert NW == 0 or {'ST', 'SL'} <= done_steps
    a(f"""
    s_mov_b32 s{rW}, s{sW2}
    s_and_b32 s{rW+1}, s{sW2+1}, 0xffff
    s_mov_b32 s{rW+2}, {1536*4096}
    """)


def w_dma(i):
    L = dma_list(*wk(i), i % 6)
    pre = [lambda: a.wait_lg(('tr', *wk(i - 6)))] if i >= 6 else []
    if i == 8:
        pre.append(w2_desc)
    W.append(('D', i, False, pre + L[:-3]))
    for k in range(3):
        W.append(('D', i, k == 2, [L[-3 + k]]))


def w_tr(i):
    L = tr_list(*wk(i), i % 6)
    W.append(('T', i, False, [lambda: a.wait_vm(wk(i))] + L[:4]))
    W.append(('T', i, True, L[4:]))


nd = nt = 0
for tok in P['wscript'].replace('_', ' ').split():
    if tok in small:
        for k, it in enumerate(small[tok]):
            W.append(('W', tok, k == len(small[tok]) - 1, [it]))
    elif tok[0] == 'D':
        assert int(tok[1:]) == nd and nd < nt + 6
        w_dma(nd)
        nd += 1
    else:
        assert int(tok[1:]) == nt and nt < nd
        w_tr(nt)
        nt += 1
while nt < NSTEP:
    w_tr(nt)
    nt += 1
    while nd < NSTEP and nd < nt + 5:
        w_dma(nd)
        nd += 1
T4Q = []
wdone = set()


def w_atom():
    kind, i, fin_, items = W.pop(0)
    was = a.in_hook
    a.in_hook = True
    for it in items:
        emit(it)
    a.in_hook = was
    if fin_:
        wdone.add((kind, i))


def w_until(kind, i):
    n = 0
    while (kind, i) not in wdone:
        w_atom()
        n += 1
        if T4Q and n % 2 == 0 and P['t4rate'] < 99:
            was = a.in_hook
            a.in_hook = True
            t4_piece()
            a.in_hook = was


rate, since = [0], [0, 0]


def w_hook():
    since[0] += 1
    if rate[0] and since[0] >= rate[0] and W and not (W[0][:2] == ('D', 8) and 'ST' not in done_steps):
        since[0] = 0
        w_atom()
    since[1] += 1
    if T4Q and since[1] >= P['t4rate']:
        since[1] = 0
        t4_piece()


@script_step('HF')
def _():
    a(f"""
    v_lshlrev_b32 v{vL8}, 3, v{vLane}
    s_lshl_b32 s{t2}, s{sWave}, 8
    s_add_u32 s{t2}, s{t2}, s{sR}
    s_lshl_b32 s{t2}, s{t2}, {P['fsh']}
    s_add_u32 s{t2}, s{t2}, {WS_FH}
    """)
    a.wait_vm('hst')
    flag(t2, P['fsh'])
    stamp('hflag')


@script_step('GATE')
def _():
    w_until('W', 'GW')
    a.wait_vm('gw')
    vZ = vT + 4
    a('v_mov_b32 %s, 0' % vr(vZ))
    for i in range(10):
        a('v_dot2_f32_bf16 %s, %s, %s, %s' % (vr(vZ), vr(vQ + i), vr(vGWp + i), vr(vZ)))
    reduce32(vZ, vZ + 1)
    a(f"""
    v_mul_f32 v{vZ}, 0xbfb8aa3b, v{vZ}
    v_exp_f32 v{vZ}, v{vZ}
    v_add_f32 v{vZ}, 1.0, v{vZ}
    v_rcp_f32 v{vZ}, v{vZ}
    s_mov_b32 exec_lo, 1
    s_mov_b32 exec_hi, 1
    """)
    a('buffer_store_dword %s, %s, %s, 0 offen sc1' % (vr(vZ), vr(vGs), sr(rWS, 4)), tag='kvst')
    a('s_mov_b64 exec, -1')


vP, vKu, vAcc, vVt, vKp = 64, 72, 94, 110, 112


def kv_compute(b):
    for c in range(2):
        for h in range(2):
            a('v_lshlrev_b32 %s, 16, %s' % (vr(vP + 4 * h + c), vr(b + 2 * c + h)))
            a('v_and_b32 %s, 0xffff0000, %s' % (vr(vP + 4 * h + 2 + c), vr(b + 2 * c + h)))
    for r in range(11):
        a('v_lshlrev_b32 %s, 16, %s' % (vr(vKu + 2 * r), vr(b + 4 + r)))
        a('v_and_b32 %s, 0xffff0000, %s' % (vr(vKu + 2 * r + 1), vr(b + 4 + r)))
    for r in range(8):
        d = vr(vAcc + 2 * r, 2)
        a('v_pk_mul_f32 %s, %s, %s' % (d, vr(vP + 6, 2), vr(vKu + 2 * r, 2)))
        a('v_lshlrev_b32 %s, 16, %s' % (vr(vVt), vr(b + 15 + r)))
        for j in (2, 1, 0):
            a('v_pk_fma_f32 %s, %s, %s, %s' % (d, vr(vP + 2 * j, 2), vr(vKu + 2 * (r + 3 - j), 2), d))
        a('v_and_b32 %s, 0xffff0000, %s' % (vr(vVt + 1), vr(b + 15 + r)))
        a('v_pk_mul_f32 %s, %s, %s' % (d, d, vr(vVt, 2)))
    for c in range(2):
        for j in range(4):
            a('v_cvt_pk_bf16_f32 %s, %s, %s' % (
                vr(vKp + 4 * c + j), vr(vAcc + 2 * (7 - 2 * j) + c), vr(vAcc + 2 * (6 - 2 * j) + c)))
    a('buffer_store_dwordx4 %s, %s, %s, 0 offen sc1' % (vr(vKp, 4), vr(vKs), sr(rWS, 4)), tag='kvst')
    a('buffer_store_dwordx4 %s, %s, %s, 0 offen sc1' % (vr(vKp + 4, 4), vr(vKs + 1), sr(rWS, 4)), tag='kvst')


@script_step('KC')
def _():
    w_until('W', 'KL')
    w_until('W', 'VL')
    a.wait_vm('kv1')
    kv_compute(vKV1)


@script_step('K2C')
def _():
    b = vKV2
    w_until('W', 'K2L')
    a.wait_vm('kv2')
    for c in range(2):
        for h in range(2):
            a('v_lshlrev_b32 %s, 16, %s' % (vr(vP + 4 * h + c), vr(b + 2 * c + h)))
            a('v_and_b32 %s, 0xffff0000, %s' % (vr(vP + 4 * h + 2 + c), vr(b + 2 * c + h)))
    for r in range(7):
        a('v_lshlrev_b32 %s, 16, %s' % (vr(vKu + 2 * r), vr(b + 4 + r)))
        a('v_and_b32 %s, 0xffff0000, %s' % (vr(vKu + 2 * r + 1), vr(b + 4 + r)))
    for r in range(2):
        d = vr(vAcc + 2 * r, 2)
        a('v_pk_mul_f32 %s, %s, %s' % (d, vr(vP + 6, 2), vr(vKu + 2 * r, 2)))
        for j in (2, 1, 0):
            a('v_pk_fma_f32 %s, %s, %s, %s' % (d, vr(vP + 2 * j, 2), vr(vKu + 2 * (r + 3 - j), 2), d))
        a('v_pk_mul_f32 %s, %s, %s' % (d, d, vr(vKu + 10 + 2 * r, 2)))
    a(f"""
    s_mul_i32 s{t2}, s{sR}, 10240
    s_add_u32 s{t2}, s{t2}, {WS_KV+4096}
    s_lshl_b32 s{t3}, s{sWave}, 8
    s_add_u32 s{t2}, s{t2}, s{t3}
    v_lshl_add_u32 v{t0}, v{vU}, 4, s{t2}
    v_lshl_add_u32 v{t0}, v{vG}, 2, v{t0}
    v_add_u32 v{t1}, 5120, v{t0}
    """)
    for c in range(2):
        a('v_cvt_pk_bf16_f32 %s, %s, %s' % (vr(vAcc + 4 + c), vr(vAcc + 2 + c), vr(vAcc + c)))
        a('buffer_store_dword %s, %s, %s, 0 offen sc1' % (vr(vAcc + 4 + c), vr((t0, t1)[c]), sr(rWS, 4)), tag='kvst')
    stamp('kvst')


@script_step('T4')
def _():
    w_until('W', 'VL')
    w_until('W', 'SSL')
    a(f"""
    s_min_u32 s{t2}, s{sWave}, 2
    s_mul_i32 s{t2}, s{t2}, {T4SZ}
    s_add_u32 s{t2}, s{t2}, {L_T4}
    v_lshl_add_u32 v{vT4a}, v{vLane}, 4, s{t2}
    s_lshl_b32 s{t2}, s{sWave}, 12
    s_add_u32 s{t2}, s{t2}, {L_T4+128}
    v_lshl_add_u32 v{vT4a+1}, v{vLane}, 5, s{t2}
    """)

    al = lambda d, hi, lo: ('v_alignbit_b32 %s, %s, %s, 16' % (vr(d), vr(hi), vr(lo)), None)
    wr = lambda ad, r, off: ('ds_write_b128 %s, %s offset:%d' % (vr(ad), vr(r, 4), off), 't4')
    q = vSN
    T4Q.append([lambda: a.wait_vm('ss'), al(q + 3, q + 2, q + 1), al(q + 2, q + 1, q), wr(vT4a, q, 0)])
    for t in range(3):
        for c in range(2):
            r, n, off = vSS + 8 * t + 4 * c, vSNew + 4 * c, T4SZ * t + 2048 * c
            T4Q.append([('v_mov_b32 %s, %s' % (vr(n), vr(r + 1)), None), ('v_mov_b32 %s, %s' % (vr(n + 1), vr(r + 2)), None),
                        al(n + 3, r + 3, r + 2), al(n + 2, r + 2, r + 1), wr(vT4a + 1, n, off + 16)])
            T4Q.append([al(r + 3, r + 2, r + 1), al(r + 2, r + 1, r), wr(vT4a + 1, r, off)])


def t4_piece():
    for it in T4Q.pop(0):
        emit(it)


@script_step('KF')
def _():
    a.wait_vm('kvst')
    a('s_barrier')
    a(f"""
    s_lshl_b32 s{t2}, s{sR}, {P['fsk']}
    s_add_u32 s{t2}, s{t2}, {WS_FKV}
    s_cmp_eq_u32 s{sWave}, 0
    s_cbranch_scc0 L_nokvflag
    """)
    a.cond = True
    if 'K' not in P['dbg']:
        flag(t2, P['fsk'])
    a.cond = False
    a.label('L_nokvflag')
    stamp('kvflag')
    a(f"""
    s_mul_i32 s{t2}, s{sWave}, {XSZ}
    s_add_u32 s{t2}, s{t2}, {L_X}
    v_lshl_add_u32 v{t0}, v{vLane}, 3, s{t2}
    v_mov_b32 v{t4}, 0
    v_mov_b32 v{t4+1}, 0
    ds_write_b64 v{t0}, v[{t4}:{t4+1}]
    """)


@script_step('SB')
def _():
    assert 'LN' in done_steps
    w_until('W', 'KL')
    a(f's_lshl_b32 s{t3}, s{sDT}, 10')
    for ks in range(8):
        a(f"""
        s_add_u32 s{t2}, s{sRot}, {ks}
        s_and_b32 s{t2}, s{t2}, 7
        s_mul_i32 s{t2}, s{t2}, s{sC40}
        s_add_u32 s{sKS+8+ks}, s{t2}, s{t3}
        s_xor_b32 s{sKS+ks}, s{sKS+8+ks}, 1024
        """)
    a(f"""
    s_lshl_b32 s{t2}, s{sDT}, 2
    s_add_u32 s{t2}, s{t2}, s{sWave}
    s_mul_i32 s{t3}, s{sFT}, 80
    s_add_u32 s{t3}, s{t3}, s{t2}
    s_lshl_b32 s{t3}, s{t3}, 10
    s_add_u32 s{t3}, s{t3}, {WS_UF}
    s_cmp_eq_u32 s{sAct}, 1
    s_cselect_b32 s{t3}, s{t3}, s{sOOB}
    v_lshl_add_u32 v{vUst}, v{vLane}, 4, s{t3}
    s_mul_i32 s{t2}, s{t2}, 24
    s_add_u32 s{t2}, s{t2}, s{sFT}
    s_lshl_b32 s{t3}, s{t2}, 12
    s_add_u32 s{t3}, s{t3}, {WS_PX}
    s_cmp_eq_u32 s{sAct}, 1
    s_cselect_b32 s{t3}, s{t3}, s{sOOB}
    v_lshl_add_u32 v{vPr}, v{vLane}, 4, s{t3}
    s_bitcmp1_b32 s{sDT}, 0
    s_cselect_b32 s{t3}, -1, 1
    s_mul_i32 s{t3}, s{t3}, {96*4096}
    v_add_u32 v{vPs}, s{t3}, v{vPr}
    s_lshl_b32 s{t2}, s{t2}, {P['fsu']}
    s_add_u32 s{t2}, s{t2}, {WS_FU}
    s_cmp_eq_u32 s{sAct}, 1
    s_cselect_b32 s{sFU}, s{t2}, {WS_DUMMY}
    v_lshlrev_b32 v{vPkv}, {P['fsk']}, v0
    v_add_u32 v{vPkv}, {WS_FKV}, v{vPkv}
    s_and_b32 s{t2}, s{sDT}, 2
    s_lshl_b32 s{t2}, s{t2}, 3
    s_add_u32 s{t2}, s{t2}, s{sKW}
    s_lshl_b32 s{t2}, s{t2}, {5+P['fsh']}
    s_add_u32 s{t2}, s{t2}, {WS_FH}
    v_lshrrev_b32 v{t0}, 5, v{vLane}
    v_and_b32 v{t1}, 31, v{vLane}
    v_lshl_add_u32 v{t0}, v{t0}, 8, v{t1}
    v_lshl_add_u32 v{vPo}, v{t0}, {P['fsh']}, s{t2}
    v_mul_u32_u24 v{t0}, 10240, v{vG}
    v_lshl_add_u32 v{t0}, v{vU}, 4, v{t0}
    s_mul_i32 s{t2}, s{sKW}, {32*10240}
    s_add_u32 s{t2}, s{t2}, {WS_HT8}
    s_cmp_eq_u32 s{sAct}, 1
    s_cselect_b32 s{t2}, s{t2}, s{sOOB}
    """)
    for st in range(4):
        a(f"""
        s_add_u32 s{t3}, s{sWave}, {st+1}
        s_and_b32 s{t3}, s{t3}, 3
        s_lshl_b32 s{t3}, s{t3}, 8
        s_add_u32 s{t3}, s{t3}, s{t2}
        v_add_u32 v{vHo+st}, s{t3}, v{t0}
        """)
    a(f'v_lshl_add_u32 v{vXa+3}, v{vLane}, 4, s{sRing}')
    for st in range(3):
        a(f"""
        s_add_u32 s{t3}, s{sWave}, {3-st}
        s_and_b32 s{t3}, s{t3}, 3
        s_mul_i32 s{t3}, s{t3}, {RINGW}
        v_lshl_add_u32 v{vXa+st}, v{vLane}, 4, s{t3}
        """)


step['HP'] = lambda: poll_issue(vPo)


def late_setup():
    L = lines(f"""
    v_lshrrev_b32 v{t0}, 2, v{vLane}
    v_and_b32 v{t1}, 3, v{vLane}
    v_min_u32 v{t1}, 2, v{t1}
    v_mul_u32_u24 v{t4}, 10240, v{t0}
    v_lshl_add_u32 v{t4}, v{t1}, 4, v{t4}
    s_mul_i32 s{t2}, s{sWave}, {64*10240}
    s_lshl_b32 s{t3}, s{sP0}, 4
    s_add_u32 s{t2}, s{t2}, s{t3}
    s_add_u32 s{t2}, s{t2}, {WS_KV}
    v_add_u32 v{t4}, s{t2}, v{t4}
    v_cmp_gt_u32 vcc, s{sNCH}, v{t1}
    v_mov_b32 v{vXg}, s{sOOB}
    v_mul_u32_u24 v{t1}, {XSZ}, v{t1}
    v_cndmask_b32 v{vXg}, v{vXg}, v{t4}, vcc
    v_lshl_add_u32 v{t1}, v{t0}, 4, v{t1}
    s_lshl_b32 s{t2}, s{sWave}, 10
    s_add_u32 s{t2}, s{t2}, {L_X+512}
    v_add_u32 v{vXw}, s{t2}, v{t1}
    v_lshlrev_b32 v{t0}, 7, v{t0}
    v_and_b32 v{t1}, 3, v{vU}
    v_lshl_add_u32 v{t0}, v{t1}, 3, v{t0}
    v_add_u32 v{t0}, s{sRing}, v{t0}
    v_bfe_u32 v{t1}, v{vLane}, 3, 2
    """)
    for n in range(4):
        L += lines(f"""
        s_add_u32 s{t2}, s{sWave}, {n}
        s_and_b32 s{t2}, s{t2}, 3
        v_xor_b32 v{t4}, s{t2}, v{t1}
        v_lshl_add_u32 v{vTr2+n}, v{t4}, 5, v{t0}
        """)
    L += lines(f"""
    v_lshlrev_b32 v{t0}, 3, v{vU}
    v_lshlrev_b32 v{t1}, 6, v{vG}
    v_sub_u32 v{t0}, v{t0}, v{t1}
    s_lshl_b32 s{t2}, s{sWave}, 9
    s_add_u32 s{t2}, s{t2}, {L_T4+2*T4SZ+200}
    v_add_u32 v{vAe}, s{t2}, v{t0}
    s_lshr_b32 s{t2}, s{sWave}, 1
    s_mul_i32 s{t2}, s{t2}, {T4SZ}
    s_and_b32 s{t3}, s{sWave}, 1
    s_lshl_b32 s{t3}, s{t3}, 10
    s_add_u32 s{t2}, s{t2}, s{t3}
    s_add_u32 s{t2}, s{t2}, {L_T4+200}
    v_add_u32 v{vAm}, s{t2}, v{t0}
    v_lshlrev_b32 v{t0}, 5, v{vU}
    v_lshl_add_u32 v{t4}, v{vG}, 4, v{t0}
    s_lshl_b32 s{t2}, s{sWave}, 7
    s_sub_u32 s{t2}, {L_X+2*XSZ+480-64}, s{t2}
    v_add_u32 v{vBe}, s{t2}, v{t4}
    s_lshr_b32 s{t2}, s{sWave}, 1
    s_mul_i32 s{t2}, s{t2}, {XSZ}
    s_lshr_b32 s{t3}, s{t3}, 2
    s_sub_u32 s{t2}, s{t2}, s{t3}
    s_add_u32 s{t2}, s{t2}, {L_X+480-192}
    v_add_u32 v{vBm}, s{t2}, v{t4}
    s_lshl_b32 s{t2}, s{sWave}, 11
    s_add_u32 s{t2}, s{t2}, {4*4096}
    v_lshl_add_u32 v{vEr}, v{vLane}, 4, s{t2}
    v_add_u32 v{vEr+1}, {2*RINGW}, v{vEr}
    v_and_b32 v{t1}, 1, v{vG}
    v_lshl_add_u32 v{t0}, v{t1}, 9, v{t0}
    v_lshrrev_b32 v{t1}, 1, v{vG}
    v_lshl_add_u32 v{t0}, v{t1}, 4, v{t0}
    s_lshl_b32 s{t2}, s{sChE}, 2
    s_add_u32 s{t2}, s{t2}, s{sWave}
    s_lshl_b32 s{t2}, s{t2}, 10
    s_add_u32 s{t2}, s{t2}, {WS_YT}
    s_cmp_eq_u32 s{sNCH}, 3
    s_cselect_b32 s{t2}, s{t2}, s{sOOB}
    v_add_u32 v{vYe}, s{t2}, v{t0}
    s_and_b32 s{t2}, s{sWave}, 1
    s_lshl1_add_u32 s{t2}, s{sChM}, s{t2}
    s_lshl_b32 s{t2}, s{t2}, 11
    s_add_u32 s{t2}, s{t2}, {WS_YT}
    v_add_u32 v{vYm}, s{t2}, v{t0}
    s_lshl_b32 s{t2}, s{sWave}, 12
    s_add_u32 s{t3}, s{t2}, {L_T4+2*T4SZ}
    v_lshl_add_u32 v{vMw}, v{vLane}, 4, s{t3}
    s_xor_b32 s{t2}, s{t2}, 4096
    s_add_u32 s{t3}, s{t2}, {L_T4+2*T4SZ}
    v_lshl_add_u32 v{vMr}, v{vLane}, 4, s{t3}
    s_mul_i32 s{t2}, s{sWave}, {12*40960}
    s_mul_i32 s{t3}, s{sDT2}, 5120
    s_add_u32 s{t2}, s{t2}, s{t3}
    s_add_u32 s{t2}, s{t2}, {WS_UF}
    v_lshl_add_u32 v{vUo}, v{vLane}, 4, s{t2}
    v_add_u32 v{vUo+1}, 4096, v{vUo}
    v_min_u32 v{t0}, 29, v{vLane}
    v_mul_u32_u24 v{t1}, 43, v{t0}
    v_lshrrev_b32 v{t1}, 8, v{t1}
    v_mul_u32_u24 v{t1}, 18, v{t1}
    v_add_u32 v{t0}, v{t0}, v{t1}
    s_mul_i32 s{t2}, s{sDT2}, 120
    s_mul_i32 s{t3}, s{sWave}, 6
    s_add_u32 s{t2}, s{t2}, s{t3}
    s_lshl_b32 s{t2}, s{t2}, {P['fsu']}
    s_add_u32 s{t2}, s{t2}, {WS_FU}
    v_lshl_add_u32 v{vPu}, v{t0}, {P['fsu']}, s{t2}
    v_lshrrev_b32 v{t0}, 3, v{vLane}
    v_lshlrev_b32 v{t0}, 12, v{t0}
    s_mul_i32 s{t2}, s{sWave}, {384*4096}
    s_lshl_b32 s{t3}, s{sST2}, 7
    s_add_u32 s{t2}, s{t2}, s{t3}
    v_add_u32 v{t0}, s{t2}, v{t0}
    v_and_b32 v{t1}, 7, v{vLane}
    v_lshlrev_b32 v{t4}, 1, v{vG}
    v_xor_b32 v{t1}, v{t1}, v{t4}
    v_lshl_add_u32 v{vWo2}, v{t1}, 4, v{t0}
    v_add_u32 v{vWo2+1}, {32768-1024}, v{vWo2}
    v_add_u32 v{vWo2+2}, {2*(32768-1024)}, v{vWo2}
    v_add_u32 v{vWo2+3}, {3*(32768-1024)}, v{vWo2}
    """)
    return L


@script_step('SL')
def _():
    for it in late_setup():
        emit(it)


@script_step('ST')
def _():
    for k in small:
        w_until('W', k)
    for it in table_setup():
        emit(it)


@script_step('AD')
def _():
    w_until('W', 'ML')
    for it in ad_items():
        emit(it)


def ad_items():
    return [lambda: a.wait_vm('dd')] + lines(f"""
    v_lshlrev_b32 v{vDe}, 16, v{vDe}
    v_lshlrev_b32 v{vDm}, 16, v{vDm}
    v_add_f32 v{vDe}, v{vDe}, v{vDm}
    v_cvt_pk_bf16_f32 v{vDe}, v{vDe}, v{vDe}
    v_lshrrev_b32 v{t0}, 2, v{vLane}
    v_min_u32 v{t0}, 2, v{t0}
    v_mul_u32_u24 v{t0}, {T4SZ}, v{t0}
    v_and_b32 v{t1}, 3, v{vLane}
    v_mul_u32_u24 v{t1}, 6, v{t1}
    v_sub_u32 v{t0}, v{t0}, v{t1}
    v_add_u32 v{vDm}, {L_T4+128}, v{t0}
    """)


C0 = -2.0 * 0.7978845608028654 * 1.4426950408889634
C1 = C0 * 0.044715
vC0 = 50


@script_step('BU')
def _():
    w_until('W', 'ML')
    for it in bu_items():
        emit(it)


def bu_items():
    L = [lambda: a.wait_vm('b1')]
    for i in range(8):
        L += [('v_lshlrev_b32 %s, 16, %s' % (vr(vBf + 2 * i), vr(vB1 + i)), None),
              ('v_and_b32 %s, 0xffff0000, %s' % (vr(vBf + 2 * i + 1), vr(vB1 + i)), None)]
    return L + lines(f"""
    s_mov_b32 s{sT0}, 0x{f2u(C1):08x}
    s_mov_b32 s{sT1}, 0x{f2u(C1):08x}
    v_mov_b32 v{vC0}, 0x{f2u(C0):08x}
    v_mov_b32 v{vC0+1}, 0x{f2u(C0):08x}
    """)


def table_setup():
    L = []
    for ks in range(12):
        if ks:
            L += lines(f"""
            s_add_u32 s{sRot2}, s{sRot2}, 1
            s_cmp_eq_u32 s{sRot2}, 12
            s_cselect_b32 s{sRot2}, 0, s{sRot2}
            """)
        L += lines(f"""
        s_lshl_b32 s{sW2o[ks]}, s{sRot2}, 17
        s_mul_i32 s{sUo[ks]}, s{sRot2}, s{sC40}
        """)
    return L


def lines(txt):
    L = []
    for l in txt.strip().split('\n'):
        l = l.strip()
        if not l:
            continue
        if l.startswith('s_cselect'):
            L[-1] = (L[-1][0] + '\n' + l, None)
        else:
            L.append((l, None))
    return L


def emit(it):
    if callable(it):
        it()
    else:
        a(it[0], tag=it[1])


warm_pages = set()


def warm(spec):
    uid = len(a.out)
    a.atomic = True
    a('s_mov_b64 exec, 0')
    for w, c in enumerate(spec):
        if c == 'x':
            continue
        warm_pages.add(int(c))
        a(f's_cmp_eq_u32 s{sWave}, {w}')
        a(f's_cbranch_scc0 L_wm{uid}_{w}')
        a.raw(f'    s_call_b64 s[100:101], L_page{c}')
        a.label(f'L_wm{uid}_{w}')
    if not warm.ret:
        warm.ret = True
        a(f's_branch L_wm{uid}_x')
        a.label('L_wmret')
        a.raw('    s_setpc_b64 s[100:101]')
        a.label(f'L_wm{uid}_x')
    a.atomic = False
    a('s_mov_b64 exec, -1')


warm.ret = False
a.hook = w_hook
for tok in P['script'].replace('_', ' ').split():
    if tok.startswith('S:'):
        stamp(tok[2:])
    elif tok.startswith('R:'):
        rate[0] = int(tok[2:])
    elif tok.startswith('WM:'):
        warm(tok[3:])
    elif tok.startswith('W:'):
        w_until('W', tok[2:])
    elif tok != 'T4' and tok[0] in 'DT' and tok[1:].isdigit():
        w_until(tok[0], int(tok[1:]))
    else:
        step[tok]()
        done_steps.add(tok)
a.hook = None
assert ('D', NSTEP - 1) in wdone
if NW == 0:
    w2_desc()


def gather_list():
    return [(f's_mul_i32 s{sWoff}, s{sC40}, {4*m}\n' + 'buffer_load_dwordx4 %s, %s, %s, %s offen sc1' % (
        vr(vXl + 4 * m, 4), vr(vXg), sr(rWS, 4), sr(sWoff)), ('xl', m)) for m in range(4)]


def x_write(m):
    a.wait_vm(('xl', m))
    a('ds_write_b128 %s, %s offset:%d' % (vr(vXw), vr(vXl + 4 * m, 4), 256 * m), tag='xw')


def w2_atoms(ks, slot):
    L = dma_list('w2', ks, slot)
    return [(L[0][0] + '\n' + L[1][0], L[1][1])] + L[2:]


mtime = {}


class Sched:
    def __init__(self):
        self.k = 0
        self.streams = []
        self.credit = 8.0
        self.lastvm = -100

    def stream(self, *items):
        st = dict(q=list(items), wake=0)
        self.streams.append(st)
        return st['q']

    @staticmethod
    def kind(it):
        if callable(it):
            return 'wait', 0
        if it[0] == 'vm':
            return 'vm', 0
        op = it[0].split('\n')[-1].split()[0]
        if op.startswith(('buffer_', 'global_')):
            return 'vm', 0
        if op.startswith('ds_write_b128'):
            return 'lds', 13
        if op.startswith('ds_write'):
            return 'lds', 8
        if op.startswith('ds_read_b128'):
            return 'lds', 4
        if op.startswith('ds_'):
            return 'lds', 2
        if op == 's_waitcnt':
            return 'wait', 0
        if op.startswith('s_'):
            return 'salu', 0
        return 'valu', 0

    def do(self, it):
        if not callable(it) and it[0] == 'vm':
            it[1]()
        else:
            emit(it)

    def head(self, st):
        q = st['q']
        while q:
            it = q[0]
            if callable(it):
                break
            if it[0] == 'at':
                if self.k < it[1]:
                    return None
            elif it[0] == 'delay':
                st['wake'] = self.k + it[1]
            elif it[0] == 'after':
                if it[1]:
                    return None
            elif it[0] == 'since':
                if it[1] not in mtime or self.k < mtime[it[1]] + it[2]:
                    return None
            else:
                break
            q.pop(0)
        if not q or self.k < st['wake']:
            return None
        return q[0]

    def take(self, kinds, ok=None):
        for st in self.streams:
            it = self.head(st)
            if it is None:
                continue
            kind, lds = self.kind(it)
            if kind in kinds and (ok is None or ok(kind)):
                st['q'].pop(0)
                self.do(it)
                self.credit -= lds
                if kind == 'vm':
                    self.lastvm = self.k
                return kind
        return None

    def gap(self, frag=None, forced=None):
        self.k += 1
        self.credit = min(self.credit + P['ldsr'], P['ccap'])
        while self.take(('wait',)):
            pass
        t, lds, vm = 1, 0, False
        if forced:
            forced()
            t, vm = 2, True
        if frag and frag(True):
            t, lds = t + 2, 1
        elif frag and (self.take(('lds',), lambda kd: self.credit > 0) or (self.credit > 0 and frag(False))):
            t, lds = t + 2, 1
        while t <= 3:
            kind = self.take(('lds', 'vm', 'salu'), lambda kd: (
                (kd == 'lds' and self.credit > 0 and (t <= 2 or (P['dbl'] and lds < 2 and t == 3))) or
                (kd == 'vm' and not vm and self.k - self.lastvm >= P['vsp']) or kd == 'salu'))
            if kind is None:
                break
            t += 2 if kind == 'lds' else 1
            lds += kind == 'lds'
            vm = vm or kind == 'vm'
        t = max(t, 3 if vm else 2)
        while t <= 3 and self.take(('valu', 'salu')):
            t += 1

    def flush(self, q, until=None):
        while q and (until is None or until()):
            it = q.pop(0)
            if callable(it) or it[0] not in ('at', 'delay', 'after', 'since'):
                self.do(it)
            elif it[0] == 'after':
                self.flush(it[1])


def lds_w(addr, reg, off, tag, k='v', w64=None):
    if not (P['w64'] if w64 is None else w64):
        return [('ds_write_b128 %s, %s offset:%d' % (vr(addr), vr(reg, 4, k), off), tag)]
    return [('ds_write_b64 %s, %s offset:%d' % (vr(addr), vr(reg + 2 * h, 2, k), off + 8 * h), tag) for h in range(2)]


NT = P['ntail']
assert NT % 4 == 0 and NT <= 16
poll_check('L_pollh', vPo)
stamp('hpoll')
WIN = P['win']
vWin = 96
vAc = 64


def hload(F):
    a('buffer_load_dwordx4 %s, %s, %s, %s offen sc1' % (
        vr(vWin + 4 * (F % WIN), 4), vr(vHo + (F // 8) % 4), sr(rWS, 4), sr(sKS + 8 * (F // 32) + F % 8)), tag=('h', F))


for F in range(WIN):
    hload(F)
    if W:
        w_atom()
while W:
    w_atom()
vSA, vPt, vPx, vMk = 136, 152, 168, 204
sTag, sMk = [96, 97, 22, 23], 58
g1 = Sched()
side = g1.stream()
gq = gather_list()
if 'g' in P['dbg']:
    a(f'v_lshlrev_b32 v{t0}, 4, v0')
    a(f's_lshl_b32 s{t2}, s{sR}, 12')
    a(f's_add_u32 s{t2}, s{t2}, {WS_KV}')
    a(f'v_add_u32 v{vXg}, s{t2}, v{t0}')
if 'G' in P['dbg']:
    a(f'v_mov_b32 v{vXg}, s{sOOB}')
if 'P' in P['dbg'] or 'L' in P['dbg']:
    if 'P' in P['dbg']:
        a(f'v_mov_b32 v{vPs}, s{sOOB}')
    a(f'v_mov_b32 v{vPr}, s{sOOB}')
    a(f's_mov_b32 s{sAct}, 0')
vGt, vOg, vT0, vB2 = 56, 58, 60, 62
vOo = 16
vQa = 19
vYa, vYr = 32, 35
rQ, rO = 60, 64
STG = 20480
q4 = g1.stream(*[x for p in T4Q for x in p + [('delay', 2)]] if '4' not in P['dbg'] else [])
qS = g1.stream()
qS += lines(f"""
s_and_b32 s{sTag[0]}, s{sN}, 0xff
s_bfe_u32 s{sTag[1]}, s{sN}, 0x80008
s_bfe_u32 s{sTag[2]}, s{sN}, 0x80010
s_lshr_b32 s{sTag[3]}, s{sN}, 24
s_mul_i32 s{sMk}, s{sAct}, 0xff
v_mov_b32 v{vMk}, 0xffffff00
""")
for nm, fn in (('BU', bu_items), ('AD', ad_items), ('SL', late_setup)):
    if nm not in done_steps:
        qS += fn()
qS2 = g1.stream(*(table_setup() if 'ST' not in done_steps else []))
qS += lines(f"""
s_lshl_b32 s{t2}, s{sST2}, 2
s_add_u32 s{t2}, s{t2}, s{sWave}
s_lshl_b32 s{t2}, s{t2}, 4
v_add_u32 v{t0}, s{t2}, v{vU}
v_lshlrev_b32 v{t1}, 1, v{t0}
v_lshlrev_b32 v{vGt}, 2, v{t0}
v_add_u32 v{vGt}, {WS_G}, v{vGt}
""")
qS += [('global_load_ushort %s, %s, %s' % (vr(vB2), vr(t1), sr(sB2, 2)), 'gb')]
qS += lines(f"""
s_mul_i32 s{t2}, s{t2}, 1280
s_mul_i32 s{t3}, s{sDT2}, 160
s_add_u32 s{t2}, s{t2}, s{t3}
v_lshrrev_b32 v{t0}, 3, v{vLane}
v_mul_u32_u24 v{t0}, 1280, v{t0}
v_and_b32 v{t1}, 7, v{vLane}
v_xor_b32 v{t1}, v{t1}, v{vG}
v_add_u32 v{t0}, s{t2}, v{t0}
v_lshl_add_u32 v{vOo}, v{t1}, 4, v{t0}
v_xor_b32 v{t1}, 4, v{t1}
v_lshl_add_u32 v{vOo+1}, v{t1}, 4, v{t0}
v_add_u32 v{vOo+1}, {8*1280}, v{vOo+1}
v_lshrrev_b32 v{t0}, 1, v{vLane}
v_mul_u32_u24 v{t0}, 1280, v{t0}
v_and_b32 v{t1}, 1, v{vLane}
v_lshl_add_u32 v{t0}, v{t1}, 4, v{t0}
s_add_u32 s{t2}, s{t2}, 128
v_lshlrev_b32 v{t1}, 25, v{vLane}
v_add_u32 v{t0}, s{t2}, v{t0}
v_and_or_b32 v{vOo+2}, v{t1}, 2.0, v{t0}
s_add_u32 s{t2}, s{sRing}, {STG}
v_lshrrev_b32 v{t0}, 1, v{vU}
v_lshrrev_b32 v{t1}, 1, v{vG}
v_xor_b32 v{t0}, v{t0}, v{t1}
v_lshlrev_b32 v{t0}, 4, v{t0}
v_lshl_add_u32 v{t0}, v{vU}, 7, v{t0}
v_and_b32 v{t1}, 1, v{vG}
v_lshl_add_u32 v{t0}, v{t1}, 3, v{t0}
v_add_u32 v{vQa}, s{t2}, v{t0}
v_xor_b32 v{vQa+1}, 32, v{vQa}
v_xor_b32 v{vQa+2}, 64, v{vQa}
v_xor_b32 v{vQa+3}, 0x60, v{vQa}
v_lshl_add_u32 v{t0}, v{vU}, 5, s{t2}
v_lshl_add_u32 v{vQa+4}, v{vG}, 3, v{t0}
""")
qeq = [(f's_add_u32 m0, s{sRing}, {STG+1024*i}\n' + 'buffer_load_dwordx4 %s, %s, 0 offen lds' % (
    vr(vOo + i), sr(rQ, 4)), 'qe') for i in range(3)]


def stg(i):
    return (vr(vQa + i), 0) if i < 4 else (vr(vQa + 4), 2048)


qS += lines(f"""
v_bfe_u32 v{t0}, v{vLane}, 4, 1
v_lshlrev_b32 v{t0}, 7, v{t0}
v_add_u32 v{t0}, v{t0}, v{vU}
s_lshl_b32 s{t2}, s{sDT2}, {P['fsy']+4}
s_add_u32 s{t2}, s{t2}, {WS_FY}
v_lshl_add_u32 v{vPo}, v{t0}, {P['fsy']}, s{t2}
v_lshrrev_b32 v{t0}, 3, v0
s_mul_i32 s{t2}, s{sDT2}, 80
v_add_u32 v{t0}, s{t2}, v{t0}
v_lshlrev_b32 v{t0}, 12, v{t0}
v_and_b32 v{t1}, 7, v{vLane}
v_lshlrev_b32 v{t4}, 1, v{vG}
v_xor_b32 v{t1}, v{t1}, v{t4}
v_lshl_add_u32 v{t0}, v{t1}, 4, v{t0}
s_lshl_b32 s{t3}, s{sST2}, 7
s_add_u32 s{t3}, s{t3}, {WS_YT}
v_add_u32 v{vYa}, s{t3}, v{t0}
v_add_u32 v{vYa+1}, {32*4096}, v{vYa}
s_cmp_lt_u32 s{sWave}, 2
s_cselect_b32 s{t3}, {64*4096}, s{sOOB}
v_add_u32 v{vYa+2}, s{t3}, v{vYa}
v_bfe_u32 v{t0}, v{vLane}, 2, 3
v_lshlrev_b32 v{t0}, 7, v{t0}
v_and_b32 v{t1}, 3, v{vU}
v_lshl_add_u32 v{t0}, v{t1}, 3, v{t0}
v_bfe_u32 v{t1}, v{vLane}, 3, 2
v_xor_b32 v{t1}, s{sWave}, v{t1}
v_lshl_add_u32 v{t0}, v{t1}, 5, v{t0}
v_lshrrev_b32 v{t1}, 1, v{vG}
v_mul_u32_u24 v{t1}, {RINGW}, v{t1}
v_add_u32 v{t0}, v{t0}, v{t1}
v_add_u32 v{vYr}, 16384, v{t0}
""")
qR = lines(f"""
s_mov_b32 s{rQ}, s{sQ}
s_and_b32 s{rQ+1}, s{sQ+1}, 0xffff
s_mov_b32 s{rQ+2}, {2048*1280}
s_mov_b32 s{rQ+3}, 0x20000
s_mov_b32 s{rO}, s{sOUT}
s_and_b32 s{rO+1}, s{sOUT+1}, 0xffff
s_mov_b32 s{rO+2}, {2048*1280}
s_mov_b32 s{rO+3}, 0x20000
""")
NM = P['nm']
midq = [x for i in range(NW, NW + NM) for x in w2_atoms(i, i - NW)]
midT = [x for i in range(NW, NW + NM)
        for x in [lambda i=i: a.wait_vm(('w2', i))] + tr_list('w2', i, i - NW)]
assert NM == 0 or ('ST' in done_steps and P['mat'] + 4 * NM + WIN + 2 < 56)
NW += NM + (6 if 'H' in P['dbg'] else 0)
slot2 = lambda ks: (ks - NW) % 4
tailq = []
for i in range(NW, NW + 4):
    tailq += w2_atoms(i, slot2(i))
GAT = P['gat']
SG = max((GAT + 7) // 8, 5)
XLATE = GAT + WIN + 4 > 59
assert WIN + 2 <= GAT <= 56 and ('SL' in done_steps or GAT > 41)
xw_items = lambda m, w64=None: [lambda: a.wait_vm(('xl', m))] + lds_w(vXw, vXl + 4 * m, 256 * m, 'xw', 'v', w64)
xw_left = list(range(4))
qG = g1.stream()


def pload(n):
    a('buffer_load_dwordx4 %s, %s, %s, 0 offen offset:%d sc1' % (
        vr(vPx + 4 * n, 4), vr(vPr), sr(rWS, 4), 1024 * n), tag='px')


pq = [lambda n=n: pload(n) for n in range(4)]
if '3' in P['dbg']:
    pq.pop()
    a(f's_mov_b32 s{sAct}, 0')
if 'KF' not in done_steps:
    step['KF']()
a.wait_vm(('h', 0))
a.wait_lg(('tr', 'w1', 0))
nex = 0
for F in range(64):
    S, ks = divmod(F, 8)
    acc = vAc + 16 * (S & 1)
    if ks == 0:
        g1.flush(side, lambda: any(not callable(x) and x[1] == ('acc', S - 2) for x in side))
    for n in range(4):
        d = vr(acc + 4 * n, 4)
        a('v_mfma_f32_16x16x32_bf16 %s, %s, %s, %s' % (
            d, ar(16 * ks + 4 * n, 4), vr(vWin + 4 * (F % WIN), 4), '0' if ks == 0 else d))
        forced = None
        if n == 0 and 1 <= F <= 64 - WIN:
            forced = lambda: hload(F - 1 + WIN)
        elif n in (0, 2) and F >= P['pld'] and pq:
            forced = pq.pop(0)
        elif n == 0 and F > max(64 - WIN, 56 if NM else 0) and len(tailq) > 16 - NT:
            forced = lambda: emit(tailq.pop(0))
        elif n == 2 and F == GAT - WIN - 2 and 'K' not in P['dbg']:
            forced = lambda: poll_issue(vPkv)
        elif n == 2 and GAT <= F < GAT + 4:
            forced = lambda: emit(gq.pop(0))
        elif n == 2 and F >= P['mat'] and midq:
            forced = lambda: emit(midq.pop(0))
            mid_last = F
        if n == 3 and F < 63:
            a.wait_vm(('h', F + 1))
            if F < 7:
                a.wait_lg(('tr', 'w1', ks + 1))
        g1.gap(forced=forced)
    if 'F%d' % F in P['mst'].split(','):
        stamp('F%d' % F)
    if F == GAT - 1:
        if 'K' not in P['dbg']:
            poll_check('L_pollkv', vPkv)
        stamp('kvpoll')
    if midT and not midq and F >= mid_last + WIN:
        qG += midT + [lambda: a.wait_lg(('tr', 'w2', NW - 1))]
        midT = []
    if F >= GAT + WIN + 1 and xw_left and F < 56:
        qG += xw_items(xw_left.pop(0))
    if F == 33:
        qS += qR
    if S > 0 and ks == 0:
        pa, sp = vAc + 16 * ((S - 1) & 1), (S - 1) % 4
        if S == 7:
            assert not midT and not midq
            g1.flush(qS)
            g1.flush(qG)
        if S == 4:
            g1.flush(qS, lambda: any(not callable(x) and '0xffffff00' in x[0] for x in qS))
            for n in range(4):
                for j in range(4):
                    r = vSA + 4 * n + j
                    side += [('v_add_f32 %s, %s, %s' % (vr(r), vr(r), vr(pa + 4 * n + j)), ('acc', S - 1)),
                             ('v_and_or_b32 %s, %s, %s, %s' % (vr(r), vr(r), vr(vMk), sr(sTag[j])), None)]
                side.append(('buffer_store_dwordx4 %s, %s, %s, 0 offen offset:%d ' % (
                    vr(vSA + 4 * n, 4), vr(vPs), sr(rWS, 4), 1024 * n) + 'sc1', 'pst'))
                if '3' in P['dbg'] and n == 0:
                    side.pop()
        else:
            if S == 5:
                t4left = len(q4)
                g1.flush(q4)
            off = 4096 * (4 + (nex & 1))
            dst = vSA if S == 1 else vPt
            for n in range(4):
                side += lds_w(vXa + 3, pa + 4 * n, off + 1024 * n, ('acc', S - 1))
            if S == 7 and not XLATE:
                while xw_left:
                    side += xw_items(xw_left.pop(0))
            side += [('delay', P['bdel']), lambda S=S: a.wait_lg(('acc', S - 1), 'xw'), ('s_barrier', None)]
            if 'B' in P['dbg'] and S not in (3, 7):
                side.pop()
            if S == 5:
                g1sl = (len(qS), len(qS2))
                g1.flush(qS)
                g1.flush(qS2)
                side.append(('ds_write_b16 %s, %s' % (vr(vDm), vr(vDe)), None))
            if S == SG:
                side.append(('buffer_load_dword %s, %s, %s, 0 offen sc1' % (vr(vGt), vr(vGt), sr(rWS, 4)), 'gb'))
            side += [('ds_read_b128 %s, %s offset:%d' % (vr(dst + 4 * n, 4), vr(vXa + sp), off + 1024 * n), ('pr', S))
                     for n in range(4)]
            if S < 7:
                side += [('delay', P['rdel']), lambda S=S: a.wait_lg(('pr', S))]
            if 1 < S < 7:
                tot = vSA if S < 4 else vBf
                side += [('v_add_f32 %s, %s, %s' % (vr(tot + i), vr(tot + i), vr(vPt + i)), None) for i in range(16)]
            nex += 1
            if 'E' in P['dbg'] and S != SG:
                side.clear()
g1left = len(side)
g1.flush(side)
while pq:
    pq.pop(0)()
while len(tailq) > 16 - NT:
    emit(tailq.pop(0))
stamp('g1end')
vAccM = 64
aAccE = 64
aOth = 96
UW = P['uw']
NPOOL = 35 - UW
POOL = [96 + 4 * i for i in range(NPOOL)]
vUw = 96 + 4 * NPOOL
vOwn = 236

mf = []
units = [('e', 0), ('e', 1), ('m', 0), ('m', 1), ('m', 2), ('m', 3)]
if 'U' in P['dbg']:
    units.pop()
ustart = []
for ui, (kind, e) in enumerate(units):
    accs = (lambda q: ar(aAccE + 4 * q, 4)) if kind == 'e' else (lambda q: vr(vAccM + 4 * q, 4))
    ustart.append(len(mf))
    rows = range(8) if ui % 2 == 0 else range(7, -1, -1)
    for r in rows:
        for q in range(r, 8):
            mf.append((accs(q), ('A', ui, r), ('B', ui, q - r), '0' if e == 0 and r == 0 else accs(q)))
ustart.append(len(mf))


def frag_loads(key, reg):
    t, ui, i = key
    kind, e = units[ui]
    if t == 'A':
        v = vAe if kind == 'e' else vAm
        if P['a2'] and i % P['a2'] == 0:
            return ['ds_read2_b64 %s, %s offset0:%d offset1:%d' % (
                vr(reg, 4), vr(vA8[kind][i]), 32 * e, 32 * e + 4)]
        return ['ds_read_b64 %s, %s offset:%d' % (vr(reg, 2), vr(v), 256 * e + 2048 * i),
                'ds_read_b64 %s, %s offset:%d' % (vr(reg + 2, 2), vr(v), 256 * e + 2048 * i + 32)]
    v, b = (vBe, 64) if kind == 'e' else (vBm, 192)
    return ['ds_read_b128 %s, %s offset:%d' % (vr(reg, 4), vr(v), b - 64 * e + 512 * i)]


order, last = [], {}
for k, (d, A, B, C) in enumerate(mf):
    for f in (A, B):
        if isinstance(f, tuple):
            if f not in last:
                order.append(f)
            last[f] = k
free, reg_of, pend, issued_at = list(POOL), {}, [], {}
cv = Sched()


def issue_frag(maxn):
    n = 0
    while n < maxn:
        if not pend:
            if not order or not free:
                return n
            f = order.pop(0)
            reg_of[f] = free.pop(0)
            pend.extend((x, f) for x in frag_loads(f, reg_of[f]))
        x, f = pend.pop(0)
        a(x, tag=f)
        cv.credit -= 8 if 'read2' in x else 4 if 'b128' in x else 2
        issued_at[f] = cv.k
        n += 1
    return n


def wait_frags(*fs):
    if not any(t in fs for t in a.lg):
        return 0
    more = [t for t in a.lg if t in issued_at and issued_at[t] <= cv.k - P['lead'] and not any(p[1] == t for p in pend)]
    a.wait_lg(*fs, *more)
    return 1


def x_late():
    while xw_left:
        for it in xw_items(xw_left.pop(0), 0):
            emit(it)


XL = P['xl'] if XLATE else -1
if XL == 0:
    x_late()
if not XLATE:
    issue_frag(10)
a.wait_lg(('pr', 7))
acc = vAc + 16
vE, vEp = 188, 136 if XL > 0 else 224
assert not gq
for i in range(8):
    a('v_pk_add_f32 %s, %s, %s' % (vr(vBf + 2 * i, 2), vr(vBf + 2 * i, 2), vr(vPt + 2 * i, 2)))
a('s_mov_b32 %s, 0' % sr(sSpin))
a.wait_vm('px')
a.label('L_px')
for i in range(16):
    a('v_xor_b32 %s, %s, %s' % (vr(vPx + i), sr(sTag[i % 4]), vr(vPx + i)))
a('v_or_b32 %s, %s, %s' % (vr(t0), vr(vPx), vr(vPx + 1)))
for i in range(2, 16, 2):
    a('v_or3_b32 %s, %s, %s, %s' % (vr(t0), vr(vPx + i), vr(vPx + i + 1), vr(t0)))
a('v_and_b32 %s, %s, %s' % (vr(t0), sr(sMk), vr(t0)))
a('v_cmp_ne_u32 vcc, 0, %s' % vr(t0))
a('s_cbranch_vccz L_px_ok')
sv, sh = list(a.vm), list(a.hist)
for n in range(4):
    pload(n)
a(f"""
s_add_u32 s{sSpin}, s{sSpin}, 1
s_cmp_lt_u32 s{sSpin}, {SPIN_MAX}
s_waitcnt vmcnt(0)
s_cbranch_scc1 L_px
""")
a.label('L_px_ok')
a.vm, a.hist = sv, sh
stamp('px')
if XL == 0:
    a.wait_lg('xw')
    a('s_barrier')
    issue_frag(10)
for i in range(8):
    a('v_pk_add_f32 %s, %s, %s' % (vr(vBf + 2 * i, 2), vr(vBf + 2 * i, 2), vr(vPx + 2 * i, 2)))
for p in range(2):
    rng = range(4 * p, 4 * p + 4)
    for i in rng:
        a('v_pk_add_f32 %s, %s, %s' % (vr(vBf + 2 * i, 2), vr(vBf + 2 * i, 2), vr(acc + 2 * i, 2)))
    for i in rng:
        a('v_pk_mul_f32 %s, %s, %s' % (vr(vE + 2 * i, 2), vr(vBf + 2 * i, 2), vr(vBf + 2 * i, 2)))
    for i in rng:
        a('v_pk_fma_f32 %s, %s, %s, %s' % (vr(vE + 2 * i, 2), vr(vE + 2 * i, 2), sr(sT0, 2), vr(vC0, 2)))
    for i in rng:
        a('v_pk_mul_f32 %s, %s, %s' % (vr(vE + 2 * i, 2), vr(vE + 2 * i, 2), vr(vBf + 2 * i, 2)))
    for i in range(8 * p, 8 * p + 8):
        a('v_exp_f32 %s, %s' % (vr(vE + i), vr(vE + i)))
    for i in rng:
        a('v_pk_add_f32 %s, %s, 1.0 op_sel_hi:[1,0]' % (vr(vE + 2 * i, 2), vr(vE + 2 * i, 2)))
    for i in range(8 * p, 8 * p + 8):
        a('v_rcp_f32 %s, %s' % (vr(vE + i), vr(vE + i)))
    for i in rng:
        a('v_pk_mul_f32 %s, %s, %s' % (vr(vE + 2 * i, 2), vr(vE + 2 * i, 2), vr(vBf + 2 * i, 2)))
    for i in rng:
        a('v_cvt_pk_bf16_f32 %s, %s, %s' % (vr(vEp + i), vr(vE + 2 * i), vr(vE + 2 * i + 1)))
    a('buffer_store_dwordx4 %s, %s, %s, %s offen sc1' % (
        vr(vEp + 4 * p, 4), vr(vUst), sr(rWS, 4), sr(sC40) if p else '0'), tag='ust')
    if p == 0 and XL <= 0:
        issue_frag(6 if P['a2'] == 1 else 10)
    if XL == p + 1:
        x_late()
if XL > 0:
    a.wait_lg('xw')
    a('s_barrier')
    issue_frag(14)
if P['a2'] == 1:
    for i in (5, 7):
        a('v_add_u32 v%d, %d, v%d' % (vA8['m'][i], 2048 * i, vA8['m'][0]))
stamp('conv0')
cv.credit = 8.0
vEx = 120
vYp = 28


def w2T(ks, slot):
    return [lambda: a.wait_vm(('w2', ks))] + tr_list('w2', ks, slot)


def uload(F):
    st, ks = divmod(F, 12)
    a('buffer_load_dwordx4 %s, %s, %s, %s offen offset:%d sc1' % (
        vr(vUw + 4 * (F % UW), 4), vr(vUo + st // 4), sr(rWS, 4), sr(sUo[ks]), 1024 * (st % 4)), tag=('u', F))


def split(x):
    return [(l, x[1]) for l in x[0].split('\n')]


def dbgf(it):
    if 'T' in P['dbg']:
        it = [x for x in it if callable(x) or '_tr_' not in x[0]]
    if 'D' in P['dbg']:
        it = [(('vm', lambda: a('s_nop 0')) if not callable(x) and ' lds' in x[0] else x) for x in it]
    if 'W' in P['dbg']:
        it = [x for x in it if not callable(x)]
    return it


e_end = ustart[2]
qF = cv.stream(('at', P['uflag']), lambda: a.wait_vm('ust'), ('vm', lambda: flag(sFU, P['fsu'])), lambda: stamp('uflag'),
               ('at', P['pollu']), ('vm', lambda: poll_issue(vPu)))
qX = cv.stream(('at', e_end + 6), ('s_barrier', None), ('at', P['xat']))
for q in range(8):
    qX += lds_w(vXa + 3, aAccE + 4 * q, 4 * 4096 + 1024 * q, 'mw', 'a', P['xw64']) + [('delay', P['ewsp'])]
NDEF = P['ndef']
marks = {(c, ks): [1] for c in 'TD' for ks in range(12)}
log = []


def mark(c, ks):
    def f():
        marks[(c, ks)].clear()
        mtime[(c, ks)] = cv.k
        log.append('%s%d@%d' % (c, ks, cv.k))
        if '%s%d' % (c, ks) in P['mst'].split(','):
            stamp('%s%d' % (c, ks))
    return f


qD = cv.stream(*dbgf([y for x in tailq for y in split(x)]), mark('D', NW + 3))
qT = cv.stream(('at', P['t0']))
for ks in range(NW, 12 - NDEF):
    dep = min(ks + P['tlag'], 11)
    if dep >= NW + 3:
        qT.append(('after', marks[('D', dep)]))
    qT += dbgf(w2T(ks, slot2(ks))) + [mark('T', ks)]
    if ks + 4 < 12:
        qD += [('since', ('T', ks), P['tdel']), lambda ks=ks: a.wait_lg(('tr', 'w2', ks))]
        qD += dbgf(dma_list('w2', ks + 4, slot2(ks))) + [mark('D', ks + 4)]
if 'X' in P['dbg']:
    qX.clear()
qX.append(lambda: log.append('X@%d' % cv.k))
qU = cv.stream(('after', qF), ('after', qD), ('at', P['pollu'] + P['ulag']),
               lambda: poll_check('L_pollu', vPu), lambda: stamp('upoll'), lambda: log.append('U@%d' % cv.k))
for F in range(UW):
    qU.append(('vm', lambda F=F: uload(F)))
cv.streams.append(cv.streams.pop(1))

def ready(k):
    d, A, B, C = mf[k]
    for f in (A, B):
        while f not in reg_of or any(p[1] == f for p in pend):
            assert pend or free
            issue_frag(1)
    wait_frags(A, B)


first = {}
for k, (d, A, B, C) in enumerate(mf):
    for f in (A, B):
        first.setdefault(f, k)


def frag_cb(urgent_only):
    if urgent_only:
        j, slack = 0, 999
        for x, f in pend:
            j += 1
            slack = min(slack, first[f] - j)
        for f in order[:14]:
            j += len(frag_loads(f, 0))
            slack = min(slack, first[f] - j)
        if slack - cv.k > P['urg']:
            return 0
    return issue_frag(1)


ready(0)
for k, (d, A, B, C) in enumerate(mf):
    a('v_mfma_f32_16x16x32_bf16 %s, %s, %s, %s' % (d, vr(reg_of[A], 4), vr(reg_of[B], 4), C))
    for f in (A, B):
        if last[f] == k:
            free.append(reg_of[f])
    if k + 1 < len(mf):
        ready(k + 1)
    cv.gap(frag=frag_cb)
left = [len(x['q']) for x in cv.streams]
cv.streams.pop(3)
while qX or qT or qD or qF:
    cv.gap()
vMx = 96
a('s_bitcmp1_b32 %s, 0' % sr(sWave))
a('s_cbranch_scc1 L_mw_odd')
sh = list(a.hist)
sl = list(a.lg)
for par in range(2):
    if par == 1:
        a.label('L_mw_odd')
        a.hist, a.lg = list(sh), list(sl)
    give = 4 if par == 0 else 0
    for q in range(4):
        a('ds_write_b128 %s, %s offset:%d' % (vr(vMw), vr(vAccM + 4 * (give + q), 4), 1024 * q), tag='mw')
        if par == 1:
            for i in (2 * q, 2 * q + 1):
                a('v_mov_b64 %s, %s' % (vr(vAccM + 2 * i, 2), vr(vAccM + 16 + 2 * i, 2)))
    if par == 0:
        a('s_branch L_mw_done')
a.label('L_mw_done')
stamp('convend')
g2 = Sched()
vOl = 104
vQe = 154
vQg = 64
vPp = 120
vYl = 132
vYt = 144
vYu = 96
vOp = 88
assert vQe + 10 <= vUw
qM = g2.stream(lambda: a.wait_lg('mw'), ('s_barrier', None))
qM += [('ds_read_b128 %s, %s offset:%d' % (vr(vMx + 4 * q, 4), vr(vMr), 1024 * q), ('mr', q // 2)) for q in range(4)]
qM += [('ds_read_b128 %s, %s offset:%d' % (
    vr(vEx + 8 * w2 + 4 * h, 4), vr(vEr + w2 // 2), RINGW * (w2 % 2) + 1024 * h), ('er', w2))
    for w2 in range(4) for h in range(2)]
MF = P['mflush']


def addv(d, x, n):
    if MF:
        return [('v_pk_add_f32 %s, %s, %s' % (vr(d + i, 2), vr(d + i, 2), vr(x + i, 2)), None) for i in range(0, n, 2)]
    return [('v_add_f32 %s, %s, %s' % (vr(d + i), vr(d + i), vr(x + i)), None) for i in range(n)]


def ypack(src, o, addr, off):
    return [('v_cvt_pk_bf16_f32 %s, %s, %s' % (vr(o + h), vr(src + 2 * h), vr(src + 2 * h + 1)), None)
            for h in range(4)] + [
        ('v_permlane16_swap_b32 %s, %s' % (vr(o), vr(o + 2)), None),
        ('v_permlane16_swap_b32 %s, %s' % (vr(o + 1), vr(o + 3)), None),
        ('buffer_store_dwordx4 %s, %s, %s, 0 offen offset:%d sc1' % (vr(o, 4), vr(addr), sr(rWS, 4), off), 'yst')]


for qq in range(2):
    qM.append(lambda qq=qq: a.wait_lg(('mr', qq)))
    qM += addv(vMx + 8 * qq, vAccM + 8 * qq, 8) + ypack(vMx + 8 * qq, vMx + 16 + 4 * qq, vYm, 1024 * qq)
for w2 in range(1, 4):
    qM += [lambda w2=w2: a.wait_lg(('er', w2))] + addv(vEx, vEx + 8 * w2, 8)
qM += ypack(vEx, vYp, vYe, 0)
if MF:
    n = 0
    while qM:
        g2.flush(qM, lambda m=len(qM): len(qM) == m)
        n += 1
        if n % 8 == 0 and 0 < len(qU) <= UW:
            cv.flush(qU, lambda m=len(qU): len(qU) == m)
cv.flush(qU)
qT2 = g2.stream()
for ks in range(12 - NDEF, 12):
    qT2 += w2T(ks, slot2(ks))
side = g2.stream()
a.wait_vm('gb')
a(f"""
v_sub_f32 v{vOg}, 1.0, v{vGt}
v_lshlrev_b32 v{vB2}, 16, v{vB2}
v_mul_f32 v{vT0}, v{vOg}, v{vB2}
s_lshl_b32 s{sT0}, s{sR}, {P['fsy']}
s_add_u32 s{sT0}, s{sT0}, {WS_FY}
""")


def xwrite(st):
    if st == 4:
        return [('ds_write_b128 %s, %s offset:%d' % (
            vr(vXa + 3), ar(aOth + 4 * (n - 1), 4), 3072 * st + 1024 * (n - 1)), 'xw') for n in range(1, 4)]
    return [x for n in range(1, 4)
            for x in lds_w(vXa + 3, aOth + 12 * (st & 1) + 4 * (n - 1), 3072 * st + 1024 * (n - 1), 'xw', 'a')]


def xread(st):
    return [('ds_read_b128 %s, %s offset:%d' % (vr(vPp + 4 * (n - 1), 4), vr(vXa + n - 1), 3072 * st + 1024 * (n - 1)),
             ('xr', st)) for n in range(1, 4)]


def xsum(st, pk=False):
    L = [lambda: a.wait_lg(('xr', st))]
    o = vOwn + 4 * st
    if pk:
        for n in range(3):
            L += [('v_pk_add_f32 %s, %s, %s' % (vr(o + 2 * h, 2), vr(o + 2 * h, 2), vr(vPp + 4 * n + 2 * h, 2)), None)
                  for h in range(2)]
    else:
        for n in range(3):
            L += [('v_add_f32 %s, %s, %s' % (vr(o + j), vr(o + j), vr(vPp + 4 * n + j)), None) for j in range(4)]
    return L


def base(i, pk=False):
    o = vOwn + 4 * i
    if pk:
        return [('v_pk_fma_f32 %s, %s, %s, %s op_sel_hi:[1,0,0]' % (
            vr(o + 2 * h, 2), vr(o + 2 * h, 2), vr(vOg, 2), vr(vT0, 2)), None) for h in range(2)]
    return [('v_fma_f32 %s, %s, %s, %s' % (vr(o + j), vr(o + j), vr(vOg), vr(vT0)), None) for j in range(4)]


def fin(i, pk=True):
    o, p, y = vOwn + 4 * i, vOp + 2 * (i & 1), vYu + 4 * (i & 1)
    L = [lambda: a.wait_lg(('yt', i))]
    for h in range(2):
        L += [('v_lshlrev_b32 %s, 16, %s' % (vr(y + 2 * h), vr(vYt + 2 * i + h)), None),
              ('v_and_b32 %s, 0xffff0000, %s' % (vr(y + 2 * h + 1), vr(vYt + 2 * i + h)), None)]
    if pk:
        L += [('v_pk_fma_f32 %s, %s, %s, %s' % (
            vr(o + 2 * h, 2), vr(vQg + 4 * i + 2 * h, 2), vr(y + 2 * h, 2), vr(o + 2 * h, 2)), None) for h in range(2)]
    else:
        L += [('v_fmac_f32 %s, %s, %s' % (vr(o + j), vr(vQg + 4 * i + j), vr(y + j)), None) for j in range(4)]
    L += [('v_cvt_pk_bf16_f32 %s, %s, %s' % (vr(p + h), vr(o + 2 * h), vr(o + 2 * h + 1)), None) for h in range(2)]
    L += [('ds_write_b64 %s, %s offset:%d' % (stg(i)[0], vr(p, 2), stg(i)[1]), None)]
    return L


def oread(ms):
    return [('ds_read_b128 %s, %s offset:%d' % (vr(vOl + 4 * m, 4), vr(vXa + 3), STG + 1024 * m), ('or', m)) for m in ms]


def ostore(ms):
    L = []
    for m in ms:
        L += [lambda m=m: a.wait_lg(('or', m)), ('buffer_store_dwordx4 %s, %s, %s, 0 offen %s' % (
            vr(vOl + 4 * m, 4), vr(vOo + m), sr(rO, 4), P['outmod']), 'out')]
    return L


def qprep(pk):
    L = [lambda: a.wait_vm('qe')]
    L += [('ds_read_b64 %s, %s offset:%d' % (vr(vQe + 2 * i, 2), stg(i)[0], stg(i)[1]), ('qr', i)) for i in range(5)]
    if not pk:
        L.append(('delay', 4))
    for i in range(5):
        L.append(lambda i=i: a.wait_lg(('qr', i)))
        for h in range(2):
            L += [('v_lshlrev_b32 %s, 16, %s' % (vr(vQg + 4 * i + 2 * h), vr(vQe + 2 * i + h)), None),
                  ('v_and_b32 %s, 0xffff0000, %s' % (vr(vQg + 4 * i + 2 * h + 1), vr(vQe + 2 * i + h)), None)]
        if pk:
            L += [('v_pk_mul_f32 %s, %s, %s op_sel_hi:[1,0]' % (
                vr(vQg + 4 * i + 2 * h, 2), vr(vQg + 4 * i + 2 * h, 2), vr(vGt, 2)), None) for h in range(2)]
        else:
            L += [('v_mul_f32 %s, %s, %s' % (vr(vQg + 4 * i + j), vr(vGt), vr(vQg + 4 * i + j)), None) for j in range(4)]
    return L


def yflag():
    a(f"""
    s_cmp_eq_u32 s{sWave}, 0
    s_cbranch_scc0 L_noyflag
    """)
    sh = list(a.hist)
    a.cond = True
    flag(sT0, P['fsy'])
    a.cond = False
    a.label('L_noyflag')
    a.hist = sh
    stamp('yflag')


def ywrite():
    return [lambda: a.wait_vm('yl')] + [('ds_write_b128 %s, %s offset:%d' % (
        vr(vXa + 3), vr(vYl + 4 * m, 4), 16384 + 1024 * m), 'xw') for m in range(3)]


def yread():
    return [('ds_read_b64_tr_b16 %s, %s offset:%d' % (
        vr(vYt + 2 * i, 2), vr(vYr), RINGW * ((2 * i) % 4) + 1024 * (i // 2)), ('yt', i)) for i in range(5)]


YC = P['ychk']
EARLY = YC <= 40
QLATE = P['qeat'] + UW >= 52
assert not (EARLY and QLATE)
yq = [('buffer_load_dwordx4 %s, %s, %s, 0 offen sc1' % (vr(vYl + 4 * m, 4), vr(vYa + m), sr(rWS, 4)), 'yl')
      for m in range(3)]
qE = g2.stream()
g2.streams.insert(0, g2.streams.pop())
def g2ready(F):
    st, ks = divmod(F, 12)
    if st == 0:
        g2.flush(qT2, lambda: any(not callable(x) and x[1] == ('tr', 'w2', ks) for x in qT2))
    if ks == 0:
        g2.flush(qE, lambda: any(not callable(x) and x[1] == 'xw' for x in qE))
    a.wait_vm(('u', F))
    if st == 0:
        a.wait_lg(('tr', 'w2', ks))


g2ready(0)
for F in range(60):
    st, ks = divmod(F, 12)
    for n in range(4):
        d = vr(vOwn + 4 * st, 4) if n == 0 else ar(aOth + 12 * (st & 1) + 4 * (n - 1), 4)
        a('v_mfma_f32_16x16x32_bf16 %s, %s, %s, %s' % (
            d, vr(vUw + 4 * (F % UW), 4), ar(areg('w2', ks) + 4 * n, 4), '0' if ks == 0 else d))
        forced = None
        if n == 0 and 1 <= F <= 60 - UW:
            forced = lambda: uload(F - 1 + UW)
        elif n == 2 and F == P['ypoll']:
            forced = lambda: poll_issue(vPo)
        elif n == 2 and F >= P['qeat'] and qeq:
            assert F >= 20
            forced = lambda: emit(qeq.pop(0))
        elif n == 2 and F > YC and yq:
            forced = lambda: emit(yq.pop(0))
        if n == 3 and F < 59:
            g2ready(F + 1)
        g2.gap(forced=forced)
    if F == P['yflag']:
        g2.flush(qM)
        qE += [lambda: a.wait_vm('yst'), ('s_barrier', None), yflag]
    if st > 0 and ks == 1:
        g2.flush(qM)
        if EARLY and st == 4:
            qE += ywrite()
        qE += xwrite(st - 1) + [('delay', P['bdel2']), lambda: a.wait_lg('xw')] + ([('s_barrier', None)] if 'C' not in P['dbg'] else []) + xread(st - 1)
        if EARLY and st == 4:
            qE += yread()
        qE += [('delay', P['rdel2'])] + xsum(st - 1) + base(st - 1)
        if EARLY and st == 4:
            for i in range(4):
                qE += fin(i, False)
            qE += oread((0, 1)) + [('delay', 4)] + ostore((0, 1))
    if not QLATE and F == max(P['qeat'] + UW + 2, 28):
        qE += qprep(False)
    if F == YC:
        poll_check('L_polly', vPo)
        stamp('ypoll')
g2left = len(qE)
stamp('g2end')
while yq:
    emit(yq.pop(0))
g2.flush(qE, lambda: any(not callable(x) and x[0] == 's_barrier' for x in qE))
for it in xwrite(4):
    emit(it)
g2.flush(qE)
if QLATE:
    for it in qprep(True):
        emit(it)
stamp('tq')
if not EARLY:
    for it in ywrite():
        emit(it)
a('s_waitcnt lgkmcnt(0)')
stamp('ty')
a('s_barrier')
stamp('tb')
L = xread(4)
if not EARLY:
    L = yread() + L
    for i in range(4):
        L += fin(i)
    L += oread((0, 1))
L += xsum(4, True) + base(4, True) + fin(4) + oread((2,))
L += ostore((2,) if EARLY else (0, 1, 2))
for it in L:
    emit(it)
stamp('tst')
a('s_add_u32 %s, s2, %s' % (sr(t2), sr(sWave)))
a('s_cmp_eq_u32 %s, 0' % sr(t2))
a('s_cbranch_scc0 L_noepoch')
flag(t2)
a.label('L_noepoch')
if STAMPS:
    a('s_waitcnt vmcnt(0)')
    nstamp[0] = min(nstamp[0], 15)
    stamp('end')
    a(f'''
    s_lshl_b32 s{sT0}, s2, 2
    s_add_u32 s{sT0}, s{sT0}, s{sWave}
    s_lshl_b32 s{sT0}, s{sT0}, 7
    s_add_u32 s{sT0}, s{sT0}, {WS_ST}
    s_mov_b64 exec, 1
    ''')
    for i in range(nstamp[0]):
        a('v_mov_b32 v10, %s' % sr(sStamp + i))
        a('buffer_store_dword v10, off, %s, %s offset:%d' % (sr(rWS, 4), sr(sT0), 4 * i))
if PROBE:
    a(f'''
    s_cmp_eq_u32 s{sStamp+PROBE[0]}, 0
    s_cselect_b32 s{sT0}, s{sStamp}, s{sStamp+PROBE[0]}
    s_add_u32 s{sT0}, s{sT0}, 6000
    ''')
    a.label('L_probe')
    a(f'''
    s_memrealtime s[100:101]
    s_waitcnt lgkmcnt(0)
    s_sub_u32 s{sT1}, s100, s{sT0}
    s_cmp_lt_i32 s{sT1}, 0
    s_cbranch_scc1 L_probe
    ''')
a.label('L_end')
a('s_endpgm')

PADTXT = '' if P['pad'] < 0 else '.p2align 12\n' + ('.fill %d, 4, 0xbf800000\n' % (64 * P['pad']) if P['pad'] else '')
hdr = open('cdna_kernels/%s.s.ref' % NAME).read().split('; Override launch')[0]
def render():
    return hdr + f'''; @launch grid=(256,1,1) block=(256,1,1) lds={LDS_BYTES}
; stamps: {' '.join(stamp_names)}
.amdgcn_target "amdgcn-amd-amdhsa--gfx950"
.text
.globl {NAME}_kernel
{PADTXT}.p2align 8
.type {NAME}_kernel,@function
{NAME}_kernel:
''' + a.text() + f'''.section .rodata,"a"
.p2align 6
.amdhsa_kernel {NAME}_kernel
  .amdhsa_next_free_vgpr 512
  .amdhsa_next_free_sgpr 102
  .amdhsa_accum_offset 256
  .amdhsa_group_segment_fixed_size 0
  .amdhsa_kernarg_size 120
  .amdhsa_user_sgpr_count 2
  .amdhsa_user_sgpr_kernarg_segment_ptr 1
  .amdhsa_system_sgpr_workgroup_id_x 1
.end_amdhsa_kernel
'''


if warm_pages:
    import subprocess, re, tempfile, os
    assert P['pad'] >= 0
    real = list(a.out)
    a.out = real + ['L_page%d:' % p for p in warm_pages] + ['    s_endpgm']
    d = tempfile.mkdtemp()
    open(d + '/t.s', 'w').write(render())
    subprocess.check_call(['clang', '-x', 'assembler', '-target', 'amdgcn-amd-amdhsa', '-mcpu=gfx950',
                           '-c', d + '/t.s', '-o', d + '/t.o'])
    dis = subprocess.check_output(['llvm-objdump', '-d', '--mcpu=gfx950', d + '/t.o'], text=True)
    dis = dis[dis.index('<%s_kernel>:' % NAME):]
    addrs = [int(m, 16) for m in re.findall(r'// ([0-9A-F]{12}):', dis)]
    off0 = ((P['pad'] + 3) * 256) % 4096
    res, k, shift, todo, full = [], 0, 0, sorted(warm_pages), True
    for line in real:
        if line.startswith('    ') and not line.strip().startswith(';'):
            pos = addrs[k] - addrs[0] + off0 + shift
            if todo and pos >= 4096 * todo[0] and full:
                res += ['L_page%d:' % todo.pop(0), '    s_cbranch_execz L_wmret']
                shift += 4
            if ' exec' in line and line.split()[1].startswith('exec'):
                full = line.replace(' ', '') == 's_mov_b64exec,-1'
            k += 1
        res.append(line)
    assert not todo
    a.out = res
txt = render()
open(OUT, 'w').write(txt)
print('left: g1', t4left, g1sl, g1left, 'conv', left, 'g2', g2left, ' '.join(log))
print('wrote', OUT, 'lines', len(a.out), 'nops', a.nops, 'stamps', nstamp[0], stamp_names)
```

```python
import sys, struct
from asmlib import Asm, vr, ar, sr

NAME = 'gated_mix__ssm_conv_h3__mixer_token_mlp__prompt'
STAMPS = '--stamps' in sys.argv
OUT = [x for x in sys.argv[1:] if not x.startswith('--')][0]
PROBE = [int(x[8:]) for x in sys.argv if x.startswith('--probe=')]
if PROBE:
    STAMPS = True
P = dict(hrot=0, wrot=0, wrot2=0, urot=0, xrot=0, xrot2=0, arr1=1, arr2=1, outmod='', nost='', dbg='',
         win=10, gat=45, ntail=4, nw=0, nm=0, ntk=0, nts=0, ntw1=0, ntw2=0, ntq=0, ntq2=0, gsp=1, psp=0, pxsp=1, b1l=1, g64=1, k2x4=1, xl=0, mat=33, pld=52, fsh=5, wstep=2, ewsp=0, w64=1, a2=0, dbl=1, xat=170, xw64=0, mflush=1, urg=8, ccap=12, ffull=1, fsk=5, fsu=6, fsy=5, slp=0, cp0=2, q0=1, pad=5, bdel=2, rdel=3, bdel2=3, rdel2=3, pmask=1, mst='',
         lead=5, ldsr=6.0, vsp=4, t0=20, tlag=2, tdel=4, ndef=4, uflag=30, pollu=150, ulag=35, uw=14,
         yflag=10, ypoll=44, ychk=55, qeat=46,
         wscript='D0 KL K2L VL GW D1 SSL D2 D3 ML T0 T1 D4 D5 D6', t4rate=99,
         script='Q CP D0 SA W:KL R:8 LN SB HF R:12 GATE KC K2C R:8 SL ST HP AD BU T4 D7 T5')
BEST = '''script=Q_D0_S0_SA_S2_SC_SR_W:KH_R:9_LN_SB_HF_R:12_GATE_KC_K2C_R:11_SL_HP_AD_BU_ST_T4_T3 wscript=D0_KL_KH_GW_VL_K2L_SSL_D1_SN_ML_D2_D3_T0_D4_D5_D6_T1 b1l=0 g64=0 k2x4=1 win=10 gat=45 pld=52 ntail=4 xl=0 uflag=30 pollu=160 ulag=30 uw=13 vsp=4 t0=10 tdel=4 tlag=2 ndef=4 xat=160 ewsp=0 ldsr=6.0 ccap=8 urg=8 lead=5 dbl=1 w64=0 xw64=0 mflush=1 yflag=10 ypoll=44 ychk=55 qeat=46 bdel=4 rdel=5 bdel2=3 rdel2=3 fsh=4 fsk=3 fsu=6 fsy=4 xrot=0 hrot=21 urot=0 xrot2=0 wrot=0 wrot2=0 cp0=0 pad=5 gsp=1 psp=0 pxsp=1'''
for x in ['--p:' + y for y in BEST.split()] + sys.argv:
    if x.startswith('--p:'):
        k, v = x[4:].split('=')
        assert k in P, k
        P[k] = type(P[k])(v)
assert P['arr2'] == 1
f2u = lambda x: struct.unpack('<I', struct.pack('<f', x))[0]

WS_EPOCH = 0
WS_DUMMY = 0x800
WS_FKV = 0x1000
WS_FY = 0x9000
WS_FU = 0x9A0000
WS_G = 0x18000
WS_ST = 0x20000
WS_HT8 = 0x40000
WS_KV = 0x2C0000
WS_UF = 0x540000
WS_YT = 0x720000
WS_PX = 0x9C0000
WS_FH = 0xD80000
WS_G64 = 0xDA0000
WS_END = 0xDB0000
OOB = 0x7ff00000
RINGW = 24576
L_T4 = 98304
T4SZ = 16512
L_X = 147840
XSZ = 4608
L_LN = L_X
LNROW = 1344
LDS_BYTES = 163840
SPIN_MAX = 200000

sQ, sK, sV, sSK, sHK, sD, sW1, sB1, sW2, sB2, sGW, sOUT, sWS = 4, 6, 8, 10, 12, 14, 18, 20, 22, 24, 26, 28, 30
rWS, rW, rK, rH = 32, 36, 40, 44
sN = 48
sWave, sR, sDT, sFT, sDT2, sST2, sP0, sNCH, sRot, sRing = 50, 51, 52, 53, 54, 55, 56, 57, 58, 59
sKS = 60
sT0, sT1, sSpin = 16, 17, 3
sWoff = 76
sAct = 77
sStamp = 78
sOOB = 94
sRot2 = 95
sx, sj, t2, t3 = 96, 97, 98, 99
sFU, sC40, sChE, sChM = 6, 7, 12, 13
sW2o = [8, 9, 10, 11, 14, 15, 18, 19, 20, 21, 26, 27]
sUo = [40, 41, 42, 43, 44, 45, 46, 47, 0, 1, 30, 31]

a = Asm()
nstamp = [0]
stamp_names = []


def stamp(name):
    only = [x[7:].split(',') for x in sys.argv if x.startswith('--only=')]
    if STAMPS and name not in P['nost'].split(',') and (not only or name in only[0]):
        i = nstamp[0]
        nstamp[0] += 1
        stamp_names.append(name)
        assert i < 16
        a.atomic = True
        a('s_memtime s[100:101]' if '--cyc' in sys.argv else 's_memrealtime s[100:101]')
        a('s_waitcnt lgkmcnt(0)')
        a.atomic = False
        a('s_mov_b32 %s, s100' % sr(sStamp + i))


vLane, vG, vU, vN = 1, 2, 3, 4
vT = 6
vWo = 16
vTr = 20
vHo = 24
vB1 = 28
vPoll = 36
vPo = 38
vXa = 40
vMisc = 44
vAe, vBe, vAm, vBm = 52, 53, 54, 55
vA8 = dict(e=[52, 24, 44, 25, 45, 26, 46, 27], m=[54, 63, 57, 13, 59, 50, 61, 51])
vADe, vADm = 56, 60
t0, t1, t4 = vT + 4, vT + 5, vT + 6
vTr2, vWo2 = 248, 252


def poll_issue(voff):
    a('buffer_load_dwordx2 %s, %s, %s, 0 offen sc1' % (vr(vPoll, 2), vr(voff), sr(rWS, 4)), tag='poll')


def poll_check(name, voff):
    a.wait_vm('poll')
    a('v_cmp_ne_u64 vcc, %s, %s' % (sr(sN, 2), vr(vPoll, 2)))
    a('s_cbranch_vccz %s_ok' % name)
    save, sh = list(a.vm), list(a.hist)
    a('s_mov_b32 %s, 0' % sr(sSpin))
    a.label(name)
    if P['pmask']:
        a('s_mov_b64 exec, vcc')
    if P['slp']:
        a('s_sleep %d' % P['slp'])
    a('buffer_load_dwordx2 %s, %s, %s, 0 offen sc1' % (vr(vPoll, 2), vr(voff), sr(rWS, 4)))
    a('s_waitcnt vmcnt(0)')
    a('v_cmp_ne_u64 vcc, %s, %s' % (sr(sN, 2), vr(vPoll, 2)))
    a('s_add_u32 %s, %s, 1' % (sr(sSpin), sr(sSpin)))
    a('s_cbranch_vccz %s_out' % name)
    a('s_cmp_lt_u32 %s, %d' % (sr(sSpin), SPIN_MAX))
    a('s_cbranch_scc1 %s' % name)
    a.label(name + '_out')
    a('s_mov_b64 exec, -1')
    a.label(name + '_ok')
    a.vm, a.hist = save, sh


vL8 = 47


def flag(soff, lg=3):
    a('s_mov_b64 exec, %d' % ((1 << (1 << (lg - 3))) - 1 if P['ffull'] else 1))
    a('buffer_store_dwordx2 %s, %s, %s, %s offen sc1' % (vr(vN, 2), vr(vL8), sr(rWS, 4), sr(soff)), tag='flag')
    a('s_mov_b64 exec, -1')


def dma_list(which, ks, slot):
    L = []
    if which == 'w1':
        L += [f's_add_u32 s{sWoff}, s{sRot}, {ks}', f's_and_b32 s{sWoff}, s{sWoff}, 7',
              f's_mul_i32 s{sWoff}, s{sWoff}, {32*3072}']
    L.append('s_add_u32 m0, %s, %d' % (sr(sRing), slot * 4096))
    L = [(x, None) for x in L]
    for jj in range(4):
        L.append((('buffer_load_dwordx4 %s, %s, %s offen offset:%d ' + ('nt ' if ks < P['nt' + which] else '') + 'lds') % (
            vr((vWo if which == 'w1' else vWo2) + jj), sr(rW, 4), sr(sWoff if which == 'w1' else sW2o[ks]), 1024 * jj), (which, ks)))
    return L


def D(which, ks, slot):
    for x, t in dma_list(which, ks, slot):
        a(x, tag=t)


def areg(which, ks):
    return 16 * ks if which == 'w1' else (128 + 16 * ks) % 256


def tr_list(which, ks, slot):
    hs = 512 if which == 'w1' else 2048
    return [('ds_read_b64_tr_b16 %s, %s offset:%d' % (
        ar(areg(which, ks) + 4 * n + 2 * hh, 2), vr((vTr if which == 'w1' else vTr2) + n), slot * 4096 + hh * hs), ('tr', which, ks))
        for n in range(4) for hh in range(2)]


def T(which, ks, slot):
    a.wait_vm((which, ks))
    for x, t in tr_list(which, ks, slot):
        a(x, tag=t)


def reduce32(v, tmp):
    for r in (8, 4, 2, 1):
        a('v_add_f32 %s, %s, %s row_ror:%d' % (vr(v), vr(v), vr(v), r))
    a('v_mov_b32 %s, %s' % (vr(tmp), vr(v)))
    a('v_permlane16_swap_b32 %s, %s' % (vr(v), vr(tmp)))
    a('v_add_f32 %s, %s, %s' % (vr(v), vr(v), vr(tmp)))


def chan_of(dst, pos):
    a(f'''
    s_cmp_ge_u32 s{pos}, 320
    s_cselect_b32 s{t3}, 639, 0
    s_lshl_b32 s{dst}, s{pos}, 1
    s_sub_u32 s{dst}, s{dst}, s{t3}
    ''')


if STAMPS:
    a('s_memtime s[100:101]' if '--cyc' in sys.argv else 's_memrealtime s[100:101]')
a('s_load_dwordx16 s[4:19], s[0:1], 0')
a('s_cmp_ge_u32 s2, 256')
a('s_cbranch_scc1 L_end')
a('s_load_dwordx8 s[20:27], s[0:1], 64')
a('s_load_dwordx2 s[28:29], s[0:1], 96')
a('s_load_dwordx2 s[30:31], s[0:1], 112')
vQo, vQo2, vL5, vRow = vT, vT + 1, vT + 2, vT + 3
vQ = 64


def code_prefetch():
    a.raw('    s_getpc_b64 s[48:49]')
    a.label('L_pc')
    a(f"""
    v_lshrrev_b32 v{t0}, 4, v0
    v_and_or_b32 v{t0}, v0, 3, v{t0}
    v_lshl_add_u32 v{t0}, s{sj}, 4, v{t0}
    v_lshlrev_b32 v{t0}, 6, v{t0}
    v_min_u32 v{t0}, L_end-L_pc, v{t0}
    s_mov_b64 exec, 15
    global_load_dword v207, v{t0}, s[48:49]
    s_mov_b64 exec, -1
    """)


def q_loads():
    a('s_waitcnt lgkmcnt(0)')
    a('global_load_dwordx4 %s, %s, %s' % (vr(vQ, 4), vr(vQo), sr(sQ, 2)) + ' nt' * P['ntq'], tag='q')
    a('global_load_dwordx4 %s, %s, %s offset:512' % (vr(vQ + 4, 4), vr(vQo), sr(sQ, 2)) + ' nt' * P['ntq'], tag='q')
    a('global_load_dwordx2 %s, %s, %s offset:1024' % (vr(vQ + 8, 2), vr(vQo2), sr(sQ, 2)) + ' nt' * P['ntq'], tag='q')


a(f's_lshr_b32 s{sj}, s2, 3')
if P['cp0'] == 1:
    code_prefetch()
a(f"""
s_and_b32 s{sx}, s2, 7
s_lshl_b32 s{sR}, s{sx}, 5
s_add_u32 s{sR}, s{sR}, s{sj}
v_and_b32 v{vL5}, 31, v0
v_lshrrev_b32 v{vRow}, 5, v0
v_lshl_add_u32 v{vQo2}, s{sR}, 3, v{vRow}
v_mul_u32_u24 v{vQo2}, 1280, v{vQo2}
v_lshl_add_u32 v{vQo}, v{vL5}, 4, v{vQo2}
v_lshl_add_u32 v{vQo2}, v{vL5}, 3, v{vQo2}
""")
if P['q0']:
    q_loads()
if P['cp0'] == 2:
    code_prefetch()
a('v_lshrrev_b32 %s, 6, v0' % vr(t0))
a('v_and_b32 %s, 63, v0' % vr(vLane))
a('v_readfirstlane_b32 %s, %s' % (sr(sWave), vr(t0)))
a('v_lshrrev_b32 %s, 4, %s' % (vr(vG), vr(vLane)))
a('v_and_b32 %s, 15, %s' % (vr(vU), vr(vLane)))
sKW = 3
a(f"""
s_mul_i32 s{t2}, s{sj}, 52
s_lshr_b32 s{t2}, s{t2}, 8
s_mul_i32 s{t3}, s{t2}, 5
s_sub_u32 s{sDT}, s{sj}, s{t3}
""")
if P['wrot']:
    a(f"""
    s_add_u32 s{sRot}, s{sDT}, s{sWave}
    s_cmp_ge_u32 s{sRot}, 5
    s_cselect_b32 s{t3}, 5, 0
    s_sub_u32 s{sRot}, s{sRot}, s{t3}
    s_mul_i32 s{sRot}, s{sRot}, 13
    """)
else:
    a(f's_mul_i32 s{sRot}, s{sDT}, 13')
a(f"""
s_lshr_b32 s{sRot}, s{sRot}, 3
s_and_b32 s{t3}, s{sx}, 1
s_lshl1_add_u32 s{sDT}, s{sDT}, s{t3}
s_lshl2_add_u32 s{sKW}, s{t3}, s{sWave}
s_lshr_b32 s{t3}, s{sx}, 1
s_mul_i32 s{sFT}, s{t3}, 6
s_add_u32 s{sFT}, s{sFT}, s{t2}
""")
a(f"""
s_cmp_lt_u32 s{sj}, 30
s_cselect_b32 s{sAct}, 1, 0
s_mul_i32 s{sRing}, s{sWave}, {RINGW}
""")
if P['hrot']:
    a(f"""
    s_mul_i32 s{t2}, s{t2}, {P['hrot']}
    s_lshr_b32 s{t2}, s{t2}, 4
    s_add_u32 s{sRot}, s{sRot}, s{t2}
    """)
if P['xrot']:
    a(f"""
    s_lshr_b32 s{t2}, s{sx}, 1
    s_mul_i32 s{t2}, s{t2}, {P['xrot']}
    s_add_u32 s{sRot}, s{sRot}, s{t2}
    """)
a(f"""
v_lshrrev_b32 v{t0}, 3, v{vLane}
v_mul_u32_u24 v{t0}, 3072, v{t0}
s_mul_i32 s{t2}, s{sKW}, {256*3072}
s_lshl_b32 s{t3}, s{sFT}, 7
s_add_u32 s{t2}, s{t2}, s{t3}
v_add_u32 v{t0}, s{t2}, v{t0}
v_and_b32 v{t1}, 7, v{vLane}
v_and_b32 v{t4}, 1, v{vG}
v_lshlrev_b32 v{t4}, 1, v{t4}
v_xor_b32 v{t1}, v{t1}, v{t4}
v_xor_b32 v{t4}, 4, v{t1}
v_lshl_add_u32 v{vWo}, v{t1}, 4, v{t0}
v_lshl_add_u32 v{vWo+1}, v{t4}, 4, v{t0}
v_add_u32 v{vWo+2}, {2*(24576-1024)}, v{vWo}
v_add_u32 v{vWo+3}, {3*(24576-1024)}, v{vWo+1}
v_add_u32 v{vWo+1}, {24576-1024}, v{vWo+1}
""")
vX = 76
vGWp = 96
vHp = vHt = 108
vKV1, vKV2 = 120, 144
vSS, vSN, vSNew, vK2a = 168, 192, 196, 156
vGa, vGa2, vGs = 236, 237, 238
vK2t, vSa, vSna, vMla, vT4a = 160, 161, 164, 204, 240
vBf = 208
sCh = [96, 97]
vLw, vLw2, vLr, vHs, vHs1, vHs2 = vMisc, vMisc + 1, vMisc + 2, vMisc + 3, vMisc + 4, vMisc + 5
vKo, vKo4, vKoh, vTo, vKs = 240, 241, 242, 243, 234
vDe, vDm = 246, 247
vXg, vXw, vPkv, vUo = vMisc, vMisc + 1, vMisc + 2, vMisc + 4
vUst = 245
vPs, vPr = 243, 244
vPu = 39
vEr, vYe, vYm, vMw, vMr = 6, 8, 9, 14, 15
vXl = 224
step = {}


def script_step(name):
    def deco(f):
        step[name] = f
        return f
    return deco


@script_step('Q')
def _():
    if not P['q0']:
        q_loads()
    if P['cp0'] == 0:
        code_prefetch()
    if STAMPS:
        nstamp[0] += 1
        stamp_names.append('start')
        a('s_mov_b32 %s, s100' % sr(sStamp))
    a(f"""
    s_load_dwordx2 s[{sN}:{sN+1}], s[{sWS}:{sWS+1}], {WS_EPOCH}
    s_mov_b32 s{rW}, s{sW1}
    s_and_b32 s{rW+1}, s{sW1+1}, 0xffff
    s_mul_i32 s{rW+2}, s{sAct}, {2048*3072}
    s_mov_b32 s{rW+3}, 0x20000
    """)


@script_step('S0')
def _():
    a(f"""
    s_mov_b32 s{rK}, s{sK}
    s_and_b32 s{rK+1}, s{sK+1}, 0xffff
    s_mov_b32 s{rK+2}, {2048*1280}
    s_mov_b32 s{rK+3}, 0x20000
    s_mul_i32 s{t3}, s{sR}, 10240
    v_lshl_add_u32 v{vKo}, v0, 2, s{t3}
    v_add_u32 v{vKo4}, 5120, v{vKo}
    v_subrev_u32 v{vKoh}, 3840, v{vKo}
    v_lshlrev_b32 v{vTo}, 4, v0
    """)


@script_step('SA')
def _():
    a(f"""
    s_mov_b32 s{sOOB}, {OOB}
    s_mov_b32 s{rWS}, s{sWS}
    s_and_b32 s{rWS+1}, s{sWS+1}, 0xffff
    s_mov_b32 s{rWS+2}, {WS_END}
    s_mov_b32 s{rWS+3}, 0x20000
    v_lshlrev_b32 v{vGa}, 4, v{vL5}
    v_lshlrev_b32 v{vGa2}, 3, v{vL5}
    v_mul_u32_u24 v{t0}, {LNROW}, v{vRow}
    s_mov_b32 s{t2}, {L_LN}
    v_add3_u32 v{vLw}, v{t0}, v{vGa}, s{t2}
    v_add3_u32 v{vLw2}, v{t0}, v{vGa2}, s{t2}
    v_lshrrev_b32 v{t0}, 2, v{vU}
    v_mul_u32_u24 v{t0}, {LNROW-32}, v{t0}
    v_lshl_add_u32 v{t0}, v{vU}, 3, v{t0}
    v_lshrrev_b32 v{t1}, 4, v0
    v_lshlrev_b32 v{t1}, 5, v{t1}
    v_add3_u32 v{vLr}, v{t0}, v{t1}, s{t2}
    s_mul_i32 s{t2}, s{sR}, 10240
    s_add_u32 s{t2}, s{t2}, {WS_HT8}
    v_lshl_add_u32 v{vHs}, v0, 4, s{t2}
    v_add_u32 v{vHs1}, 4096, v{vHs}
    s_cmp_lt_u32 s{sWave}, 2
    s_cselect_b32 s{t2}, 8192, s{sOOB}
    v_add_u32 v{vHs2}, s{t2}, v{vHs}
    v_add_u32 v{vKs}, {WS_KV-WS_HT8}, v{vHs}
    v_add_u32 v{vKs+1}, 5120, v{vKs}
    s_lshl_b32 s{t2}, s{sR}, {8 if P['g64'] else 5}
    s_add_u32 s{t2}, s{t2}, {WS_G64 if P['g64'] else WS_G}
    v_lshl_add_u32 v{vGs}, v{vRow}, {5 if P['g64'] else 2}, s{t2}
    """)
    if P['g64']:
        a(f'v_lshl_add_u32 v{vGs}, v{vL5}, 2, v{vGs}')


@script_step('S2')
def _():
    a(f"""
    s_mul_i32 s{t3}, s{sR}, 10240
    v_mul_u32_u24 v{t0}, 2560, v{vG}
    s_lshl_b32 s{t2}, s{sWave}, 6
    v_lshl_add_u32 v{t1}, v{vU}, 2, s{t2}
    s_add_u32 s{t3}, s{t3}, {1024+3840}
    v_sub_u32 v{t0}, v{t1}, v{t0}
    v_add_u32 v{vK2a}, s{t3}, v{t0}
    v_lshlrev_b32 v{t1}, 2, v{t1}
    v_add_u32 v{vK2t}, 4096, v{t1}
    v_add_u32 v{vK2a+1}, 1280, v{vK2a}
    v_add_u32 v{vK2a+2}, 2560, v{vK2a}
    v_add_u32 v{vK2a+3}, 3840, v{vK2a}
    """)


@script_step('SR')
def _():
    a(f"""
    v_lshrrev_b32 v{t0}, 2, v{vU}
    v_lshl_add_u32 v{t0}, v{vG}, 3, v{t0}
    v_lshlrev_b32 v{t0}, 7, v{t0}
    v_and_b32 v{t1}, 3, v{vU}
    v_lshl_add_u32 v{t0}, v{t1}, 3, v{t0}
    v_bfe_u32 v{t1}, v{vLane}, 3, 2
    v_lshl_add_u32 v{t0}, v{t1}, 5, v{t0}
    v_add_u32 v{vTr}, s{sRing}, v{t0}
    v_xor_b32 v{vTr+1}, 32, v{vTr}
    v_xor_b32 v{vTr+2}, 64, v{vTr}
    v_xor_b32 v{vTr+3}, 0x60, v{vTr}
    """)


@script_step('SC')
def _():
    a(f"""
    s_mov_b32 s{sC40}, 40960
    s_and_b32 s{sDT2}, s{sR}, 7
    s_lshr_b32 s{sST2}, s{sR}, 3
    s_mul_i32 s{sRot2}, s{sDT2}, 3
    s_lshr_b32 s{sRot2}, s{sRot2}, 1
    s_mov_b32 s{rH}, s{sHK}
    s_and_b32 s{rH+1}, s{sHK+1}, 0xffff
    s_mov_b32 s{rH+2}, {640*4096}
    s_mov_b32 s{rH+3}, 0x20000
    s_and_b32 s{t3}, s{sR}, 1
    s_sub_u32 s{sNCH}, 3, s{t3}
    s_mul_i32 s{t2}, s{sR}, 5
    s_add_u32 s{t2}, s{t2}, s{t3}
    s_lshr_b32 s{sP0}, s{t2}, 1
    s_cmp_ge_u32 s{sR}, 128
    s_cselect_b32 s{t3}, 639, 0
    s_sub_u32 s{sCh[0]}, s{t2}, s{t3}
    s_lshl1_add_u32 s{sChE}, s{sNCH}, s{sCh[0]}
    s_sub_u32 s{sChE}, s{sChE}, 2
    s_and_b32 s{t3}, s{sWave}, 2
    s_add_u32 s{sChM}, s{sCh[0]}, s{t3}
    s_lshl_b32 s{t2}, s{sWave}, 10
    v_lshl_add_u32 v{t0}, v{vLane}, 3, s{t2}
    v_lshl_add_u32 v{vSa}, s{sCh[0]}, 12, v{t0}
    v_add_u32 v{vSa+1}, 8192, v{vSa}
    v_lshl_add_u32 v{vSa+2}, s{sChE}, 12, v{t0}
    s_lshl1_add_u32 s{t2}, s{sWave}, s{sCh[0]}
    s_min_u32 s{t2}, s{t2}, s{sChE}
    s_lshl_b32 s{t2}, s{t2}, 12
    """)
    for jj in range(3):
        a(f"""
        v_subrev_u32 v{t0}, {8-jj}, v{vLane}
        v_lshl_add_u32 v{t1}, v{t0}, 2, s{t2}
        v_and_or_b32 v{vSna+jj}, v{t0}, 2.0, v{t1}
        """)
    a(f"""
    v_lshrrev_b32 v{t0}, 2, v{vLane}
    v_lshl_add_u32 v{t0}, v{t0}, 1, s{sCh[0]}
    v_min_u32 v{t0}, s{sChE}, v{t0}
    v_lshlrev_b32 v{vMla}, 1, v{t0}
    v_lshlrev_b32 v{vMla+1}, 12, v{t0}
    s_min_u32 s{t2}, s{sFT}, 23
    s_lshl_b32 s{t2}, s{t2}, 7
    """)
    if P['b1l']:
        a(f'v_lshl_add_u32 v{vMla+2}, v{vL5}, 2, s{t2}')
    else:
        a(f'v_lshl_add_u32 v{vMla+2}, v{vG}, 3, s{t2}')


step['CP'] = lambda: None


@script_step('LN')
def _():
    a.wait_vm('q')
    stamp('q')
    for i in range(10):
        a('v_lshlrev_b32 %s, 16, %s' % (vr(vX + 2 * i), vr(vQ + i)))
        a('v_and_b32 %s, 0xffff0000, %s' % (vr(vX + 2 * i + 1), vr(vQ + i)))
    vS = vT + 4
    a('v_pk_add_f32 %s, %s, %s' % (vr(vS, 2), vr(vX, 2), vr(vX + 2, 2)))
    a('v_pk_add_f32 %s, %s, %s' % (vr(vS + 2, 2), vr(vX + 4, 2), vr(vX + 6, 2)))
    for i in range(4, 10):
        d = vS + 2 * (i & 1)
        a('v_pk_add_f32 %s, %s, %s' % (vr(d, 2), vr(d, 2), vr(vX + 2 * i, 2)))
    a('v_pk_add_f32 %s, %s, %s' % (vr(vS, 2), vr(vS, 2), vr(vS + 2, 2)))
    a('v_add_f32 %s, %s, %s' % (vr(vS), vr(vS), vr(vS + 1)))
    reduce32(vS, vS + 1)
    a('v_mul_f32 %s, 0x%08x, %s' % (vr(vS), f2u(-1.0 / 640), vr(vS)))
    for i in range(10):
        a('v_pk_add_f32 %s, %s, %s op_sel_hi:[1,0]' % (vr(vX + 2 * i, 2), vr(vX + 2 * i, 2), vr(vS, 2)))
    a('v_pk_mul_f32 %s, %s, %s' % (vr(vS, 2), vr(vX, 2), vr(vX, 2)))
    a('v_pk_mul_f32 %s, %s, %s' % (vr(vS + 2, 2), vr(vX + 2, 2), vr(vX + 2, 2)))
    for i in range(2, 10):
        d = vS + 2 * (i & 1)
        a('v_pk_fma_f32 %s, %s, %s, %s' % (vr(d, 2), vr(vX + 2 * i, 2), vr(vX + 2 * i, 2), vr(d, 2)))
    a('v_pk_add_f32 %s, %s, %s' % (vr(vS, 2), vr(vS, 2), vr(vS + 2, 2)))
    a('v_add_f32 %s, %s, %s' % (vr(vS), vr(vS), vr(vS + 1)))
    reduce32(vS, vS + 1)
    a('v_mov_b32 %s, 0x%08x' % (vr(vS + 1), f2u(1e-5)))
    a('v_fmac_f32 %s, 0x%08x, %s' % (vr(vS + 1), f2u(1.0 / 640), vr(vS)))
    a('v_rsq_f32 %s, %s' % (vr(vS), vr(vS + 1)))
    for i in range(10):
        a('v_pk_mul_f32 %s, %s, %s op_sel_hi:[1,0]' % (vr(vX + 2 * i, 2), vr(vX + 2 * i, 2), vr(vS, 2)))
    for i in range(10):
        a('v_cvt_pk_bf16_f32 %s, %s, %s' % (vr(vHp + i), vr(vX + 2 * i), vr(vX + 2 * i + 1)))
    a('ds_write_b128 %s, %s' % (vr(vLw), vr(vHp, 4)))
    a('ds_write_b128 %s, %s offset:512' % (vr(vLw), vr(vHp + 4, 4)))
    a('ds_write_b64 %s, %s offset:1024' % (vr(vLw2), vr(vHp + 8, 2)))
    a('s_waitcnt lgkmcnt(0)')
    a('s_barrier')
    for m in range(3):
        for hh in range(2):
            a('ds_read_b64_tr_b16 %s, %s offset:%d' % (
                vr(vHt + 4 * m + 2 * hh, 2), vr(vLr), 512 * m + 4 * LNROW * hh), tag=('ht', m))
    a(f"""
    s_add_u32 s{sN}, s{sN}, 0x9e3779b1
    s_add_u32 s{sN+1}, s{sN+1}, 0x85ebca77
    v_mov_b32 v{vN}, s{sN}
    v_mov_b32 v{vN+1}, s{sN+1}
    """)
    for m, vo in enumerate((vHs, vHs1, vHs2)):
        a.wait_lg(('ht', m))
        a('buffer_store_dwordx4 %s, %s, %s, 0 offen sc1' % (vr(vHt + 4 * m, 4), vr(vo), sr(rWS, 4)), tag='hst')
    stamp('hst')


small = {}
small['GW'] = [('global_load_dwordx4 %s, %s, %s' % (vr(vGWp, 4), vr(vGa), sr(sGW, 2)), 'gw'),
               ('global_load_dwordx4 %s, %s, %s offset:512' % (vr(vGWp + 4, 4), vr(vGa), sr(sGW, 2)), 'gw'),
               ('global_load_dwordx2 %s, %s, %s offset:1024' % (vr(vGWp + 8, 2), vr(vGa2), sr(sGW, 2)), 'gw')]
small['KL'] = []
for r in list(range(3, 11)) + [0, 1, 2]:
    vo, off = ((vKoh, 1280 * r) if r < 3 else (vKo, 1280 * (r - 3)) if r < 7 else (vKo4, 1280 * (r - 7)))
    small['KL'].append(('buffer_load_dword %s, %s, %s, 0 offen offset:%d' % (
        vr(vKV1 + 4 + r), vr(vo), sr(rK, 4), off), 'kv1'))
small['KL'].append(('global_load_dwordx4 %s, %s, %s' % (vr(vKV1, 4), vr(vTo), sr(sSK, 2)), 'kv1'))
small['KH'] = small['KL'][8:]
small['KL'] = small['KL'][:8]
small['VL'] = []
for r in range(8):
    vo, off = ((vKo, 1280 * r) if r < 4 else (vKo4, 1280 * (r - 4)))
    small['VL'].append(('global_load_dword %s, %s, %s offset:%d' % (vr(vKV1 + 15 + r), vr(vo), sr(sV, 2), off), 'kv1'))
small['K2L'] = [('buffer_load_dword %s, %s, %s, 0 offen offset:%d' % (
    vr(vKV2 + 4 + m), vr(vK2a + min(m, 3)), sr(rK, 4), 1280 if m == 4 else 0), 'kv2') for m in range(5)]
small['K2L'] += [('global_load_dword %s, %s, %s offset:%d' % (
    vr(vKV2 + 9 + m), vr(vK2a + 3), sr(sV, 2), 1280 * m), 'kv2') for m in range(2)]
small['K2L'].append(('global_load_dwordx4 %s, %s, %s' % (vr(vKV2, 4), vr(vK2t), sr(sSK, 2)), 'kv2'))
small['SSL'] = [('buffer_load_dwordx4 %s, %s, %s, 0 offen offset:%d' % (
    vr(vSS + 8 * t + 4 * c, 4), vr(vSa + t), sr(rH, 4), 512 * c), 'ss') for t in range(3) for c in range(2)]
small['SSL'] += [('buffer_load_dword %s, %s, %s, 0 offen' % (vr(vSN + jj), vr(vSna + jj), sr(rH, 4)), 'ss')
                 for jj in range(3)]
small['SN'] = small['SSL'][6:]
small['SSL'] = small['SSL'][:6]
small['ML'] = [('global_load_ushort %s, %s, %s' % (vr(vDe), vr(vMla), sr(sD, 2)), 'dd'),
               ('buffer_load_ushort %s, %s, %s, 0 offen' % (vr(vDm), vr(vMla + 1), sr(rH, 4)), 'dd')]
for k in ('KL', 'KH', 'VL', 'K2L', 'SSL'):
    if P['nts' if k == 'SSL' else 'ntk']:
        small[k] = [(x + (' nt' if k == 'SSL' or 'x4' not in x else ''), t) for x, t in small[k]]
L_B1 = 163328
if P['b1l']:
    small['ML'] += [(f's_mov_b32 m0, {L_B1}\n' + 'global_load_lds_dword %s, %s' % (vr(vMla + 2), sr(sB1, 2)), 'b1')]
else:
    small['ML'] += [('global_load_dwordx2 %s, %s, %s offset:%d' % (
        vr(vB1 + 2 * n, 2), vr(vMla + 2), sr(sB1, 2), 32 * n), 'b1') for n in range(4)]

W = []


NW = P['nw']
NSTEP = 8 + NW
wk = lambda i: ('w1', i) if i < 8 else ('w2', i - 8)
done_steps = set()


def w2_desc():
    assert NW == 0 or {'ST', 'SL'} <= done_steps
    a(f"""
    s_mov_b32 s{rW}, s{sW2}
    s_and_b32 s{rW+1}, s{sW2+1}, 0xffff
    s_mov_b32 s{rW+2}, {1536*4096}
    """)


def w_dma(i):
    L = dma_list(*wk(i), i % 6)
    pre = [lambda: a.wait_lg(('tr', *wk(i - 6)))] if i >= 6 else []
    if i == 8:
        pre.append(w2_desc)
    W.append(('D', i, False, pre + L[:-3]))
    for k in range(3):
        W.append(('D', i, k == 2, [L[-3 + k]]))


def w_tr(i):
    L = tr_list(*wk(i), i % 6)
    W.append(('T', i, False, [lambda: a.wait_vm(wk(i))] + L[:4]))
    W.append(('T', i, True, L[4:]))


nd = nt = 0
for tok in P['wscript'].replace('_', ' ').split():
    if tok in small:
        for k, it in enumerate(small[tok]):
            W.append(('W', tok, k == len(small[tok]) - 1, [it]))
    elif tok[0] == 'D':
        assert int(tok[1:]) == nd and nd < nt + 6
        w_dma(nd)
        nd += 1
    else:
        assert int(tok[1:]) == nt and nt < nd
        w_tr(nt)
        nt += 1
assert all(any(x[:2] == ('W', k) for x in W) for k in small)
while nt < NSTEP:
    w_tr(nt)
    nt += 1
    while nd < NSTEP and nd < nt + 5:
        w_dma(nd)
        nd += 1
T4Q = []
wdone = set()


def w_ready(kind, i):
    if kind == 'W':
        need = dict(KL='S0', KH='S0', VL='S0', GW='SA', K2L='S0 S2', SSL='SC', SN='SC', ML='SC')[i]
    else:
        need = 'SR' if kind == 'T' else 'ST SL' if i >= 8 else 'LN' if i >= 6 else 'Q'
    return set(need.split()) <= done_steps


def w_atom():
    kind, i, fin_, items = W.pop(0)
    assert w_ready(kind, i), (kind, i)
    was = a.in_hook
    a.in_hook = True
    for it in items:
        emit(it)
    a.in_hook = was
    if fin_:
        wdone.add((kind, i))


def w_until(kind, i):
    n = 0
    while (kind, i) not in wdone:
        w_atom()
        n += 1
        if T4Q and n % 2 == 0 and P['t4rate'] < 99:
            was = a.in_hook
            a.in_hook = True
            t4_piece()
            a.in_hook = was


rate, since = [0], [0, 0]


def w_hook():
    since[0] += 1
    if rate[0] and since[0] >= rate[0] and W and w_ready(*W[0][:2]):
        since[0] = 0
        w_atom()
    since[1] += 1
    if T4Q and since[1] >= P['t4rate']:
        since[1] = 0
        t4_piece()


@script_step('HF')
def _():
    a(f"""
    v_lshlrev_b32 v{vL8}, 3, v{vLane}
    s_lshl_b32 s{t2}, s{sWave}, 8
    s_add_u32 s{t2}, s{t2}, s{sR}
    s_lshl_b32 s{t2}, s{t2}, {P['fsh']}
    s_add_u32 s{t2}, s{t2}, {WS_FH}
    """)
    a.wait_vm('hst')
    flag(t2, P['fsh'])
    stamp('hflag')


@script_step('GATE')
def _():
    w_until('W', 'GW')
    a.wait_vm('gw')
    vZ = vT + 4
    a('v_mov_b32 %s, 0' % vr(vZ))
    for i in range(10):
        a('v_dot2_f32_bf16 %s, %s, %s, %s' % (vr(vZ), vr(vQ + i), vr(vGWp + i), vr(vZ)))
    reduce32(vZ, vZ + 1)
    a(f"""
    v_mul_f32 v{vZ}, 0xbfb8aa3b, v{vZ}
    v_exp_f32 v{vZ}, v{vZ}
    v_add_f32 v{vZ}, 1.0, v{vZ}
    v_rcp_f32 v{vZ}, v{vZ}
    s_mov_b32 exec_lo, {255 if P['g64'] else 1}
    s_mov_b32 exec_hi, {255 if P['g64'] else 1}
    """)
    a('buffer_store_dword %s, %s, %s, 0 offen sc1' % (vr(vZ), vr(vGs), sr(rWS, 4)), tag='kvst')
    a('s_mov_b64 exec, -1')


vP, vKu, vAcc, vVt, vKp = 64, 72, 94, 110, 112


def kv_compute(b):
    for c in range(2):
        for h in range(2):
            a('v_lshlrev_b32 %s, 16, %s' % (vr(vP + 4 * h + c), vr(b + 2 * c + h)))
            a('v_and_b32 %s, 0xffff0000, %s' % (vr(vP + 4 * h + 2 + c), vr(b + 2 * c + h)))
    for r in range(11):
        a('v_lshlrev_b32 %s, 16, %s' % (vr(vKu + 2 * r), vr(b + 4 + r)))
        a('v_and_b32 %s, 0xffff0000, %s' % (vr(vKu + 2 * r + 1), vr(b + 4 + r)))
    for r in range(8):
        d = vr(vAcc + 2 * r, 2)
        a('v_pk_mul_f32 %s, %s, %s' % (d, vr(vP + 6, 2), vr(vKu + 2 * r, 2)))
        a('v_lshlrev_b32 %s, 16, %s' % (vr(vVt), vr(b + 15 + r)))
        for j in (2, 1, 0):
            a('v_pk_fma_f32 %s, %s, %s, %s' % (d, vr(vP + 2 * j, 2), vr(vKu + 2 * (r + 3 - j), 2), d))
        a('v_and_b32 %s, 0xffff0000, %s' % (vr(vVt + 1), vr(b + 15 + r)))
        a('v_pk_mul_f32 %s, %s, %s' % (d, d, vr(vVt, 2)))
    for c in range(2):
        for j in range(4):
            a('v_cvt_pk_bf16_f32 %s, %s, %s' % (
                vr(vKp + 4 * c + j), vr(vAcc + 2 * (7 - 2 * j) + c), vr(vAcc + 2 * (6 - 2 * j) + c)))
    a('buffer_store_dwordx4 %s, %s, %s, 0 offen sc1' % (vr(vKp, 4), vr(vKs), sr(rWS, 4)), tag='kvst')
    a('buffer_store_dwordx4 %s, %s, %s, 0 offen sc1' % (vr(vKp + 4, 4), vr(vKs + 1), sr(rWS, 4)), tag='kvst')


@script_step('KC')
def _():
    w_until('W', 'KL')
    w_until('W', 'KH')
    w_until('W', 'VL')
    a.wait_vm('kv1')
    kv_compute(vKV1)


@script_step('K2C')
def _():
    b = vKV2
    w_until('W', 'K2L')
    a.wait_vm('kv2')
    for c in range(2):
        for h in range(2):
            a('v_lshlrev_b32 %s, 16, %s' % (vr(vP + 4 * h + c), vr(b + 2 * c + h)))
            a('v_and_b32 %s, 0xffff0000, %s' % (vr(vP + 4 * h + 2 + c), vr(b + 2 * c + h)))
    for r in range(7):
        a('v_lshlrev_b32 %s, 16, %s' % (vr(vKu + 2 * r), vr(b + 4 + r)))
        a('v_and_b32 %s, 0xffff0000, %s' % (vr(vKu + 2 * r + 1), vr(b + 4 + r)))
    for r in range(2):
        d = vr(vAcc + 2 * r, 2)
        a('v_pk_mul_f32 %s, %s, %s' % (d, vr(vP + 6, 2), vr(vKu + 2 * r, 2)))
        for j in (2, 1, 0):
            a('v_pk_fma_f32 %s, %s, %s, %s' % (d, vr(vP + 2 * j, 2), vr(vKu + 2 * (r + 3 - j), 2), d))
        a('v_pk_mul_f32 %s, %s, %s' % (d, d, vr(vKu + 10 + 2 * r, 2)))
    a(f"""
    s_mul_i32 s{t2}, s{sR}, 10240
    s_add_u32 s{t2}, s{t2}, {WS_KV+4096}
    s_lshl_b32 s{t3}, s{sWave}, 8
    s_add_u32 s{t2}, s{t2}, s{t3}
    v_lshl_add_u32 v{t0}, v{vU}, 4, s{t2}
    """)
    if P['k2x4']:
        o = vAcc + 4
        a(f"""
        v_cvt_pk_bf16_f32 v{o}, v{vAcc+2}, v{vAcc}
        v_cvt_pk_bf16_f32 v{o+2}, v{vAcc+3}, v{vAcc+1}
        v_lshrrev_b32 v{t1}, 1, v{vG}
        v_mul_u32_u24 v{t1}, 5120, v{t1}
        v_permlane32_swap_b32 v{o}, v{o+2}
        v_add_u32 v{t0}, v{t0}, v{t1}
        v_lshlrev_b32 v{t1}, 30, v{vG}
        v_mov_b32 v{o+1}, v{o}
        v_mov_b32 v{o+3}, v{o+2}
        v_and_or_b32 v{t0}, v{t1}, 2.0, v{t0}
        v_permlane16_swap_b32 v{o}, v{o+1}
        v_permlane16_swap_b32 v{o+2}, v{o+3}
        """)
        a('buffer_store_dwordx4 %s, %s, %s, 0 offen sc1' % (vr(o, 4), vr(t0), sr(rWS, 4)), tag='kvst')
    else:
        a(f"""
        v_lshl_add_u32 v{t0}, v{vG}, 2, v{t0}
        v_add_u32 v{t1}, 5120, v{t0}
        """)
        for c in range(2):
            a('v_cvt_pk_bf16_f32 %s, %s, %s' % (vr(vAcc + 4 + c), vr(vAcc + 2 + c), vr(vAcc + c)))
            a('buffer_store_dword %s, %s, %s, 0 offen sc1' % (
                vr(vAcc + 4 + c), vr((t0, t1)[c]), sr(rWS, 4)), tag='kvst')
    stamp('kvst')


@script_step('T4')
def _():
    for k in ('KL', 'VL', 'SSL', 'SN'):
        w_until('W', k)
    a(f"""
    s_min_u32 s{t2}, s{sWave}, 2
    s_mul_i32 s{t2}, s{t2}, {T4SZ}
    s_add_u32 s{t2}, s{t2}, {L_T4}
    v_lshl_add_u32 v{vT4a}, v{vLane}, 4, s{t2}
    s_lshl_b32 s{t2}, s{sWave}, 12
    s_add_u32 s{t2}, s{t2}, {L_T4+128}
    v_lshl_add_u32 v{vT4a+1}, v{vLane}, 5, s{t2}
    """)

    al = lambda d, hi, lo: ('v_alignbit_b32 %s, %s, %s, 16' % (vr(d), vr(hi), vr(lo)), None)
    wr = lambda ad, r, off: ('ds_write_b128 %s, %s offset:%d' % (vr(ad), vr(r, 4), off), 't4')
    q = vSN
    T4Q.append([lambda: a.wait_vm('ss'), al(q + 3, q + 2, q + 1), al(q + 2, q + 1, q), wr(vT4a, q, 0)])
    for t in range(3):
        for c in range(2):
            r, n, off = vSS + 8 * t + 4 * c, vSNew + 4 * c, T4SZ * t + 2048 * c
            T4Q.append([('v_mov_b32 %s, %s' % (vr(n), vr(r + 1)), None), ('v_mov_b32 %s, %s' % (vr(n + 1), vr(r + 2)), None),
                        al(n + 3, r + 3, r + 2), al(n + 2, r + 2, r + 1), wr(vT4a + 1, n, off + 16)])
            T4Q.append([al(r + 3, r + 2, r + 1), al(r + 2, r + 1, r), wr(vT4a + 1, r, off)])


def t4_piece():
    for it in T4Q.pop(0):
        emit(it)


@script_step('KF')
def _():
    a.wait_vm('kvst')
    a('s_barrier')
    a(f"""
    s_lshl_b32 s{t2}, s{sR}, {P['fsk']}
    s_add_u32 s{t2}, s{t2}, {WS_FKV}
    s_cmp_eq_u32 s{sWave}, 0
    s_cbranch_scc0 L_nokvflag
    """)
    a.cond = True
    if 'K' not in P['dbg']:
        flag(t2, P['fsk'])
    a.cond = False
    a.label('L_nokvflag')
    stamp('kvflag')
    a(f"""
    s_mul_i32 s{t2}, s{sWave}, {XSZ}
    s_add_u32 s{t2}, s{t2}, {L_X}
    v_lshl_add_u32 v{t0}, v{vLane}, 3, s{t2}
    v_mov_b32 v{t4}, 0
    v_mov_b32 v{t4+1}, 0
    ds_write_b64 v{t0}, v[{t4}:{t4+1}]
    """)


@script_step('SB')
def _():
    assert 'LN' in done_steps
    w_until('W', 'KH')
    a(f's_lshl_b32 s{t3}, s{sDT}, 10')
    for ks in range(8):
        a(f"""
        s_add_u32 s{t2}, s{sRot}, {ks}
        s_and_b32 s{t2}, s{t2}, 7
        s_mul_i32 s{t2}, s{t2}, s{sC40}
        s_add_u32 s{sKS+8+ks}, s{t2}, s{t3}
        s_xor_b32 s{sKS+ks}, s{sKS+8+ks}, 1024
        """)
    a(f"""
    s_lshl_b32 s{t2}, s{sDT}, 2
    s_add_u32 s{t2}, s{t2}, s{sWave}
    s_mul_i32 s{t3}, s{sFT}, 80
    s_add_u32 s{t3}, s{t3}, s{t2}
    s_lshl_b32 s{t3}, s{t3}, 10
    s_add_u32 s{t3}, s{t3}, {WS_UF}
    s_cmp_eq_u32 s{sAct}, 1
    s_cselect_b32 s{t3}, s{t3}, s{sOOB}
    v_lshl_add_u32 v{vUst}, v{vLane}, 4, s{t3}
    s_mul_i32 s{t2}, s{t2}, 24
    s_add_u32 s{t2}, s{t2}, s{sFT}
    s_lshl_b32 s{t3}, s{t2}, 12
    s_add_u32 s{t3}, s{t3}, {WS_PX}
    s_cmp_eq_u32 s{sAct}, 1
    s_cselect_b32 s{t3}, s{t3}, s{sOOB}
    v_lshl_add_u32 v{vPr}, v{vLane}, 4, s{t3}
    s_bitcmp1_b32 s{sDT}, 0
    s_cselect_b32 s{t3}, -1, 1
    s_mul_i32 s{t3}, s{t3}, {96*4096}
    v_add_u32 v{vPs}, s{t3}, v{vPr}
    s_lshl_b32 s{t2}, s{t2}, {P['fsu']}
    s_add_u32 s{t2}, s{t2}, {WS_FU}
    s_cmp_eq_u32 s{sAct}, 1
    s_cselect_b32 s{sFU}, s{t2}, {WS_DUMMY}
    v_lshlrev_b32 v{vPkv}, {P['fsk']}, v0
    v_add_u32 v{vPkv}, {WS_FKV}, v{vPkv}
    s_and_b32 s{t2}, s{sDT}, 2
    s_lshl_b32 s{t2}, s{t2}, 3
    s_add_u32 s{t2}, s{t2}, s{sKW}
    s_lshl_b32 s{t2}, s{t2}, {5+P['fsh']}
    s_add_u32 s{t2}, s{t2}, {WS_FH}
    v_lshrrev_b32 v{t0}, 5, v{vLane}
    v_and_b32 v{t1}, 31, v{vLane}
    v_lshl_add_u32 v{t0}, v{t0}, 8, v{t1}
    v_lshl_add_u32 v{vPo}, v{t0}, {P['fsh']}, s{t2}
    v_mul_u32_u24 v{t0}, 10240, v{vG}
    v_lshl_add_u32 v{t0}, v{vU}, 4, v{t0}
    s_mul_i32 s{t2}, s{sKW}, {32*10240}
    s_add_u32 s{t2}, s{t2}, {WS_HT8}
    s_cmp_eq_u32 s{sAct}, 1
    s_cselect_b32 s{t2}, s{t2}, s{sOOB}
    """)
    for st in range(4):
        a(f"""
        s_add_u32 s{t3}, s{sWave}, {st+1}
        s_and_b32 s{t3}, s{t3}, 3
        s_lshl_b32 s{t3}, s{t3}, 8
        s_add_u32 s{t3}, s{t3}, s{t2}
        v_add_u32 v{vHo+st}, s{t3}, v{t0}
        """)
    a(f'v_lshl_add_u32 v{vXa+3}, v{vLane}, 4, s{sRing}')
    for st in range(3):
        a(f"""
        s_add_u32 s{t3}, s{sWave}, {3-st}
        s_and_b32 s{t3}, s{t3}, 3
        s_mul_i32 s{t3}, s{t3}, {RINGW}
        v_lshl_add_u32 v{vXa+st}, v{vLane}, 4, s{t3}
        """)


step['HP'] = lambda: poll_issue(vPo)


def late_setup():
    L = lines(f"""
    v_lshrrev_b32 v{t0}, 2, v{vLane}
    v_and_b32 v{t1}, 3, v{vLane}
    v_min_u32 v{t1}, 2, v{t1}
    v_mul_u32_u24 v{t4}, 10240, v{t0}
    v_lshl_add_u32 v{t4}, v{t1}, 4, v{t4}
    s_mul_i32 s{t2}, s{sWave}, {64*10240}
    s_lshl_b32 s{t3}, s{sP0}, 4
    s_add_u32 s{t2}, s{t2}, s{t3}
    s_add_u32 s{t2}, s{t2}, {WS_KV}
    v_add_u32 v{t4}, s{t2}, v{t4}
    v_cmp_gt_u32 vcc, s{sNCH}, v{t1}
    v_mov_b32 v{vXg}, s{sOOB}
    v_mul_u32_u24 v{t1}, {XSZ}, v{t1}
    v_cndmask_b32 v{vXg}, v{vXg}, v{t4}, vcc
    v_lshl_add_u32 v{t1}, v{t0}, 4, v{t1}
    s_lshl_b32 s{t2}, s{sWave}, 10
    s_add_u32 s{t2}, s{t2}, {L_X+512}
    v_add_u32 v{vXw}, s{t2}, v{t1}
    v_lshlrev_b32 v{t0}, 7, v{t0}
    v_and_b32 v{t1}, 3, v{vU}
    v_lshl_add_u32 v{t0}, v{t1}, 3, v{t0}
    v_add_u32 v{t0}, s{sRing}, v{t0}
    v_bfe_u32 v{t1}, v{vLane}, 3, 2
    """)
    for n in range(4):
        L += lines(f"""
        s_add_u32 s{t2}, s{sWave}, {n}
        s_and_b32 s{t2}, s{t2}, 3
        v_xor_b32 v{t4}, s{t2}, v{t1}
        v_lshl_add_u32 v{vTr2+n}, v{t4}, 5, v{t0}
        """)
    L += lines(f"""
    v_lshlrev_b32 v{t0}, 3, v{vU}
    v_lshlrev_b32 v{t1}, 6, v{vG}
    v_sub_u32 v{t0}, v{t0}, v{t1}
    s_lshl_b32 s{t2}, s{sWave}, 9
    s_add_u32 s{t2}, s{t2}, {L_T4+2*T4SZ+200}
    v_add_u32 v{vAe}, s{t2}, v{t0}
    s_lshr_b32 s{t2}, s{sWave}, 1
    s_mul_i32 s{t2}, s{t2}, {T4SZ}
    s_and_b32 s{t3}, s{sWave}, 1
    s_lshl_b32 s{t3}, s{t3}, 10
    s_add_u32 s{t2}, s{t2}, s{t3}
    s_add_u32 s{t2}, s{t2}, {L_T4+200}
    v_add_u32 v{vAm}, s{t2}, v{t0}
    v_lshlrev_b32 v{t0}, 5, v{vU}
    v_lshl_add_u32 v{t4}, v{vG}, 4, v{t0}
    s_lshl_b32 s{t2}, s{sWave}, 7
    s_sub_u32 s{t2}, {L_X+2*XSZ+480-64}, s{t2}
    v_add_u32 v{vBe}, s{t2}, v{t4}
    s_lshr_b32 s{t2}, s{sWave}, 1
    s_mul_i32 s{t2}, s{t2}, {XSZ}
    s_lshr_b32 s{t3}, s{t3}, 2
    s_sub_u32 s{t2}, s{t2}, s{t3}
    s_add_u32 s{t2}, s{t2}, {L_X+480-192}
    v_add_u32 v{vBm}, s{t2}, v{t4}
    s_lshl_b32 s{t2}, s{sWave}, 11
    s_add_u32 s{t2}, s{t2}, {4*4096}
    v_lshl_add_u32 v{vEr}, v{vLane}, 4, s{t2}
    v_add_u32 v{vEr+1}, {2*RINGW}, v{vEr}
    v_and_b32 v{t1}, 1, v{vG}
    v_lshl_add_u32 v{t0}, v{t1}, 9, v{t0}
    v_lshrrev_b32 v{t1}, 1, v{vG}
    v_lshl_add_u32 v{t0}, v{t1}, 4, v{t0}
    s_lshl_b32 s{t2}, s{sChE}, 2
    s_add_u32 s{t2}, s{t2}, s{sWave}
    s_lshl_b32 s{t2}, s{t2}, 10
    s_add_u32 s{t2}, s{t2}, {WS_YT}
    s_cmp_eq_u32 s{sNCH}, 3
    s_cselect_b32 s{t2}, s{t2}, s{sOOB}
    v_add_u32 v{vYe}, s{t2}, v{t0}
    s_and_b32 s{t2}, s{sWave}, 1
    s_lshl1_add_u32 s{t2}, s{sChM}, s{t2}
    s_lshl_b32 s{t2}, s{t2}, 11
    s_add_u32 s{t2}, s{t2}, {WS_YT}
    v_add_u32 v{vYm}, s{t2}, v{t0}
    s_lshl_b32 s{t2}, s{sWave}, 12
    s_add_u32 s{t3}, s{t2}, {L_T4+2*T4SZ}
    v_lshl_add_u32 v{vMw}, v{vLane}, 4, s{t3}
    s_xor_b32 s{t2}, s{t2}, 4096
    s_add_u32 s{t3}, s{t2}, {L_T4+2*T4SZ}
    v_lshl_add_u32 v{vMr}, v{vLane}, 4, s{t3}
    s_mul_i32 s{t2}, s{sWave}, {12*40960}
    s_mul_i32 s{t3}, s{sDT2}, 5120
    s_add_u32 s{t2}, s{t2}, s{t3}
    s_add_u32 s{t2}, s{t2}, {WS_UF}
    v_lshl_add_u32 v{vUo}, v{vLane}, 4, s{t2}
    v_add_u32 v{vUo+1}, 4096, v{vUo}
    v_min_u32 v{t0}, 29, v{vLane}
    v_mul_u32_u24 v{t1}, 43, v{t0}
    v_lshrrev_b32 v{t1}, 8, v{t1}
    v_mul_u32_u24 v{t1}, 18, v{t1}
    v_add_u32 v{t0}, v{t0}, v{t1}
    s_mul_i32 s{t2}, s{sDT2}, 120
    s_mul_i32 s{t3}, s{sWave}, 6
    s_add_u32 s{t2}, s{t2}, s{t3}
    s_lshl_b32 s{t2}, s{t2}, {P['fsu']}
    s_add_u32 s{t2}, s{t2}, {WS_FU}
    v_lshl_add_u32 v{vPu}, v{t0}, {P['fsu']}, s{t2}
    v_lshrrev_b32 v{t0}, 3, v{vLane}
    v_lshlrev_b32 v{t0}, 12, v{t0}
    s_mul_i32 s{t2}, s{sWave}, {384*4096}
    s_lshl_b32 s{t3}, s{sST2}, 7
    s_add_u32 s{t2}, s{t2}, s{t3}
    v_add_u32 v{t0}, s{t2}, v{t0}
    v_and_b32 v{t1}, 7, v{vLane}
    v_lshlrev_b32 v{t4}, 1, v{vG}
    v_xor_b32 v{t1}, v{t1}, v{t4}
    v_lshl_add_u32 v{vWo2}, v{t1}, 4, v{t0}
    v_add_u32 v{vWo2+1}, {32768-1024}, v{vWo2}
    v_add_u32 v{vWo2+2}, {2*(32768-1024)}, v{vWo2}
    v_add_u32 v{vWo2+3}, {3*(32768-1024)}, v{vWo2}
    """)
    return L


@script_step('SL')
def _():
    for it in late_setup():
        emit(it)


@script_step('ST')
def _():
    for k in small:
        w_until('W', k)
    for it in table_setup():
        emit(it)


@script_step('AD')
def _():
    w_until('W', 'ML')
    for it in ad_items():
        emit(it)


def ad_items():
    return [lambda: a.wait_vm('dd')] + lines(f"""
    v_lshlrev_b32 v{vDe}, 16, v{vDe}
    v_lshlrev_b32 v{vDm}, 16, v{vDm}
    v_add_f32 v{vDe}, v{vDe}, v{vDm}
    v_cvt_pk_bf16_f32 v{vDe}, v{vDe}, v{vDe}
    v_lshrrev_b32 v{t0}, 2, v{vLane}
    v_min_u32 v{t0}, 2, v{t0}
    v_mul_u32_u24 v{t0}, {T4SZ}, v{t0}
    v_and_b32 v{t1}, 3, v{vLane}
    v_mul_u32_u24 v{t1}, 6, v{t1}
    v_sub_u32 v{t0}, v{t0}, v{t1}
    v_add_u32 v{vDm}, {L_T4+128}, v{t0}
    """)


C0 = -2.0 * 0.7978845608028654 * 1.4426950408889634
C1 = C0 * 0.044715
vC0 = 50


@script_step('BU')
def _():
    w_until('W', 'ML')
    for it in bu_items():
        emit(it)


def bu_items():
    L = [lambda: a.wait_vm('b1')]
    if P['b1l']:
        L = lines(f"""
        v_lshlrev_b32 v{t0}, 3, v{vG}
        v_add_u32 v{t0}, {L_B1}, v{t0}
        """) + L + [('ds_read_b64 %s, %s offset:%d' % (vr(vB1 + 2 * n, 2), vr(t0), 32 * n), 'b1r') for n in range(4)]
        L += [lambda: a.wait_lg('b1r')]
    for i in range(8):
        L += [('v_lshlrev_b32 %s, 16, %s' % (vr(vBf + 2 * i), vr(vB1 + i)), None),
              ('v_and_b32 %s, 0xffff0000, %s' % (vr(vBf + 2 * i + 1), vr(vB1 + i)), None)]
    return L + lines(f"""
    s_mov_b32 s{sT0}, 0x{f2u(C1):08x}
    s_mov_b32 s{sT1}, 0x{f2u(C1):08x}
    v_mov_b32 v{vC0}, 0x{f2u(C0):08x}
    v_mov_b32 v{vC0+1}, 0x{f2u(C0):08x}
    """)


def table_setup():
    L = []
    for ks in range(12):
        if ks:
            L += lines(f"""
            s_add_u32 s{sRot2}, s{sRot2}, 1
            s_cmp_eq_u32 s{sRot2}, 12
            s_cselect_b32 s{sRot2}, 0, s{sRot2}
            """)
        L += lines(f"""
        s_lshl_b32 s{sW2o[ks]}, s{sRot2}, 17
        s_mul_i32 s{sUo[ks]}, s{sRot2}, s{sC40}
        """)
    return L


def lines(txt):
    L = []
    for l in txt.strip().split('\n'):
        l = l.strip()
        if not l:
            continue
        if l.startswith('s_cselect'):
            L[-1] = (L[-1][0] + '\n' + l, None)
        else:
            L.append((l, None))
    return L


def emit(it):
    if callable(it):
        it()
    else:
        a(it[0], tag=it[1])


warm_pages = set()


def warm(spec):
    uid = len(a.out)
    a.atomic = True
    a('s_mov_b64 exec, 0')
    for w, c in enumerate(spec):
        if c == 'x':
            continue
        warm_pages.add(int(c))
        a(f's_cmp_eq_u32 s{sWave}, {w}')
        a(f's_cbranch_scc0 L_wm{uid}_{w}')
        a.raw(f'    s_call_b64 s[100:101], L_page{c}')
        a.label(f'L_wm{uid}_{w}')
    if not warm.ret:
        warm.ret = True
        a(f's_branch L_wm{uid}_x')
        a.label('L_wmret')
        a.raw('    s_setpc_b64 s[100:101]')
        a.label(f'L_wm{uid}_x')
    a.atomic = False
    a('s_mov_b64 exec, -1')


warm.ret = False
NEEDS = dict(S0='Q', SA='Q', S2='Q', SR='Q', SC='S0', LN='SA', SB='LN SC', SL='LN SC', HF='LN', GATE='LN', KC='GATE',
             K2C='GATE', HP='SB', KF='HF KC K2C', ST='SC SA', AD='LN', BU='LN', T4='SC')
a.hook = w_hook
for tok in P['script'].replace('_', ' ').split():
    if tok.startswith('S:'):
        stamp(tok[2:])
    elif tok.startswith('R:'):
        rate[0] = int(tok[2:])
    elif tok.startswith('WM:'):
        warm(tok[3:])
    elif tok.startswith('W:'):
        w_until('W', tok[2:])
    elif tok != 'T4' and tok[0] in 'DT' and tok[1:].isdigit():
        w_until(tok[0], int(tok[1:]))
    else:
        assert tok not in done_steps and set(NEEDS.get(tok, '').split()) <= done_steps, tok
        step[tok]()
        done_steps.add(tok)
a.hook = None
assert {'HF', 'HP', 'KC', 'K2C', 'T4'} <= done_steps
w_until('D', NSTEP - 1)
for k in small:
    w_until('W', k)
if NW == 0:
    w2_desc()


def gather_list():
    return [(f's_mul_i32 s{sWoff}, s{sC40}, {4*m}\n' + 'buffer_load_dwordx4 %s, %s, %s, %s offen sc1' % (
        vr(vXl + 4 * m, 4), vr(vXg), sr(rWS, 4), sr(sWoff)), ('xl', m)) for m in range(4)]


def x_write(m):
    a.wait_vm(('xl', m))
    a('ds_write_b128 %s, %s offset:%d' % (vr(vXw), vr(vXl + 4 * m, 4), 256 * m), tag='xw')


def w2_atoms(ks, slot):
    L = dma_list('w2', ks, slot)
    return [(L[0][0] + '\n' + L[1][0], L[1][1])] + L[2:]


mtime = {}


class Sched:
    def __init__(self):
        self.k = 0
        self.streams = []
        self.credit = 8.0
        self.lastvm = -100

    def stream(self, *items):
        st = dict(q=list(items), wake=0)
        self.streams.append(st)
        return st['q']

    @staticmethod
    def kind(it):
        if callable(it):
            return 'wait', 0
        if it[0] == 'vm':
            return 'vm', 0
        op = it[0].split('\n')[-1].split()[0]
        if op.startswith(('buffer_', 'global_')):
            return 'vm', 0
        if op.startswith('ds_write_b128'):
            return 'lds', 13
        if op.startswith('ds_write'):
            return 'lds', 8
        if op.startswith('ds_read_b128'):
            return 'lds', 4
        if op.startswith('ds_'):
            return 'lds', 2
        if op == 's_waitcnt':
            return 'wait', 0
        if op.startswith('s_'):
            return 'salu', 0
        return 'valu', 0

    def do(self, it):
        if not callable(it) and it[0] == 'vm':
            it[1]()
        else:
            emit(it)

    def head(self, st):
        q = st['q']
        while q:
            it = q[0]
            if callable(it):
                break
            if it[0] == 'at':
                if self.k < it[1]:
                    return None
            elif it[0] == 'delay':
                st['wake'] = self.k + it[1]
            elif it[0] == 'after':
                if it[1]:
                    return None
            elif it[0] == 'since':
                if it[1] not in mtime or self.k < mtime[it[1]] + it[2]:
                    return None
            else:
                break
            q.pop(0)
        if not q or self.k < st['wake']:
            return None
        return q[0]

    def take(self, kinds, ok=None):
        for st in self.streams:
            it = self.head(st)
            if it is None:
                continue
            kind, lds = self.kind(it)
            if kind in kinds and (ok is None or ok(kind)):
                st['q'].pop(0)
                self.do(it)
                self.credit -= lds
                if kind == 'vm':
                    self.lastvm = self.k
                return kind
        return None

    def gap(self, frag=None, forced=None):
        self.k += 1
        self.credit = min(self.credit + P['ldsr'], P['ccap'])
        while self.take(('wait',)):
            pass
        t, lds, vm = 1, 0, False
        if forced:
            forced()
            t, vm = 2, True
        if frag and frag(True):
            t, lds = t + 2, 1
        elif frag and (self.take(('lds',), lambda kd: self.credit > 0) or (self.credit > 0 and frag(False))):
            t, lds = t + 2, 1
        while t <= 3:
            kind = self.take(('lds', 'vm', 'salu'), lambda kd: (
                (kd == 'lds' and self.credit > 0 and (t <= 2 or (P['dbl'] and lds < 2 and t == 3))) or
                (kd == 'vm' and not vm and self.k - self.lastvm >= P['vsp']) or kd == 'salu'))
            if kind is None:
                break
            t += 2 if kind == 'lds' else 1
            lds += kind == 'lds'
            vm = vm or kind == 'vm'
        t = max(t, 3 if vm else 2)
        while t <= 3 and self.take(('valu', 'salu')):
            t += 1

    def flush(self, q, until=None):
        while q and (until is None or until()):
            it = q.pop(0)
            if callable(it) or it[0] not in ('at', 'delay', 'after', 'since'):
                self.do(it)
            elif it[0] == 'after':
                self.flush(it[1])


def lds_w(addr, reg, off, tag, k='v', w64=None):
    if not (P['w64'] if w64 is None else w64):
        return [('ds_write_b128 %s, %s offset:%d' % (vr(addr), vr(reg, 4, k), off), tag)]
    return [('ds_write_b64 %s, %s offset:%d' % (vr(addr), vr(reg + 2 * h, 2, k), off + 8 * h), tag) for h in range(2)]


NT = P['ntail']
assert NT % 4 == 0 and NT <= 16
poll_check('L_pollh', vPo)
stamp('hpoll')
WIN = P['win']
vWin = 96
vAc = 64


def hload(F):
    a('buffer_load_dwordx4 %s, %s, %s, %s offen sc1' % (
        vr(vWin + 4 * (F % WIN), 4), vr(vHo + (F // 8) % 4), sr(rWS, 4), sr(sKS + 8 * (F // 32) + F % 8)), tag=('h', F))


for F in range(WIN):
    hload(F)
    if W:
        w_atom()
while W:
    w_atom()
vSA, vPt, vPx, vMk = 136, 152, 168, 204
sTag, sMk = [96, 97, 22, 23], 58
g1 = Sched()
side = g1.stream()
gq = gather_list()
if 'g' in P['dbg']:
    a(f'v_lshlrev_b32 v{t0}, 4, v0')
    a(f's_lshl_b32 s{t2}, s{sR}, 12')
    a(f's_add_u32 s{t2}, s{t2}, {WS_KV}')
    a(f'v_add_u32 v{vXg}, s{t2}, v{t0}')
if 'G' in P['dbg']:
    a(f'v_mov_b32 v{vXg}, s{sOOB}')
if 'P' in P['dbg'] or 'L' in P['dbg']:
    if 'P' in P['dbg']:
        a(f'v_mov_b32 v{vPs}, s{sOOB}')
    a(f'v_mov_b32 v{vPr}, s{sOOB}')
    a(f's_mov_b32 s{sAct}, 0')
vGt, vOg, vT0, vB2 = 56, 58, 60, 62
vOo = 16
vQa = 19
vYa, vYr = 32, 35
rQ, rO = 60, 64
STG = 20480
q4 = g1.stream(*[x for p in T4Q for x in p + [('delay', 2)]] if '4' not in P['dbg'] else [])
qS = g1.stream()
qS += lines(f"""
s_and_b32 s{sTag[0]}, s{sN}, 0xff
s_bfe_u32 s{sTag[1]}, s{sN}, 0x80008
s_bfe_u32 s{sTag[2]}, s{sN}, 0x80010
s_lshr_b32 s{sTag[3]}, s{sN}, 24
s_mul_i32 s{sMk}, s{sAct}, 0xff
v_mov_b32 v{vMk}, 0xffffff00
""")
for nm, fn in (('BU', bu_items), ('AD', ad_items), ('SL', late_setup)):
    if nm not in done_steps:
        qS += fn()
qS2 = g1.stream(*(table_setup() if 'ST' not in done_steps else []))
qS += lines(f"""
s_lshl_b32 s{t2}, s{sST2}, 2
s_add_u32 s{t2}, s{t2}, s{sWave}
s_lshl_b32 s{t2}, s{t2}, 4
v_add_u32 v{t0}, s{t2}, v{vU}
v_lshlrev_b32 v{t1}, 1, v{t0}
v_lshlrev_b32 v{vGt}, {5 if P['g64'] else 2}, v{t0}
v_add_u32 v{vGt}, {WS_G64 if P['g64'] else WS_G}, v{vGt}
""")
qS += [('global_load_ushort %s, %s, %s' % (vr(vB2), vr(t1), sr(sB2, 2)), 'gb')]
qS += lines(f"""
s_mul_i32 s{t2}, s{t2}, 1280
s_mul_i32 s{t3}, s{sDT2}, 160
s_add_u32 s{t2}, s{t2}, s{t3}
v_lshrrev_b32 v{t0}, 3, v{vLane}
v_mul_u32_u24 v{t0}, 1280, v{t0}
v_and_b32 v{t1}, 7, v{vLane}
v_xor_b32 v{t1}, v{t1}, v{vG}
v_add_u32 v{t0}, s{t2}, v{t0}
v_lshl_add_u32 v{vOo}, v{t1}, 4, v{t0}
v_xor_b32 v{t1}, 4, v{t1}
v_lshl_add_u32 v{vOo+1}, v{t1}, 4, v{t0}
v_add_u32 v{vOo+1}, {8*1280}, v{vOo+1}
v_lshrrev_b32 v{t0}, 1, v{vLane}
v_mul_u32_u24 v{t0}, 1280, v{t0}
v_and_b32 v{t1}, 1, v{vLane}
v_lshl_add_u32 v{t0}, v{t1}, 4, v{t0}
s_add_u32 s{t2}, s{t2}, 128
v_lshlrev_b32 v{t1}, 25, v{vLane}
v_add_u32 v{t0}, s{t2}, v{t0}
v_and_or_b32 v{vOo+2}, v{t1}, 2.0, v{t0}
s_add_u32 s{t2}, s{sRing}, {STG}
v_lshrrev_b32 v{t0}, 1, v{vU}
v_lshrrev_b32 v{t1}, 1, v{vG}
v_xor_b32 v{t0}, v{t0}, v{t1}
v_lshlrev_b32 v{t0}, 4, v{t0}
v_lshl_add_u32 v{t0}, v{vU}, 7, v{t0}
v_and_b32 v{t1}, 1, v{vG}
v_lshl_add_u32 v{t0}, v{t1}, 3, v{t0}
v_add_u32 v{vQa}, s{t2}, v{t0}
v_xor_b32 v{vQa+1}, 32, v{vQa}
v_xor_b32 v{vQa+2}, 64, v{vQa}
v_xor_b32 v{vQa+3}, 0x60, v{vQa}
v_lshl_add_u32 v{t0}, v{vU}, 5, s{t2}
v_lshl_add_u32 v{vQa+4}, v{vG}, 3, v{t0}
""")
qeq = [(f's_add_u32 m0, s{sRing}, {STG+1024*i}\n' + ('buffer_load_dwordx4 %s, %s, 0 offen ' + 'nt ' * P['ntq2'] + 'lds') % (
    vr(vOo + i), sr(rQ, 4)), 'qe') for i in range(3)]


def stg(i):
    return (vr(vQa + i), 0) if i < 4 else (vr(vQa + 4), 2048)


qS += lines(f"""
v_bfe_u32 v{t0}, v{vLane}, 4, 1
v_lshlrev_b32 v{t0}, 7, v{t0}
v_add_u32 v{t0}, v{t0}, v{vU}
s_lshl_b32 s{t2}, s{sDT2}, {P['fsy']+4}
s_add_u32 s{t2}, s{t2}, {WS_FY}
v_lshl_add_u32 v{vPo}, v{t0}, {P['fsy']}, s{t2}
v_lshrrev_b32 v{t0}, 3, v0
s_mul_i32 s{t2}, s{sDT2}, 80
v_add_u32 v{t0}, s{t2}, v{t0}
v_lshlrev_b32 v{t0}, 12, v{t0}
v_and_b32 v{t1}, 7, v{vLane}
v_lshlrev_b32 v{t4}, 1, v{vG}
v_xor_b32 v{t1}, v{t1}, v{t4}
v_lshl_add_u32 v{t0}, v{t1}, 4, v{t0}
s_lshl_b32 s{t3}, s{sST2}, 7
s_add_u32 s{t3}, s{t3}, {WS_YT}
v_add_u32 v{vYa}, s{t3}, v{t0}
v_add_u32 v{vYa+1}, {32*4096}, v{vYa}
s_cmp_lt_u32 s{sWave}, 2
s_cselect_b32 s{t3}, {64*4096}, s{sOOB}
v_add_u32 v{vYa+2}, s{t3}, v{vYa}
v_bfe_u32 v{t0}, v{vLane}, 2, 3
v_lshlrev_b32 v{t0}, 7, v{t0}
v_and_b32 v{t1}, 3, v{vU}
v_lshl_add_u32 v{t0}, v{t1}, 3, v{t0}
v_bfe_u32 v{t1}, v{vLane}, 3, 2
v_xor_b32 v{t1}, s{sWave}, v{t1}
v_lshl_add_u32 v{t0}, v{t1}, 5, v{t0}
v_lshrrev_b32 v{t1}, 1, v{vG}
v_mul_u32_u24 v{t1}, {RINGW}, v{t1}
v_add_u32 v{t0}, v{t0}, v{t1}
v_add_u32 v{vYr}, 16384, v{t0}
""")
qR = lines(f"""
s_mov_b32 s{rQ}, s{sQ}
s_and_b32 s{rQ+1}, s{sQ+1}, 0xffff
s_mov_b32 s{rQ+2}, {2048*1280}
s_mov_b32 s{rQ+3}, 0x20000
s_mov_b32 s{rO}, s{sOUT}
s_and_b32 s{rO+1}, s{sOUT+1}, 0xffff
s_mov_b32 s{rO+2}, {2048*1280}
s_mov_b32 s{rO+3}, 0x20000
""")
NM = P['nm']
midq = [x for i in range(NW, NW + NM) for x in w2_atoms(i, i - NW)]
midT = [x for i in range(NW, NW + NM)
        for x in [lambda i=i: a.wait_vm(('w2', i))] + tr_list('w2', i, i - NW)]
assert NM == 0 or ('ST' in done_steps and P['mat'] + 4 * NM + WIN + 2 < 56)
NW += NM + (6 if 'H' in P['dbg'] else 0)
slot2 = lambda ks: (ks - NW) % 4
tailq = []
for i in range(NW, NW + 4):
    tailq += w2_atoms(i, slot2(i))
GAT = P['gat']
SG = max((GAT + 7) // 8, 5)
GSP = P['gsp']
XLATE = GAT + WIN + 1 + 3 * GSP > 59
assert WIN + 2 <= GAT <= 56 and ('SL' in done_steps or GAT > 41)
xw_items = lambda m, w64=None: [lambda: a.wait_vm(('xl', m))] + lds_w(vXw, vXl + 4 * m, 256 * m, 'xw', 'v', w64)
xw_left = list(range(4))
qG = g1.stream()
qP = g1.stream()


def pload(n):
    a('buffer_load_dwordx4 %s, %s, %s, 0 offen offset:%d sc1' % (
        vr(vPx + 4 * n, 4), vr(vPr), sr(rWS, 4), 1024 * n), tag='px')


pq = [lambda n=n: pload(n) for n in range(4)]
if '3' in P['dbg']:
    pq.pop()
    a(f's_mov_b32 s{sAct}, 0')
if 'KF' not in done_steps:
    step['KF']()
a.wait_vm(('h', 0))
a.wait_lg(('tr', 'w1', 0))
nex = 0
for F in range(64):
    S, ks = divmod(F, 8)
    acc = vAc + 16 * (S & 1)
    if ks == 0:
        g1.flush(side, lambda: any(not callable(x) and x[1] == ('acc', S - 2) for x in side))
    for n in range(4):
        d = vr(acc + 4 * n, 4)
        a('v_mfma_f32_16x16x32_bf16 %s, %s, %s, %s' % (
            d, ar(16 * ks + 4 * n, 4), vr(vWin + 4 * (F % WIN), 4), '0' if ks == 0 else d))
        forced = None
        if n == 0 and 1 <= F <= 64 - WIN:
            forced = lambda: hload(F - 1 + WIN)
        elif n in (0, 2) and F >= P['pld'] + P['pxsp'] * (4 - len(pq)) * (P['pxsp'] > 1) and pq:
            forced = pq.pop(0)
        elif n == 0 and F > max(64 - WIN, 56 if NM else 0) and len(tailq) > 16 - NT:
            forced = lambda: emit(tailq.pop(0))
        elif n == 2 and F == GAT - WIN - 2 and 'K' not in P['dbg']:
            forced = lambda: poll_issue(vPkv)
        elif n == 2 and gq and F >= GAT + GSP * (4 - len(gq)):
            forced = lambda: emit(gq.pop(0))
        elif n == 2 and F >= P['mat'] and midq:
            forced = lambda: emit(midq.pop(0))
            mid_last = F
        if n == 3 and F < 63:
            a.wait_vm(('h', F + 1))
            if F < 7:
                a.wait_lg(('tr', 'w1', ks + 1))
        g1.gap(forced=forced)
    if 'F%d' % F in P['mst'].split(','):
        stamp('F%d' % F)
    if F == GAT - 1:
        if 'K' not in P['dbg']:
            poll_check('L_pollkv', vPkv)
        stamp('kvpoll')
    if midT and not midq and F >= mid_last + WIN:
        qG += midT + [lambda: a.wait_lg(('tr', 'w2', NW - 1))]
        midT = []
    if xw_left and F >= GAT + WIN + 1 + GSP * xw_left[0] and F < 56:
        qG += xw_items(xw_left.pop(0))
    if F == 33:
        qS += qR
    if S > 0 and ks == 0:
        pa, sp = vAc + 16 * ((S - 1) & 1), (S - 1) % 4
        if S == 7:
            assert not midT and not midq and len(qP) <= 1
            g1.flush(qS)
            g1.flush(qG)
        if S == 4:
            g1.flush(qS, lambda: any(not callable(x) and '0xffffff00' in x[0] for x in qS))
            for n in range(4):
                for j in range(4):
                    r = vSA + 4 * n + j
                    side += [('v_add_f32 %s, %s, %s' % (vr(r), vr(r), vr(pa + 4 * n + j)), ('acc', S - 1)),
                             ('v_and_or_b32 %s, %s, %s, %s' % (vr(r), vr(r), vr(vMk), sr(sTag[j])), None)]
                side.append(('buffer_store_dwordx4 %s, %s, %s, 0 offen offset:%d ' % (
                    vr(vSA + 4 * n, 4), vr(vPs), sr(rWS, 4), 1024 * n) + 'sc1', 'pst'))
                if P['psp']:
                    mk = [1]
                    qP += [('after', mk), side.pop(), ('delay', P['psp'])]
                    side.append(lambda mk=mk: mk.clear())
        else:
            if S == 5:
                t4left = len(q4)
                g1.flush(q4)
            off = 4096 * (4 + (nex & 1))
            dst = vSA if S == 1 else vPt
            for n in range(4):
                side += lds_w(vXa + 3, pa + 4 * n, off + 1024 * n, ('acc', S - 1))
            if S == 7 and not XLATE:
                while xw_left:
                    side += xw_items(xw_left.pop(0))
            side += [('delay', P['bdel']), lambda S=S: a.wait_lg(('acc', S - 1), 'xw'), ('s_barrier', None)]
            if 'B' in P['dbg'] and S not in (3, 7):
                side.pop()
            if S == 5:
                g1sl = (len(qS), len(qS2))
                g1.flush(qS)
                g1.flush(qS2)
                side.append(('ds_write_b16 %s, %s' % (vr(vDm), vr(vDe)), None))
            if S == SG:
                side.append(('buffer_load_dword %s, %s, %s, 0 offen sc1' % (vr(vGt), vr(vGt), sr(rWS, 4)), 'gb'))
            side += [('ds_read_b128 %s, %s offset:%d' % (vr(dst + 4 * n, 4), vr(vXa + sp), off + 1024 * n), ('pr', S))
                     for n in range(4)]
            if S < 7:
                side += [('delay', P['rdel']), lambda S=S: a.wait_lg(('pr', S))]
            if 1 < S < 7:
                tot = vSA if S < 4 else vBf
                side += [('v_add_f32 %s, %s, %s' % (vr(tot + i), vr(tot + i), vr(vPt + i)), None) for i in range(16)]
            nex += 1
            if 'E' in P['dbg'] and S != SG:
                side.clear()
g1left = len(side)
g1.flush(side)
while pq:
    pq.pop(0)()
while len(tailq) > 16 - NT:
    emit(tailq.pop(0))
stamp('g1end')
vAccM = 64
aAccE = 64
aOth = 96
UW = P['uw']
NPOOL = 35 - UW
POOL = [96 + 4 * i for i in range(NPOOL)]
vUw = 96 + 4 * NPOOL
vOwn = 236

mf = []
units = [('e', 0), ('e', 1), ('m', 0), ('m', 1), ('m', 2), ('m', 3)]
if 'U' in P['dbg']:
    units.pop()
ustart = []
for ui, (kind, e) in enumerate(units):
    accs = (lambda q: ar(aAccE + 4 * q, 4)) if kind == 'e' else (lambda q: vr(vAccM + 4 * q, 4))
    ustart.append(len(mf))
    rows = range(8) if ui % 2 == 0 else range(7, -1, -1)
    for r in rows:
        for q in range(r, 8):
            mf.append((accs(q), ('A', ui, r), ('B', ui, q - r), '0' if e == 0 and r == 0 else accs(q)))
ustart.append(len(mf))


def frag_loads(key, reg):
    t, ui, i = key
    kind, e = units[ui]
    if t == 'A':
        v = vAe if kind == 'e' else vAm
        if P['a2'] and i % P['a2'] == 0:
            return ['ds_read2_b64 %s, %s offset0:%d offset1:%d' % (
                vr(reg, 4), vr(vA8[kind][i]), 32 * e, 32 * e + 4)]
        return ['ds_read_b64 %s, %s offset:%d' % (vr(reg, 2), vr(v), 256 * e + 2048 * i),
                'ds_read_b64 %s, %s offset:%d' % (vr(reg + 2, 2), vr(v), 256 * e + 2048 * i + 32)]
    v, b = (vBe, 64) if kind == 'e' else (vBm, 192)
    return ['ds_read_b128 %s, %s offset:%d' % (vr(reg, 4), vr(v), b - 64 * e + 512 * i)]


order, last = [], {}
for k, (d, A, B, C) in enumerate(mf):
    for f in (A, B):
        if isinstance(f, tuple):
            if f not in last:
                order.append(f)
            last[f] = k
free, reg_of, pend, issued_at = list(POOL), {}, [], {}
cv = Sched()


def issue_frag(maxn):
    n = 0
    while n < maxn:
        if not pend:
            if not order or not free:
                return n
            f = order.pop(0)
            reg_of[f] = free.pop(0)
            pend.extend((x, f) for x in frag_loads(f, reg_of[f]))
        x, f = pend.pop(0)
        a(x, tag=f)
        cv.credit -= 8 if 'read2' in x else 4 if 'b128' in x else 2
        issued_at[f] = cv.k
        n += 1
    return n


def wait_frags(*fs):
    if not any(t in fs for t in a.lg):
        return 0
    more = [t for t in a.lg if t in issued_at and issued_at[t] <= cv.k - P['lead'] and not any(p[1] == t for p in pend)]
    a.wait_lg(*fs, *more)
    return 1


def x_late():
    while xw_left:
        for it in xw_items(xw_left.pop(0), 0):
            emit(it)


XL = P['xl'] if XLATE else -1
if XL == 0:
    x_late()
if not XLATE:
    issue_frag(10)
a.wait_lg(('pr', 7))
acc = vAc + 16
vE, vEp = 188, 136 if XL > 0 else 224
assert not gq
for i in range(8):
    a('v_pk_add_f32 %s, %s, %s' % (vr(vBf + 2 * i, 2), vr(vBf + 2 * i, 2), vr(vPt + 2 * i, 2)))
a('s_mov_b32 %s, 0' % sr(sSpin))
a.wait_vm('px')
a.label('L_px')
for i in range(16):
    a('v_xor_b32 %s, %s, %s' % (vr(vPx + i), sr(sTag[i % 4]), vr(vPx + i)))
a('v_or_b32 %s, %s, %s' % (vr(t0), vr(vPx), vr(vPx + 1)))
for i in range(2, 16, 2):
    a('v_or3_b32 %s, %s, %s, %s' % (vr(t0), vr(vPx + i), vr(vPx + i + 1), vr(t0)))
a('v_and_b32 %s, %s, %s' % (vr(t0), sr(sMk), vr(t0)))
a('v_cmp_ne_u32 vcc, 0, %s' % vr(t0))
a('s_cbranch_vccz L_px_ok')
sv, sh = list(a.vm), list(a.hist)
for n in range(4):
    pload(n)
a(f"""
s_add_u32 s{sSpin}, s{sSpin}, 1
s_cmp_lt_u32 s{sSpin}, {SPIN_MAX}
s_waitcnt vmcnt(0)
s_cbranch_scc1 L_px
""")
a.label('L_px_ok')
a.vm, a.hist = sv, sh
stamp('px')
if XL == 0:
    a.wait_lg('xw')
    a('s_barrier')
    issue_frag(10)
for i in range(8):
    a('v_pk_add_f32 %s, %s, %s' % (vr(vBf + 2 * i, 2), vr(vBf + 2 * i, 2), vr(vPx + 2 * i, 2)))
for p in range(2):
    rng = range(4 * p, 4 * p + 4)
    for i in rng:
        a('v_pk_add_f32 %s, %s, %s' % (vr(vBf + 2 * i, 2), vr(vBf + 2 * i, 2), vr(acc + 2 * i, 2)))
    for i in rng:
        a('v_pk_mul_f32 %s, %s, %s' % (vr(vE + 2 * i, 2), vr(vBf + 2 * i, 2), vr(vBf + 2 * i, 2)))
    for i in rng:
        a('v_pk_fma_f32 %s, %s, %s, %s' % (vr(vE + 2 * i, 2), vr(vE + 2 * i, 2), sr(sT0, 2), vr(vC0, 2)))
    for i in rng:
        a('v_pk_mul_f32 %s, %s, %s' % (vr(vE + 2 * i, 2), vr(vE + 2 * i, 2), vr(vBf + 2 * i, 2)))
    for i in range(8 * p, 8 * p + 8):
        a('v_exp_f32 %s, %s' % (vr(vE + i), vr(vE + i)))
    for i in rng:
        a('v_pk_add_f32 %s, %s, 1.0 op_sel_hi:[1,0]' % (vr(vE + 2 * i, 2), vr(vE + 2 * i, 2)))
    for i in range(8 * p, 8 * p + 8):
        a('v_rcp_f32 %s, %s' % (vr(vE + i), vr(vE + i)))
    for i in rng:
        a('v_pk_mul_f32 %s, %s, %s' % (vr(vE + 2 * i, 2), vr(vE + 2 * i, 2), vr(vBf + 2 * i, 2)))
    for i in rng:
        a('v_cvt_pk_bf16_f32 %s, %s, %s' % (vr(vEp + i), vr(vE + 2 * i), vr(vE + 2 * i + 1)))
    a('buffer_store_dwordx4 %s, %s, %s, %s offen sc1' % (
        vr(vEp + 4 * p, 4), vr(vUst), sr(rWS, 4), sr(sC40) if p else '0'), tag='ust')
    if p == 0 and XL <= 0:
        issue_frag(6 if P['a2'] == 1 else 10)
    if XL == p + 1:
        x_late()
if XL > 0:
    a.wait_lg('xw')
    a('s_barrier')
    issue_frag(14)
if P['a2'] == 1:
    for i in (5, 7):
        a('v_add_u32 v%d, %d, v%d' % (vA8['m'][i], 2048 * i, vA8['m'][0]))
stamp('conv0')
cv.credit = 8.0
vEx = 120
vYp = 28


def w2T(ks, slot):
    return [lambda: a.wait_vm(('w2', ks))] + tr_list('w2', ks, slot)


def uload(F):
    st, ks = divmod(F, 12)
    a('buffer_load_dwordx4 %s, %s, %s, %s offen offset:%d sc1' % (
        vr(vUw + 4 * (F % UW), 4), vr(vUo + st // 4), sr(rWS, 4), sr(sUo[ks]), 1024 * (st % 4)), tag=('u', F))


def split(x):
    return [(l, x[1]) for l in x[0].split('\n')]


def dbgf(it):
    if 'T' in P['dbg']:
        it = [x for x in it if callable(x) or '_tr_' not in x[0]]
    if 'D' in P['dbg']:
        it = [(('vm', lambda: a('s_nop 0')) if not callable(x) and ' lds' in x[0] else x) for x in it]
    if 'W' in P['dbg']:
        it = [x for x in it if not callable(x)]
    return it


e_end = ustart[2]
qF = cv.stream(('at', P['uflag']), lambda: a.wait_vm('ust'), ('vm', lambda: flag(sFU, P['fsu'])), lambda: stamp('uflag'),
               ('at', P['pollu']), ('vm', lambda: poll_issue(vPu)))
qX = cv.stream(('at', e_end + 6), ('s_barrier', None), ('at', P['xat']))
for q in range(8):
    qX += lds_w(vXa + 3, aAccE + 4 * q, 4 * 4096 + 1024 * q, 'mw', 'a', P['xw64']) + [('delay', P['ewsp'])]
NDEF = P['ndef']
marks = {(c, ks): [1] for c in 'TD' for ks in range(12)}
log = []


def mark(c, ks):
    def f():
        marks[(c, ks)].clear()
        mtime[(c, ks)] = cv.k
        log.append('%s%d@%d' % (c, ks, cv.k))
        if '%s%d' % (c, ks) in P['mst'].split(','):
            stamp('%s%d' % (c, ks))
    return f


qD = cv.stream(*dbgf([y for x in tailq for y in split(x)]), mark('D', NW + 3))
qT = cv.stream(('at', P['t0']))
for ks in range(NW, 12 - NDEF):
    dep = min(ks + P['tlag'], 11)
    if dep >= NW + 3:
        qT.append(('after', marks[('D', dep)]))
    qT += dbgf(w2T(ks, slot2(ks))) + [mark('T', ks)]
    if ks + 4 < 12:
        qD += [('since', ('T', ks), P['tdel']), lambda ks=ks: a.wait_lg(('tr', 'w2', ks))]
        qD += dbgf(dma_list('w2', ks + 4, slot2(ks))) + [mark('D', ks + 4)]
if 'X' in P['dbg']:
    qX.clear()
qX.append(lambda: log.append('X@%d' % cv.k))
qU = cv.stream(('after', qF), ('after', qD), ('at', P['pollu'] + P['ulag']),
               lambda: poll_check('L_pollu', vPu), lambda: stamp('upoll'), lambda: log.append('U@%d' % cv.k))
for F in range(UW):
    qU.append(('vm', lambda F=F: uload(F)))
cv.streams.append(cv.streams.pop(1))

def ready(k):
    d, A, B, C = mf[k]
    for f in (A, B):
        while f not in reg_of or any(p[1] == f for p in pend):
            assert pend or free
            issue_frag(1)
    wait_frags(A, B)


first = {}
for k, (d, A, B, C) in enumerate(mf):
    for f in (A, B):
        first.setdefault(f, k)


def frag_cb(urgent_only):
    if urgent_only:
        j, slack = 0, 999
        for x, f in pend:
            j += 1
            slack = min(slack, first[f] - j)
        for f in order[:14]:
            j += len(frag_loads(f, 0))
            slack = min(slack, first[f] - j)
        if slack - cv.k > P['urg']:
            return 0
    return issue_frag(1)


ready(0)
for k, (d, A, B, C) in enumerate(mf):
    a('v_mfma_f32_16x16x32_bf16 %s, %s, %s, %s' % (d, vr(reg_of[A], 4), vr(reg_of[B], 4), C))
    for f in (A, B):
        if last[f] == k:
            free.append(reg_of[f])
    if k + 1 < len(mf):
        ready(k + 1)
    cv.gap(frag=frag_cb)
left = [len(x['q']) for x in cv.streams]
cv.streams.pop(3)
while qX or qT or qD or qF:
    cv.gap()
vMx = 96
a('s_bitcmp1_b32 %s, 0' % sr(sWave))
a('s_cbranch_scc1 L_mw_odd')
sh = list(a.hist)
sl = list(a.lg)
for par in range(2):
    if par == 1:
        a.label('L_mw_odd')
        a.hist, a.lg = list(sh), list(sl)
    give = 4 if par == 0 else 0
    for q in range(4):
        a('ds_write_b128 %s, %s offset:%d' % (vr(vMw), vr(vAccM + 4 * (give + q), 4), 1024 * q), tag='mw')
        if par == 1:
            for i in (2 * q, 2 * q + 1):
                a('v_mov_b64 %s, %s' % (vr(vAccM + 2 * i, 2), vr(vAccM + 16 + 2 * i, 2)))
    if par == 0:
        a('s_branch L_mw_done')
a.label('L_mw_done')
stamp('convend')
g2 = Sched()
vOl = 104
vQe = 154
vQg = 64
vPp = 120
vYl = 132
vYt = 144
vYu = 96
vOp = 88
assert vQe + 10 <= vUw
qM = g2.stream(lambda: a.wait_lg('mw'), ('s_barrier', None))
qM += [('ds_read_b128 %s, %s offset:%d' % (vr(vMx + 4 * q, 4), vr(vMr), 1024 * q), ('mr', q // 2)) for q in range(4)]
qM += [('ds_read_b128 %s, %s offset:%d' % (
    vr(vEx + 8 * w2 + 4 * h, 4), vr(vEr + w2 // 2), RINGW * (w2 % 2) + 1024 * h), ('er', w2))
    for w2 in range(4) for h in range(2)]
MF = P['mflush']


def addv(d, x, n):
    if MF:
        return [('v_pk_add_f32 %s, %s, %s' % (vr(d + i, 2), vr(d + i, 2), vr(x + i, 2)), None) for i in range(0, n, 2)]
    return [('v_add_f32 %s, %s, %s' % (vr(d + i), vr(d + i), vr(x + i)), None) for i in range(n)]


def ypack(src, o, addr, off):
    return [('v_cvt_pk_bf16_f32 %s, %s, %s' % (vr(o + h), vr(src + 2 * h), vr(src + 2 * h + 1)), None)
            for h in range(4)] + [
        ('v_permlane16_swap_b32 %s, %s' % (vr(o), vr(o + 2)), None),
        ('v_permlane16_swap_b32 %s, %s' % (vr(o + 1), vr(o + 3)), None),
        ('buffer_store_dwordx4 %s, %s, %s, 0 offen offset:%d sc1' % (vr(o, 4), vr(addr), sr(rWS, 4), off), 'yst')]


for qq in range(2):
    qM.append(lambda qq=qq: a.wait_lg(('mr', qq)))
    qM += addv(vMx + 8 * qq, vAccM + 8 * qq, 8) + ypack(vMx + 8 * qq, vMx + 16 + 4 * qq, vYm, 1024 * qq)
for w2 in range(1, 4):
    qM += [lambda w2=w2: a.wait_lg(('er', w2))] + addv(vEx, vEx + 8 * w2, 8)
qM += ypack(vEx, vYp, vYe, 0)
if MF:
    n = 0
    while qM:
        g2.flush(qM, lambda m=len(qM): len(qM) == m)
        n += 1
        if n % 8 == 0 and 0 < len(qU) <= UW:
            cv.flush(qU, lambda m=len(qU): len(qU) == m)
cv.flush(qU)
qT2 = g2.stream()
for ks in range(12 - NDEF, 12):
    qT2 += w2T(ks, slot2(ks))
side = g2.stream()
a.wait_vm('gb')
a(f"""
v_sub_f32 v{vOg}, 1.0, v{vGt}
v_lshlrev_b32 v{vB2}, 16, v{vB2}
v_mul_f32 v{vT0}, v{vOg}, v{vB2}
s_lshl_b32 s{sT0}, s{sR}, {P['fsy']}
s_add_u32 s{sT0}, s{sT0}, {WS_FY}
""")


def xwrite(st):
    if st == 4:
        return [('ds_write_b128 %s, %s offset:%d' % (
            vr(vXa + 3), ar(aOth + 4 * (n - 1), 4), 3072 * st + 1024 * (n - 1)), 'xw') for n in range(1, 4)]
    return [x for n in range(1, 4)
            for x in lds_w(vXa + 3, aOth + 12 * (st & 1) + 4 * (n - 1), 3072 * st + 1024 * (n - 1), 'xw', 'a')]


def xread(st):
    return [('ds_read_b128 %s, %s offset:%d' % (vr(vPp + 4 * (n - 1), 4), vr(vXa + n - 1), 3072 * st + 1024 * (n - 1)),
             ('xr', st)) for n in range(1, 4)]


def xsum(st, pk=False):
    L = [lambda: a.wait_lg(('xr', st))]
    o = vOwn + 4 * st
    if pk:
        for n in range(3):
            L += [('v_pk_add_f32 %s, %s, %s' % (vr(o + 2 * h, 2), vr(o + 2 * h, 2), vr(vPp + 4 * n + 2 * h, 2)), None)
                  for h in range(2)]
    else:
        for n in range(3):
            L += [('v_add_f32 %s, %s, %s' % (vr(o + j), vr(o + j), vr(vPp + 4 * n + j)), None) for j in range(4)]
    return L


def base(i, pk=False):
    o = vOwn + 4 * i
    if pk:
        return [('v_pk_fma_f32 %s, %s, %s, %s op_sel_hi:[1,0,0]' % (
            vr(o + 2 * h, 2), vr(o + 2 * h, 2), vr(vOg, 2), vr(vT0, 2)), None) for h in range(2)]
    return [('v_fma_f32 %s, %s, %s, %s' % (vr(o + j), vr(o + j), vr(vOg), vr(vT0)), None) for j in range(4)]


def fin(i, pk=True):
    o, p, y = vOwn + 4 * i, vOp + 2 * (i & 1), vYu + 4 * (i & 1)
    L = [lambda: a.wait_lg(('yt', i))]
    for h in range(2):
        L += [('v_lshlrev_b32 %s, 16, %s' % (vr(y + 2 * h), vr(vYt + 2 * i + h)), None),
              ('v_and_b32 %s, 0xffff0000, %s' % (vr(y + 2 * h + 1), vr(vYt + 2 * i + h)), None)]
    if pk:
        L += [('v_pk_fma_f32 %s, %s, %s, %s' % (
            vr(o + 2 * h, 2), vr(vQg + 4 * i + 2 * h, 2), vr(y + 2 * h, 2), vr(o + 2 * h, 2)), None) for h in range(2)]
    else:
        L += [('v_fmac_f32 %s, %s, %s' % (vr(o + j), vr(vQg + 4 * i + j), vr(y + j)), None) for j in range(4)]
    L += [('v_cvt_pk_bf16_f32 %s, %s, %s' % (vr(p + h), vr(o + 2 * h), vr(o + 2 * h + 1)), None) for h in range(2)]
    L += [('ds_write_b64 %s, %s offset:%d' % (stg(i)[0], vr(p, 2), stg(i)[1]), None)]
    return L


def oread(ms):
    return [('ds_read_b128 %s, %s offset:%d' % (vr(vOl + 4 * m, 4), vr(vXa + 3), STG + 1024 * m), ('or', m)) for m in ms]


def ostore(ms):
    L = []
    for m in ms:
        L += [lambda m=m: a.wait_lg(('or', m)), ('buffer_store_dwordx4 %s, %s, %s, 0 offen %s' % (
            vr(vOl + 4 * m, 4), vr(vOo + m), sr(rO, 4), P['outmod']), 'out')]
    return L


def qprep(pk):
    L = [lambda: a.wait_vm('qe')]
    L += [('ds_read_b64 %s, %s offset:%d' % (vr(vQe + 2 * i, 2), stg(i)[0], stg(i)[1]), ('qr', i)) for i in range(5)]
    if not pk:
        L.append(('delay', 4))
    for i in range(5):
        L.append(lambda i=i: a.wait_lg(('qr', i)))
        for h in range(2):
            L += [('v_lshlrev_b32 %s, 16, %s' % (vr(vQg + 4 * i + 2 * h), vr(vQe + 2 * i + h)), None),
                  ('v_and_b32 %s, 0xffff0000, %s' % (vr(vQg + 4 * i + 2 * h + 1), vr(vQe + 2 * i + h)), None)]
        if pk:
            L += [('v_pk_mul_f32 %s, %s, %s op_sel_hi:[1,0]' % (
                vr(vQg + 4 * i + 2 * h, 2), vr(vQg + 4 * i + 2 * h, 2), vr(vGt, 2)), None) for h in range(2)]
        else:
            L += [('v_mul_f32 %s, %s, %s' % (vr(vQg + 4 * i + j), vr(vGt), vr(vQg + 4 * i + j)), None) for j in range(4)]
    return L


def yflag():
    a(f"""
    s_cmp_eq_u32 s{sWave}, 0
    s_cbranch_scc0 L_noyflag
    """)
    sh = list(a.hist)
    a.cond = True
    flag(sT0, P['fsy'])
    a.cond = False
    a.label('L_noyflag')
    a.hist = sh
    stamp('yflag')


def ywrite():
    return [lambda: a.wait_vm('yl')] + [('ds_write_b128 %s, %s offset:%d' % (
        vr(vXa + 3), vr(vYl + 4 * m, 4), 16384 + 1024 * m), 'xw') for m in range(3)]


def yread():
    return [('ds_read_b64_tr_b16 %s, %s offset:%d' % (
        vr(vYt + 2 * i, 2), vr(vYr), RINGW * ((2 * i) % 4) + 1024 * (i // 2)), ('yt', i)) for i in range(5)]


YC = P['ychk']
EARLY = YC <= 40
QLATE = P['qeat'] + UW >= 52
assert not (EARLY and QLATE)
yq = [('buffer_load_dwordx4 %s, %s, %s, 0 offen sc1' % (vr(vYl + 4 * m, 4), vr(vYa + m), sr(rWS, 4)), 'yl')
      for m in range(3)]
qE = g2.stream()
g2.streams.insert(0, g2.streams.pop())
def g2ready(F):
    st, ks = divmod(F, 12)
    if st == 0:
        g2.flush(qT2, lambda: any(not callable(x) and x[1] == ('tr', 'w2', ks) for x in qT2))
    if ks == 0:
        g2.flush(qE, lambda: any(not callable(x) and x[1] == 'xw' for x in qE))
    a.wait_vm(('u', F))
    if st == 0:
        a.wait_lg(('tr', 'w2', ks))


g2ready(0)
for F in range(60):
    st, ks = divmod(F, 12)
    for n in range(4):
        d = vr(vOwn + 4 * st, 4) if n == 0 else ar(aOth + 12 * (st & 1) + 4 * (n - 1), 4)
        a('v_mfma_f32_16x16x32_bf16 %s, %s, %s, %s' % (
            d, vr(vUw + 4 * (F % UW), 4), ar(areg('w2', ks) + 4 * n, 4), '0' if ks == 0 else d))
        forced = None
        if n == 0 and 1 <= F <= 60 - UW:
            forced = lambda: uload(F - 1 + UW)
        elif n == 2 and F == P['ypoll']:
            forced = lambda: poll_issue(vPo)
        elif n == 2 and F >= P['qeat'] and qeq:
            assert F >= 20
            forced = lambda: emit(qeq.pop(0))
        elif n == 2 and F > YC and yq:
            forced = lambda: emit(yq.pop(0))
        if n == 3 and F < 59:
            g2ready(F + 1)
        g2.gap(forced=forced)
    if F == P['yflag']:
        g2.flush(qM)
        qE += [lambda: a.wait_vm('yst'), ('s_barrier', None), yflag]
    if st > 0 and ks == 1:
        g2.flush(qM)
        if EARLY and st == 4:
            qE += ywrite()
        qE += xwrite(st - 1) + [('delay', P['bdel2']), lambda: a.wait_lg('xw')] + ([('s_barrier', None)] if 'C' not in P['dbg'] else []) + xread(st - 1)
        if EARLY and st == 4:
            qE += yread()
        qE += [('delay', P['rdel2'])] + xsum(st - 1) + base(st - 1)
        if EARLY and st == 4:
            for i in range(4):
                qE += fin(i, False)
            qE += oread((0, 1)) + [('delay', 4)] + ostore((0, 1))
    if not QLATE and F == max(P['qeat'] + UW + 2, 28):
        qE += qprep(False)
    if F == YC:
        poll_check('L_polly', vPo)
        stamp('ypoll')
g2left = len(qE)
stamp('g2end')
while yq:
    emit(yq.pop(0))
g2.flush(qE, lambda: any(not callable(x) and x[0] == 's_barrier' for x in qE))
for it in xwrite(4):
    emit(it)
g2.flush(qE)
if QLATE:
    for it in qprep(True):
        emit(it)
stamp('tq')
if not EARLY:
    for it in ywrite():
        emit(it)
a('s_waitcnt lgkmcnt(0)')
stamp('ty')
a('s_barrier')
stamp('tb')
L = xread(4)
if not EARLY:
    L = yread() + L
    for i in range(4):
        L += fin(i)
    L += oread((0, 1))
L += xsum(4, True) + base(4, True) + fin(4) + oread((2,))
L += ostore((2,) if EARLY else (0, 1, 2))
for it in L:
    emit(it)
stamp('tst')
a('s_add_u32 %s, s2, %s' % (sr(t2), sr(sWave)))
a('s_cmp_eq_u32 %s, 0' % sr(t2))
a('s_cbranch_scc0 L_noepoch')
flag(t2)
a.label('L_noepoch')
if STAMPS:
    a('s_waitcnt vmcnt(0)')
    nstamp[0] = min(nstamp[0], 15)
    stamp('end')
    a(f'''
    s_lshl_b32 s{sT0}, s2, 2
    s_add_u32 s{sT0}, s{sT0}, s{sWave}
    s_lshl_b32 s{sT0}, s{sT0}, 7
    s_add_u32 s{sT0}, s{sT0}, {WS_ST}
    s_mov_b64 exec, 1
    ''')
    for i in range(nstamp[0]):
        a('v_mov_b32 v10, %s' % sr(sStamp + i))
        a('buffer_store_dword v10, off, %s, %s offset:%d' % (sr(rWS, 4), sr(sT0), 4 * i))
if PROBE:
    a(f'''
    s_cmp_eq_u32 s{sStamp+PROBE[0]}, 0
    s_cselect_b32 s{sT0}, s{sStamp}, s{sStamp+PROBE[0]}
    s_add_u32 s{sT0}, s{sT0}, 6000
    ''')
    a.label('L_probe')
    a(f'''
    s_memrealtime s[100:101]
    s_waitcnt lgkmcnt(0)
    s_sub_u32 s{sT1}, s100, s{sT0}
    s_cmp_lt_i32 s{sT1}, 0
    s_cbranch_scc1 L_probe
    ''')
a.label('L_end')
a('s_endpgm')

PADTXT = '' if P['pad'] < 0 else '.p2align 12\n' + ('.fill %d, 4, 0xbf800000\n' % (64 * P['pad']) if P['pad'] else '')
hdr = open('cdna_kernels/%s.s.ref' % NAME).read().split('; Override launch')[0]
def render():
    return hdr + f'''; @launch grid=(256,1,1) block=(256,1,1) lds={LDS_BYTES}
; stamps: {' '.join(stamp_names)}
.amdgcn_target "amdgcn-amd-amdhsa--gfx950"
.text
.globl {NAME}_kernel
{PADTXT}.p2align 8
.type {NAME}_kernel,@function
{NAME}_kernel:
''' + a.text() + f'''.section .rodata,"a"
.p2align 6
.amdhsa_kernel {NAME}_kernel
  .amdhsa_next_free_vgpr 512
  .amdhsa_next_free_sgpr 102
  .amdhsa_accum_offset 256
  .amdhsa_group_segment_fixed_size 0
  .amdhsa_kernarg_size 120
  .amdhsa_user_sgpr_count 2
  .amdhsa_user_sgpr_kernarg_segment_ptr 1
  .amdhsa_system_sgpr_workgroup_id_x 1
.end_amdhsa_kernel
'''


if warm_pages:
    import subprocess, re, tempfile, os
    assert P['pad'] >= 0
    real = list(a.out)
    a.out = real + ['L_page%d:' % p for p in warm_pages] + ['    s_endpgm']
    d = tempfile.mkdtemp()
    open(d + '/t.s', 'w').write(render())
    subprocess.check_call(['clang', '-x', 'assembler', '-target', 'amdgcn-amd-amdhsa', '-mcpu=gfx950',
                           '-c', d + '/t.s', '-o', d + '/t.o'])
    dis = subprocess.check_output(['llvm-objdump', '-d', '--mcpu=gfx950', d + '/t.o'], text=True)
    dis = dis[dis.index('<%s_kernel>:' % NAME):]
    addrs = [int(m, 16) for m in re.findall(r'// ([0-9A-F]{12}):', dis)]
    off0 = ((P['pad'] + 3) * 256) % 4096
    res, k, shift, todo, full = [], 0, 0, sorted(warm_pages), True
    for line in real:
        if line.startswith('    ') and not line.strip().startswith(';'):
            pos = addrs[k] - addrs[0] + off0 + shift
            if todo and pos >= 4096 * todo[0] and full:
                res += ['L_page%d:' % todo.pop(0), '    s_cbranch_execz L_wmret']
                shift += 4
            if ' exec' in line and line.split()[1].startswith('exec'):
                full = line.replace(' ', '') == 's_mov_b64exec,-1'
            k += 1
        res.append(line)
    assert not todo
    a.out = res
txt = render()
open(OUT, 'w').write(txt)
print('left: g1', t4left, g1sl, g1left, 'conv', left, 'g2', g2left, ' '.join(log))
print('wrote', OUT, 'lines', len(a.out), 'nops', a.nops, 'stamps', nstamp[0], stamp_names)
```
